```python
import torch

def _softmax(x, axis=-1):
    return torch.softmax(x, dim=axis)
def _gelu(x):
    return torch.nn.functional.gelu(x, approximate="tanh")
def _silu(x):
    return torch.nn.functional.silu(x)
def _sigmoid(x):
    return torch.sigmoid(x)
def _layernorm(x, axis=-1, eps=1e-5):
    m = x.mean(dim=axis, keepdim=True)
    v = x.var(dim=axis, keepdim=True, unbiased=False)
    return (x - m) / torch.sqrt(v + eps)
def _scatter_add(tgt, idx, src, axis=0):
    return tgt.clone().index_add_(axis, idx, src)
def _segment_sum(src, seg, n):
    out = torch.zeros((n,) + src.shape[1:], dtype=src.dtype)
    return out.index_add_(0, seg, src)
def _pad(x, pw):
    flat = tuple(v for pair in reversed(pw) for v in pair)
    return torch.nn.functional.pad(x, flat)

kernel_name = 'gated_mix__compressed_kv_cla__dense_activation_gelu__prompt'

def setup_inputs():

    _w = (lambda a: (lambda t: t.to(torch.bfloat16) if t.is_floating_point() else t)(torch.as_tensor(a)))
    def _A_setup():
        B, H, Sq, Sk, D, M = 1, 32, 2048, 2048, 128, 640
        Dc = 4 * D
        return {
            "x": _w((lambda *s: torch.randn(*s, dtype=torch.bfloat16) * 0.05)(B, Sq, M)),
            "c_kv": _w((lambda *s: torch.randn(*s, dtype=torch.bfloat16) * 0.4)(B, Sk, Dc)),
            "w_q": _w((lambda *s: torch.randn(*s, dtype=torch.bfloat16) * 6.4)(M, H, D) * (M ** -0.5)),
            "w_uk": _w((lambda *s: torch.randn(*s, dtype=torch.bfloat16) * 6.4)(Dc, H, D) * (Dc ** -0.5)),
            "w_uv": _w((lambda *s: torch.randn(*s, dtype=torch.bfloat16) * 0.4)(Dc, H, D) * (Dc ** -0.5)),
            "w_o": _w((lambda *s: torch.randn(*s, dtype=torch.bfloat16) * 0.4)(H, D, M) * ((H * D) ** -0.5)),
        }
    _A_in = _A_setup()

    def _B_setup():
        B, S, D, F = 1, 2048, 640, 1728
        return {
            "x": _w((lambda *s: torch.randn(*s, dtype=torch.bfloat16) * 0.05)(B, S, D)),
            "w1": _w((lambda *s: torch.randn(*s, dtype=torch.bfloat16) * 3.2)(D, F) * (D ** -0.5)),
            "b1": _w((lambda *s: torch.randn(*s, dtype=torch.bfloat16) * 3.2)(F) * 0.01),
            "w2": _w((lambda *s: torch.randn(*s, dtype=torch.bfloat16) * 0.4)(F, D) * (F ** -0.5)),
            "b2": _w((lambda *s: torch.randn(*s, dtype=torch.bfloat16) * 0.8)(D) * 0.01),
        }
    _B_in = _B_setup()

    return {
        "A_x": _A_in["x"],
        "A_c_kv": _A_in["c_kv"],
        "A_w_q": _A_in["w_q"],
        "A_w_uk": _A_in["w_uk"],
        "A_w_uv": _A_in["w_uv"],
        "A_w_o": _A_in["w_o"],
        "B_x": _B_in["x"],
        "B_w1": _B_in["w1"],
        "B_b1": _B_in["b1"],
        "B_w2": _B_in["w2"],
        "B_b2": _B_in["b2"],
        "gate_w": _w((lambda *s: torch.randn(*s, dtype=torch.bfloat16) * 0.05)(640) * 16.0),
    }

def reference(A_x, A_c_kv, A_w_q, A_w_uk, A_w_uv, A_w_o, B_x, B_w1, B_b1, B_w2, B_b2, gate_w):
    def _A_ref(x, c_kv, w_q, w_uk, w_uv, w_o):
        B, Sq, M = x.shape[0], x.shape[1], x.shape[2]
        Sk = c_kv.shape[1]
        H, D = w_q.shape[1], w_q.shape[2]
        q = torch.einsum("bqm,mhd->bhqd", x, w_q)
        k = torch.einsum("bkc,chd->bhkd", c_kv, w_uk)
        v = torch.einsum("bkc,chd->bhkd", c_kv, w_uv)
        scores = torch.einsum("bhqd,bhkd->bhqk", q, k) * (D ** -0.5)
        off = Sk - Sq
        qi = torch.arange(Sq)[:, None]
        kj = torch.arange(Sk)[None, :]
        cmask = kj <= (qi + off)
        scores = torch.where(cmask[None, None], scores, -1e9)
        p = _softmax(scores, axis=-1)
        ctx = torch.einsum("bhqk,bhkd->bhqd", p, v)
        return torch.einsum("bhqd,hdm->bqm", ctx, w_o)

    def _B_ref(x, w1, b1, w2, b2):
        h = torch.einsum("bsd,df->bsf", x, w1) + b1
        h = _gelu(h)
        return torch.einsum("bsf,fd->bsd", h, w2) + b2

    x = A_x
    g = _sigmoid((x * gate_w).sum(-1, keepdims=True))
    a = _A_ref(x, A_c_kv, A_w_q, A_w_uk, A_w_uv, A_w_o)
    b = _B_ref(x, B_w1, B_b1, B_w2, B_b2)
    return g * a + (1 - g) * b
```

```python
KNAME = "gated_mix__compressed_kv_cla__dense_activation_gelu__prompt"

def vr(a, n=1):
    return f"v{a}" if n == 1 else f"v[{a}:{a+n-1}]"
def ar(a, n=1):
    return f"a{a}" if n == 1 else f"a[{a}:{a+n-1}]"
def sr(a, n=1):
    return f"s{a}" if n == 1 else f"s[{a}:{a+n-1}]"
def R(a, n=1):
    if a >= 256:
        return ar(a - 256, n)
    assert a + n <= 256
    return vr(a, n)

class Asm:
    def __init__(self):
        self.lines = []
    def __call__(self, s):
        if isinstance(s, (list, tuple)):
            for x in s:
                self(x)
            return
        for l in s.split("\n"):
            l = l.strip()
            if not l:
                continue
            if l.endswith(":") or l.startswith("."):
                self.lines.append(l)
            else:
                self.lines.append("    " + l)
    def label(self, name):
        self.lines.append(name + ":")
    def text(self):
        return "\n".join(self.lines) + "\n"

def srd(a, d, base, nbytes):
    a(f"s_mov_b32 s{d}, s{base}")
    a(f"s_and_b32 s{d+1}, s{base+1}, 0xffff")
    a(f"s_mov_b32 s{d+2}, {nbytes}")
    a(f"s_mov_b32 s{d+3}, 0x20000")

def kernel_begin(a, name):
    a(f".globl {name}")
    a(".p2align 8")
    a(f".type {name},@function")
    a.label(name)

def kernel_desc(name, vgpr=256, agpr=0, sgpr=102):
    acc = (vgpr + 3) // 4 * 4
    nfv = acc + agpr if agpr else vgpr
    return f""".amdhsa_kernel {name}
  .amdhsa_next_free_vgpr {nfv}
  .amdhsa_next_free_sgpr {sgpr}
  .amdhsa_accum_offset {acc}
  .amdhsa_group_segment_fixed_size 0
  .amdhsa_kernarg_size 120
  .amdhsa_user_sgpr_count 2
  .amdhsa_user_sgpr_kernarg_segment_ptr 1
  .amdhsa_system_sgpr_workgroup_id_x 1
  .amdhsa_float_denorm_mode_32 3
.end_amdhsa_kernel
"""

def file_text(launches, body, descs, single=False, header=""):
    out = []
    if header:
        for l in header.strip("\n").split("\n"):
            out.append("; " + l)
    for (k, g, b, lds) in launches:
        if single:
            out.append(f"; @launch grid=({g},1,1) block=({b},1,1) lds={lds}")
        else:
            out.append(f"; @launch kernel={k} grid=({g},1,1) block=({b},1,1) lds={lds}")
    out.append('.amdgcn_target "amdgcn-amd-amdhsa--gfx950"')
    out.append(".text")
    out.append(body)
    out.append('.section .rodata,"a"')
    for d in descs:
        out.append(".p2align 6")
        out.append(d)
    return "\n".join(out)
```

```python
from gen_proj import *

V_KA = 2; V_VA = 3; V_TB = 4
def O_(dt, j): return 16 + (dt*2 + j)*4
def L_(j): return 80 + 4*j
def S_(b, kt, j): return 88 + b*16 + (j*2 + kt)*4
def P_(b, j): return 120 + b*8 + 4*j
def NM(j): return 136 + 4*j
def CM(j, k4): return 144 + (j*4 + k4)*4
def Q_(j, ks): return 176 + (j*4 + ks)*4
QNEXT = 208
def KF(kt, ks): return 256 + (kt*4 + ks)*4
def VF(dt): return 256 + 32 + dt*4
ONES = 256 + 64
SLOWK = 256 + 128; SLOWV = 256 + 160
BIG = 2.0**100
import struct
def f2h(x): return "0x%08x" % struct.unpack("<I", struct.pack("<f", x))[0]

S_OFFK = 32; S_OFFV = 33; S_CNT = 34; S_N1 = 35; S_BASE = 36; S_RK = 37; S_RV = 38; S_PER = 39; S_QB = 40; S_BLK = 41
S_CTX = 42
S_TA = 44
S_SL = 48
OOB = 0x20000000

def kread(unit_in_pair, idx):
    return Op(f"ds_read_b128 {R(KF(idx >> 2, idx & 3),4)}, v{V_KA} offset:{unit_in_pair*8192 + idx*1024}", tag=f"k{idx>>2}")
def vread(unit_in_pair, dt):
    return Op(f"ds_read_b128 {R(VF(dt),4)}, v{V_VA} offset:{unit_in_pair*8192 + dt*1024}", tag=f"v{dt>>2}")
def dma(which, j):
    s = S_OFFK if which == "K" else S_OFFV
    return Op(f"buffer_load_dwordx4 v{V_L16}, s[{SRD_WS}:{SRD_WS+3}], s{s} offen offset:{j*1024} lds", tag="dma")
def exps(b, j): return [f"v_exp_f32 v{S_(b,kt,j)+r}, v{S_(b,kt,j)+r}" for kt in range(2) for r in range(4)]
def cvts(b, j): return [f"v_cvt_pk_bf16_f32 v{P_(b,j)+i}, v{S_(b,i>>1,j)+2*(i&1)}, v{S_(b,i>>1,j)+2*(i&1)+1}" for i in range(4)]
def k_pre():  return [f"s_mov_b32 m0, s{S_RK}"]
def k_post(): return [f"s_add_u32 s{S_RK}, s{S_RK}, 16384", f"s_and_b32 s{S_RK}, s{S_RK}, 0xffff"]
def v_pre():  return [f"s_add_u32 m0, s{S_RV}, 65536"]
def v_post():
    return [f"s_add_u32 s{S_RV}, s{S_RV}, 16384", f"s_and_b32 s{S_RV}, s{S_RV}, 0xffff",
            f"s_add_u32 s{S_OFFV}, s{S_OFFK}, 16384",
            f"s_add_u32 s{S_OFFK}, s{S_OFFK}, 32768", f"s_add_u32 s{S_CNT}, s{S_CNT}, 1",
            f"s_cmp_eq_u32 s{S_CNT}, s{S_N1}", f"s_cselect_b32 s{S_OFFK}, s{S_BASE}, s{S_OFFK}",
            f"s_cmp_ge_u32 s{S_CNT}, 34", f"s_cselect_b32 s{S_OFFK}, {OOB}, s{S_OFFK}"]

def q_mfmas(G, b, js, cfun):
    for j in js:
        for kt in range(2):
            for ks in range(4):
                G.mfma(mfma(S_(b, kt, j), KF(kt, ks), Q_(j, ks), cfun(j, kt) if ks == 0 else None))
def barrier_ops(): return [Op("s_waitcnt vmcnt(16) lgkmcnt(0)"), Op("s_barrier")]

def step_normal(p, cfun=None, tailops=None):
    G = Gaps(); b = p & 1; pb = b ^ 1
    if cfun is None: cfun = lambda j, kt: NM(j)
    q_mfmas(G, b, (0, 1), cfun)
    G.mfma(mfma(L_(0), ONES, P_(pb, 0)))
    for dt in range(8):
        for j in range(2): G.mfma(mfma(O_(dt, j), VF(dt), P_(pb, j)))
    G.mfma(mfma(L_(1), ONES, P_(pb, 1)))
    which = "K" if p & 1 else "V"
    d = [dma(which, j) for j in range(4)]
    vu = (p - 1) & 3
    ku = (p + 1) & 3
    vr_ = [vread(vu, dt) for dt in range(8)]
    kr = [kread(ku, i) for i in range(8)]
    e1 = exps(pb, 1); c1 = cvts(pb, 1); e0 = exps(b, 0); c0 = cvts(b, 0)
    qpat = [[e1[0]], [e1[1]], [vr_[0], c1[0]], [e1[2]], [e1[3]], [vr_[1], c1[1]], [d[0]], [e1[4]], [e1[5]], [vr_[2], c1[2]],
            [e1[6]], [e1[7]], [vr_[3], c1[3]], [vr_[4], vr_[5]], [vr_[6], vr_[7]], [d[1]]]
    ppat = [[kr[0], kr[1]], [e0[0]], [kr[2], kr[3]], [e0[1]], [kr[4], c0[0]], [e0[2]], [e0[3]], [kr[5], c0[1]], [e0[4]], [kr[6], kr[7]],
            [e0[5]], [d[2]], [e0[6]], [c0[2]], [e0[7]], [d[3]], [c0[3]], []]
    for i, l in enumerate(qpat + ppat):
        for o in l: G.put(i, o)
    G.put(15, W(l=["v0"])); G.put(16 + 7, W(l=["v1"]))
    if p == 0: G.put(16 + 13, f"v_xor_b32 v{V_VA}, 0x8000, v{V_VA}")
    if p == 2: G.put(16 + 13, f"v_xor_b32 v{V_KA}, 0x8000, v{V_KA}")
    post = v_post() if which == "K" else k_post()
    return G, which, post

def finish_step(G, which, post, nq, last_ops):
    pre = k_pre() if which == "K" else v_pre()
    return pre

def att_setup(a):
    a(f"v_lshlrev_b32 v{V_L16}, 4, v0")
    a(f"v_mov_b32 v{V_KA}, v{V_L16}")
    a(f"v_add_u32 v{V_VA}, {65536 + 32768}, v{V_L16}")
    a("v_and_b32 v6, 15, v0")
    a("v_lshrrev_b32 v7, 4, v0")
    a("v_lshlrev_b32 v7, 2, v7")
    a("v_sub_u32 v6, v6, v7")
    a(f"s_lshl_b32 s{S_TA}, s{S_WAVE}, 4")
    a(f"s_sub_u32 s{S_TA+1}, 112, s{S_TA}")
    a(f"v_add_u32 v7, s{S_TA}, v6")
    a(f"v_add_u32 v8, s{S_TA+1}, v6")
    a("v_cvt_f32_i32 v7, v7"); a("v_cvt_f32_i32 v8, v8")
    a("v_add_f32 v7, 0.5, v7"); a("v_add_f32 v8, 0.5, v8")
    a(f"v_mul_f32 v{V_TB}, {f2h(BIG)}, v7"); a(f"v_mul_f32 v{V_TB+1}, {f2h(BIG)}, v8")
    a("v_mov_b32 v6, 0x3f803f80")
    for i in range(4): a(f"v_accvgpr_write_b32 {R(ONES+i)}, v6")
    a(f"s_lshl_b32 s{S_BASE}, s{S_H}, 20")
    a(f"s_lshl_b32 s{S_RK}, s{S_WAVE}, 12")
    a(f"s_add_u32 s{S_BASE}, s{S_BASE}, s{S_RK}")
    if WS_KV: a(f"s_add_u32 s{S_BASE}, s{S_BASE}, {WS_KV}")
    a(f"s_mov_b32 s{S_RV}, s{S_RK}")
    a(f"s_mov_b32 s{S_OFFK}, s{S_BASE}")
    a(f"s_mov_b32 s{S_CNT}, 0")
    a(f"s_lshl_b32 s{S_N1}, s{S_I}, 1")
    a(f"s_add_u32 s{S_N1}, s{S_N1}, 2")
    a(f"s_mov_b32 s{S_QB}, s{S_I}")
    a(f"s_mov_b32 s{S_BLK}, 0")

def att_prefetch0(a):
    for w in range(3):
        a(k_pre()); a("s_nop 0")
        for j in range(4): a(dma("K", j).text)
        a(k_post())
        if w > 0:
            a(v_pre()); a("s_nop 0")
            for j in range(4): a(dma("V", j).text)
            a(v_post())
        else:
            a(v_post()[2:])

def place_scalars(G, ops, lo, hi):
    g = lo
    for o in ops:
        while g <= hi and G.has_scalar(g): g += 1
        if g > hi: G.put(hi, o)
        else: G.put(g, o); g += 1

def full_step(p, cfun=None, end_ops=()):
    G, which, _ = step_normal(p, cfun)
    if which == "K":
        G.put(3, W(l=["k1"])) if False else None
        place_scalars(G, k_pre(), 4, 5)
        place_scalars(G, k_post(), 16 + 8, 16 + 14)
    else:
        G.put(3, W(l=["k1"]))
        place_scalars(G, v_pre(), 4, 5)
        vp = v_post()
        place_scalars(G, vp[:2], 6, 14)
        place_scalars(G, [f"s_add_u32 s{S_TA}, s{S_OFFK}, 16384"] + vp[3:], 16, 16 + 14)
        G.put(16 + 16, f"s_mov_b32 s{S_OFFV}, s{S_TA}")
    last = len(G.m) - 1
    if which == "V":
        for o in barrier_ops(): G.put(last, o)
    else:
        G.put(last, W(l=["k0"]))
    for o in end_ops: G.put(last, o)
    return G

def fitd(G, x, lo, hi):
    g = G.fit(lo, x, hi)
    if g is None:
        g = min(range(lo, hi + 1), key=lambda i: (G.cost(i), i))
        G.put(g, x)
    return g

def softmax_fill(G, b, j, lo_kt, hi):
    e = exps(b, j); c = cvts(b, j); cur = 0
    for i in range(4):
        lo = max(cur, lo_kt[i >> 1])
        g1 = fitd(G, e[2*i], lo, hi - 1); g2 = fitd(G, e[2*i+1], g1, hi - 1)
        cur = g2
        fitd(G, c[i], g2 + 1, hi)

def diag_tail():
    G = Gaps()
    cm = lambda base: (lambda j, kt: CM(1, base + kt))
    q_mfmas(G, 0, (1,), cm(0))
    G.mfma(mfma(L_(0), ONES, P_(1, 0)))
    for dt in range(8): G.mfma(mfma(O_(dt, 0), VF(dt), P_(1, 0)))
    for dt in range(8): G.mfma(mfma(O_(dt, 1), VF(dt), P_(1, 1)))
    G.mfma(mfma(L_(1), ONES, P_(1, 1)))
    q_mfmas(G, 1, (1,), cm(2))
    G.mfma(mfma(L_(1), ONES, P_(0, 1)))
    for dt in range(8): G.mfma(mfma(O_(dt, 1), VF(dt), P_(0, 1)))
    G.mfma(mfma(L_(1), ONES, P_(1, 1)))
    for dt in range(8): G.mfma(mfma(O_(dt, 1), VF(dt), P_(1, 1)))
    G.put(3, W(l=["k1"]))
    for dt in range(8): G.put(dt // 2, vread(1, dt))
    G.put(8, W(l=["v0"])); G.put(12, W(l=["v1"]))
    softmax_fill(G, 1, 1, (4, 4), 14)
    for i in range(8): fitd(G, kread(3, i), 13, 19)
    G.put(19, f"s_add_u32 m0, s{S_RV}, 65536")
    for j in range(4): G.put(20 + j, dma("V", j))
    vp = v_post()
    place_scalars(G, vp[:2], 20, 22)
    place_scalars(G, [f"s_add_u32 s{S_TA}, s{S_OFFK}, 16384"] + vp[3:], 9, 18)
    G.put(24, f"s_mov_b32 s{S_OFFV}, s{S_TA}")
    G.put(24, f"v_xor_b32 v{V_KA}, 0x8000, v{V_KA}")
    for o in barrier_ops(): G.put(25, o)
    for dt in range(8): G.put(26 + dt // 2, vread(2, dt))
    softmax_fill(G, 0, 1, (24, 24), 31)
    G.put(34, W(l=["v0"])); G.put(38, W(l=["v1"]))
    G.put(33, k_pre()[0])
    softmax_fill(G, 1, 1, (37, 41), 42)
    for dt in range(8): G.put(35 + dt, vread(3, dt))
    G.put(42, Op("s_nop 1", "valu"))
    G.put(43, W(l=["v0"])); G.put(47, W(l=["v1"]))
    for i in range(8): G.put(44 + i // 2, kread(0, i))
    for j in range(4): G.put(48 + j, dma("K", j))
    place_scalars(G, k_post(), 48, 51)
    return G

def row_max(a, dst, regs, tmp):
    a(f"v_max3_f32 v{dst}, v{regs[0]}, v{regs[1]}, v{regs[2]}")
    a(f"v_max3_f32 v{tmp}, v{regs[3]}, v{regs[4]}, v{regs[5]}")
    a(f"v_max3_f32 v{dst}, v{dst}, v{regs[6]}, v{regs[7]}")
    a(f"v_max_f32 v{dst}, v{dst}, v{tmp}")
def cross_max(a, pairs):
    for op in ("v_permlane32_swap_b32", "v_permlane16_swap_b32"):
        for d, t in pairs: a(f"v_mov_b32 v{t}, v{d}")
        a("s_nop 1")
        for d, t in pairs: a(f"{op} v{t}, v{d}")
        a("s_nop 1")
        for d, t in pairs: a(f"v_max_f32 v{d}, v{d}, v{t}")

def head_ops():
    a = Asm()
    a(f"v_mov_b32 v6, {f2h(2.0**120)}")
    a(f"s_cmp_eq_u32 s{S_QB}, 0")
    a(f"s_cselect_b64 vcc, -1, 0")
    a(f"v_cndmask_b32 v6, v6, v{V_TB}, vcc")
    for kt in range(2):
        for r in range(4):
            a(f"v_subrev_f32 v{CM(0,kt)+r}, {f2h((16*kt+r)*BIG)}, v6")
            a(f"v_min_f32 v{CM(0,kt)+r}, 0, v{CM(0,kt)+r}")
    a(v_pre())
    pre = [Op(x.strip()) for x in a.lines] + [W(l="*")]
    G = Gaps()
    q_mfmas(G, 0, (0, 1), lambda j, kt: CM(0, kt) if j == 0 else "0")
    for j in range(4): G.put(1 + 2*j, dma("V", j))
    z = [f"v_mov_b32 v{r}, 0" for r in range(16, 88)]
    zi = 0
    for g in range(16):
        while zi < len(z) and G.fit(g, z[zi], g) is not None: zi += 1
    place_scalars(G, v_post(), 8, 15)
    a = Asm()
    for i in range(8): a(kread(1, i).text)
    a(f"v_xor_b32 v{V_VA}, 0x8000, v{V_VA}")
    assert (len(z) - zi) % 2 == 0
    for r in range(16 + zi, 88, 2): a(f"v_mov_b64 v[{r}:{r+1}], 0")
    for j in range(2): row_max(a, 6 + j, [S_(0, kt, j) + r for kt in range(2) for r in range(4)], 8 + j)
    cross_max(a, [(6, 8), (7, 9)])
    for j in range(2):
        for kt in range(2):
            for r in range(4): a(f"v_sub_f32 v{S_(0,kt,j)+r}, v{S_(0,kt,j)+r}, v{6+j}")
    for j in range(2):
        for r in range(4): a(f"v_sub_f32 v{NM(j)+r}, 0, v{6+j}")
    e = exps(0, 0); c = cvts(0, 0)
    cmops = []
    for j in range(2):
        for k4 in range(4):
            for r in range(4):
                cmops.append(f"v_subrev_f32 v{CM(j,k4)+r}, {f2h((16*(k4+4*j)+r)*BIG)}, v{V_TB+j}")
                cmops.append(f"v_min_f32 v{CM(j,k4)+r}, v{NM(j)}, v{CM(j,k4)+r}")
    a(e); a(cmops); a(c)
    a(f"s_mov_b32 s{S_PER}, s{S_QB}")
    post = [Op(x.strip()) for x in a.lines] + barrier_ops()
    return pre + G.ops() + post

def epilogue(a, name, sc=""):
    a(f"s_lshl_b32 s{S_TA}, s{S_QB}, 3")
    a(f"s_add_u32 s{S_CTX}, s{S_TA}, s{S_WAVE}")
    a(f"s_sub_u32 s{S_CTX+1}, s{S_TA}, s{S_WAVE}")
    a(f"s_add_u32 s{S_CTX+1}, s{S_CTX+1}, 7")
    a(f"s_lshl_b32 s{S_TA}, s{S_H}, 12")
    a(f"s_add_u32 s{S_TA}, s{S_TA}, {WS_CTX}")
    for j in range(2):
        a(f"s_lshl_b32 s{S_CTX+j}, s{S_CTX+j}, 17")
        a(f"s_add_u32 s{S_CTX+j}, s{S_CTX+j}, s{S_TA}")
    a(f"s_mov_b32 s{S_SL}, 0")
    a.label(name + "_norm")
    for j in range(2): a(f"v_rcp_f32 v{6+2*j}, v{L_(j)}")
    a("v_mov_b32 v10, 0")
    for j in range(2): a(f"v_mov_b32 v{7+2*j}, v{6+2*j}")
    for j in range(2):
        for kp in range(4):
            ra, rb = O_(2*kp, j), O_(2*kp + 1, j)
            t = 240 + 4*((j*4 + kp) % 4)
            for r in (ra, ra + 2, rb, rb + 2): a(f"v_pk_mul_f32 v[{r}:{r+1}], v[{r}:{r+1}], v[{6+2*j}:{7+2*j}]")
            a(f"v_cvt_pk_bf16_f32 v{ra}, v{ra}, v{ra+1}")
            a(f"v_cvt_pk_bf16_f32 v{ra+1}, v{ra+2}, v{ra+3}")
            a(f"v_cvt_pk_bf16_f32 v{ra+2}, v{rb}, v{rb+1}")
            a(f"v_cvt_pk_bf16_f32 v{ra+3}, v{rb+2}, v{rb+3}")
            a(f"v_pk_maximum3_f16 v10, v10, v{ra}, v{ra+1}")
            a(f"v_pk_maximum3_f16 v10, v10, v{ra+2}, v{ra+3}")
    a(f"s_cmp_lg_u32 s{S_SL}, 0")
    a(f"s_cbranch_scc1 {name}_store")
    a("v_lshrrev_b32 v11, 16, v10")
    a(f"v_min_f32 v12, v{L_(0)}, v{L_(1)}")
    a(f"v_max_f32 v13, v{L_(0)}, v{L_(1)}")
    a("v_cmp_u_f16 vcc, v10, v11")
    a(f"v_cmp_u_f32 s[{S_TA}:{S_TA+1}], v{L_(0)}, v{L_(1)}")
    a(f"s_or_b64 s[{S_TA}:{S_TA+1}], s[{S_TA}:{S_TA+1}], vcc")
    a(f"v_cmp_gt_f32 vcc, {f2h(2.0**-64)}, v12")
    a(f"s_or_b64 s[{S_TA}:{S_TA+1}], s[{S_TA}:{S_TA+1}], vcc")
    a(f"v_cmp_lt_f32 vcc, {f2h(2.0**24)}, v13")
    a(f"s_or_b64 s[{S_TA}:{S_TA+1}], s[{S_TA}:{S_TA+1}], vcc")
    a(f"s_cbranch_scc1 {name}_slow")
    a.label(name + "_store")
    for j in range(2):
        for kp in range(4):
            ra = O_(2*kp, j)
            a(f"buffer_store_dwordx4 v[{ra}:{ra+3}], v{V_L16}, s[{SRD_WS}:{SRD_WS+3}], s{S_CTX+j} offen offset:{kp*1024}{sc}")

def slow_path(a, name):
    a.label(name + "_slow")
    SO, SN = S_SL + 1, S_SL + 2
    a(f"s_mov_b32 s{S_SL}, 1")
    a(f"s_lshl_b32 s{SO}, s{S_H}, 20")
    if WS_KV: a(f"s_add_u32 s{SO}, s{SO}, {WS_KV}")
    a(f"s_lshl_b32 s{SN}, s{S_QB}, 2")
    a(f"s_add_u32 s{SN}, s{SN}, 4")
    a(f"s_lshl_b32 s{S_TA}, s{S_QB}, 7")
    a(f"v_cvt_f32_u32 v6, s{S_TA}")
    a(f"v_mul_f32 v6, {f2h(BIG)}, v6")
    for j in range(2):
        a(f"v_add_f32 v{240+j}, v{V_TB+j}, v6")
        a(f"v_mov_b32 v{242+j}, {f2h(-2.0**126)}")
    for r in range(16, 88): a(f"v_mov_b32 v{r}, 0")
    a.label(name + "_slow_loop")
    a(f"s_add_u32 s{S_TA}, s{SO}, 4096")
    a(f"s_add_u32 s{S_TA+1}, s{SO}, 16384")
    a(f"s_add_u32 s{S_TA+2}, s{SO}, 20480")
    for i in range(8):
        a(f"buffer_load_dwordx4 {R(SLOWK+4*i,4)}, v{V_L16}, s[{SRD_WS}:{SRD_WS+3}], s{SO if i < 4 else S_TA} offen offset:{(i&3)*1024}")
    for i in range(8):
        a(f"buffer_load_dwordx4 {R(SLOWV+4*i,4)}, v{V_L16}, s[{SRD_WS}:{SRD_WS+3}], s{S_TA+1 if i < 4 else S_TA+2} offen offset:{(i&3)*1024}")
    a("s_waitcnt vmcnt(0)")
    for j in range(2):
        for kt in range(2):
            for ks in range(4): a(mfma(S_(0, kt, j), SLOWK + (kt*4 + ks)*4, Q_(j, ks), "0" if ks == 0 else None))
    a("s_nop 7")
    for j in range(2):
        for kt in range(2):
            for r in range(4):
                a(f"v_subrev_f32 v6, {f2h((16*kt+r)*BIG)}, v{240+j}")
                a(f"v_min_f32 v6, 0, v6")
                a(f"v_add_f32 v{S_(0,kt,j)+r}, v{S_(0,kt,j)+r}, v6")
        a(f"v_subrev_f32 v{240+j}, {f2h(32*BIG)}, v{240+j}")
    for j in range(2): row_max(a, 6 + j, [S_(0, kt, j) + r for kt in range(2) for r in range(4)], 8 + j)
    cross_max(a, [(6, 8), (7, 9)])
    for j in range(2):
        a(f"v_max_f32 v{6+j}, v{6+j}, v{242+j}")
        a(f"v_sub_f32 v{8+j}, v{242+j}, v{6+j}")
        a(f"v_mov_b32 v{242+j}, v{6+j}")
        a(f"v_exp_f32 v{8+j}, v{8+j}")
        for kt in range(2):
            for r in range(4): a(f"v_sub_f32 v{S_(0,kt,j)+r}, v{S_(0,kt,j)+r}, v{6+j}")
        a(exps(0, j)); a("s_nop 0"); a(cvts(0, j))
        for dt in range(8):
            for r in range(4): a(f"v_mul_f32 v{O_(dt,j)+r}, v{O_(dt,j)+r}, v{8+j}")
        for r in range(4): a(f"v_mul_f32 v{L_(j)+r}, v{L_(j)+r}, v{8+j}")
    a("s_nop 1")
    for j in range(2):
        a(mfma(L_(j), ONES, P_(0, j)))
        for dt in range(8): a(mfma(O_(dt, j), SLOWV + 4*dt, P_(0, j)))
    a(f"s_bitcmp1_b32 s{SO}, 13")
    a(f"s_cselect_b32 s{S_TA}, 24576, 8192") if False else None
    a(f"s_mov_b32 s{S_TA}, 8192")
    a(f"s_cmov_b32 s{S_TA}, 24576")
    a(f"s_add_u32 s{SO}, s{SO}, s{S_TA}")
    a(f"s_sub_u32 s{SN}, s{SN}, 1")
    a(f"s_cmp_lg_u32 s{SN}, 0")
    a("s_nop 7")
    a(f"s_cbranch_scc1 {name}_slow_loop")
    a(f"s_branch {name}_norm")

def gen_att(a, name, stamps, sc="", after_store=None):
    L = lambda x: resolve(x)[0]
    n0 = len(a.lines)
    a("s_waitcnt vmcnt(16)"); a("s_barrier")
    for i in range(8): a(kread(0, i).text)
    a(k_pre()); a("s_nop 0")
    for j in range(4): a(dma("K", j).text)
    a(k_post())
    first = a.lines[n0:]
    head = L(head_ops())
    loop_end = [f"s_sub_u32 s{S_PER}, s{S_PER}, 1", f"s_cmp_lg_u32 s{S_PER}, 0"]
    st = [full_step(p) for p in range(4)]
    place_scalars(st[3], loop_end, 16 + 12, 16 + 16)
    for p in range(4): assert st[p].overflow() == 0, (p, st[p].overflow())
    ops = [g.ops() for g in st]
    tr = L(ops[1] + ops[2] + ops[3] + ops[0])
    n1, n2, n3 = len(ops[1]), len(ops[2]), len(ops[3])
    s1, s2, s3, s0 = tr[:n1], tr[n1:n1+n2], tr[n1+n2:n1+n2+n3], tr[n1+n2+n3:]
    d0 = full_step(0, lambda j, kt: CM(0, kt) if j == 0 else NM(1)).ops()
    d1 = full_step(1, lambda j, kt: CM(0, 2 + kt) if j == 0 else NM(1)).ops()
    dtail = diag_tail()
    print("diag tail overflow", dtail.overflow())
    d0l = L(ops[3] + d0)[n3:]
    d1l = L(d1 + dtail.ops())
    a.label(name + "_head")
    a(head)
    a(f"s_cmp_eq_u32 s{S_QB}, 0")
    a(f"s_cbranch_scc1 {name}_B")
    a(f"s_branch {name}_A")
    a(".p2align 6")
    a.label(name + "_loop")
    a(s0)
    a.label(name + "_A")
    a(s1); a(s2); a(s3)
    a(f"s_cbranch_scc1 {name}_loop")
    a(d0l)
    a.label(name + "_B")
    a(d1l)
    n0 = len(a.lines)
    epilogue(a, name, sc)
    if after_store: after_store(a)
    a(f"s_cmp_lg_u32 s{S_BLK}, 0")
    a(f"s_cbranch_scc1 {name}_done")
    a(f"s_mov_b32 s{S_BLK}, 1")
    a(f"s_sub_u32 s{S_QB}, 15, s{S_I}")
    for r in range(0, 32, 2): a(f"v_mov_b64 v[{176+r}:{177+r}], v[{QNEXT+r}:{QNEXT+r+1}]")
    epi = a.lines[n0:]
    stamps.stamp(a, "blk1")
    a(f"s_branch {name}_head")
    n0 = len(a.lines)
    slow_path(a, name)
    slow = a.lines[n0:]
    a.label(name + "_done")
    lint(first + head + s1 + s2 + s3 + s0 + s1 + s2 + s3 + d0l + d1l + epi + head + d1l + epi, name + " main")
    lint(d1l + epi[:-30] + slow + slow[90:] + epi[11:], name + " slow")
```

```python
from asmgen import *
from gsched import *

MB = 1 << 20
WS_KV = 0
WS_CTX = 32 * MB
WS_H = 48 * MB
WS_WT = 56 * MB
WS_G = 64 * MB
WS_PART = 65 * MB
WS_FLAG = 80 * MB
WS_STAMP = 250 * MB
WS_BYTES = 268435456
SZ_X = 2048*640*2; SZ_C = 2048*512*2; SZ_WQ = 640*4096*2; SZ_WU = 512*4096*2; SZ_WO = 4096*640*2
SZ_W1 = 640*1728*2; SZ_W2 = 1728*640*2; SZ_OUT = 2048*640*2

S_WG = 2
S_WAVE = 3
S_X = 4
S_HH = 5
S_I = 6
S_H = 7
def PTR(k): return 64 + 2*k
P_X, P_C, P_WQ, P_WUK, P_WUV, P_WO, P_BX, P_W1, P_B1, P_W2, P_B2, P_GW, P_OUT, P_DBG, P_WS = [PTR(k) for k in range(15)]
SRD_WS = 8
SRD_A = 12
SRD_B = 16
SRD_C = 20
SRD_D = 24
SRD_E = 28

def mfma(d, a_, b_, c=None):
    cs = R(d, 4) if c is None else (c if isinstance(c, str) else R(c, 4))
    return f"v_mfma_f32_16x16x32_bf16 {R(d,4)}, {R(a_,4)}, {R(b_,4)}, {cs}"

def entry(a, name):
    kernel_begin(a, name)
    a("s_cmp_ge_u32 s2, 256")
    a(f"s_cbranch_scc1 {name}_end")
    a("s_load_dwordx16 s[64:79], s[0:1], 0")
    a("s_load_dwordx8 s[80:87], s[0:1], 64")
    a("s_load_dwordx4 s[88:91], s[0:1], 96")
    a("s_load_dwordx2 s[92:93], s[0:1], 112")
    a("v_lshrrev_b32 v1, 6, v0")
    a("v_and_b32 v0, 63, v0")
    a(f"v_readfirstlane_b32 s{S_WAVE}, v1")
    a(f"s_and_b32 s{S_X}, s2, 7")
    a(f"s_bfe_u32 s{S_HH}, s2, 0x20003")
    a(f"s_lshr_b32 s{S_I}, s2, 5")
    a(f"s_lshl_b32 s{S_H}, s{S_X}, 2")
    a(f"s_add_u32 s{S_H}, s{S_H}, s{S_HH}")
    a("s_waitcnt lgkmcnt(0)")
    srd(a, SRD_WS, P_WS, WS_BYTES)

def srd_off(a, d, base, off, nbytes):
    a(f"s_add_u32 s{d}, s{base}, {off}")
    a(f"s_addc_u32 s{d+1}, s{base+1}, 0")
    a(f"s_and_b32 s{d+1}, s{d+1}, 0xffff")
    a(f"s_mov_b32 s{d+2}, {nbytes}")
    a(f"s_mov_b32 s{d+3}, 0x20000")

class Stamps:
    def __init__(self, enabled, areg=255):
        self.enabled = enabled; self.n = 0; self.names = []; self.areg = areg
    def stamp(self, a, name):
        if not self.enabled: return
        a("s_waitcnt lgkmcnt(0)")
        a("s_memtime s[94:95]")
        a("s_memrealtime s[96:97]")
        a("s_waitcnt lgkmcnt(0)")
        a(f"v_accvgpr_read_b32 v15, a{self.areg}")
        a(f"v_writelane_b32 v15, s94, {2*self.n}")
        a(f"v_writelane_b32 v15, s96, {2*self.n+1}")
        a(f"v_accvgpr_write_b32 a{self.areg}, v15")
        self.names.append(name); self.n += 1
    def stamp_op(self, name):
        t = Asm(); self.stamp(t, name)
        return Op("\n".join(x.strip() for x in t.lines), "salu") if self.enabled else None
    def dump(self, a, kidx=0):
        if not self.enabled: return
        a(f"v_accvgpr_read_b32 v15, a{self.areg}")
        a("v_mbcnt_lo_u32_b32 v14, -1, 0")
        a("v_mbcnt_hi_u32_b32 v14, -1, v14")
        a("v_lshlrev_b32 v14, 2, v14")
        a(f"s_lshl_b32 s94, s2, 2")
        a(f"s_add_u32 s94, s94, s{S_WAVE}")
        a("s_lshl_b32 s94, s94, 8")
        a(f"s_add_u32 s94, s94, {WS_STAMP + kidx*(1<<18)}")
        a(f"buffer_store_dword v15, v14, s[{SRD_WS}:{SRD_WS+3}], s94 offen")
        a("s_waitcnt vmcnt(0)")
```

```python
from gen_qf import *

NST = 23
F_ST = 7
V_RA = 2
V_G = 6
def facc(part, nt, j): return 32 + part*80 + (nt*2 + j)*4
AF_DEPTH = 6
def AF(s, j, ks): return 256 + (s % AF_DEPTH)*16 + (j*2 + ks)*4
def WF(gi, ks): return 256 + 96 + (gi % 5)*8 + ks*4
S_KQ = 32; S_FQB = 33; S_WM = 34; S_WO_ = 35; S_WF_ = 36; S_AH = 37; S_AC = 39; S_AH6 = 41; S_PART = 43; S_FT = 44

def fin_setup(a):
    srd_off(a, SRD_A, P_WS, WS_WT, 182*40*1024)
    a(f"v_lshlrev_b32 v{V_L16}, 4, v0")
    a(f"v_mov_b32 v{V_RA}, v{V_L16}")
    a(f"v_add_u32 v{V_RA+1}, 61440, v{V_L16}")
    a(f"v_add_u32 v{V_RA+2}, 122880, v{V_L16}")
    t = S_FT
    a(f"s_lshr_b32 s{S_KQ}, s{S_X}, 1")
    a(f"s_sub_u32 s{t}, 15, s{S_I}")
    a(f"s_bitcmp1_b32 s{S_X}, 0")
    a(f"s_cselect_b32 s{S_FQB}, s{t}, s{S_I}")
    a(f"s_mul_i32 s{S_WM}, s{S_WAVE}, 5120")
    a(f"s_lshr_b32 s{t}, s{S_WAVE}, 1")
    a(f"s_mul_i32 s{t}, s{t}, 40960")
    a(f"s_and_b32 s{t+1}, s{S_WAVE}, 1")
    a(f"s_mul_i32 s{t+1}, s{t+1}, 5120")
    a(f"s_add_u32 s{t}, s{t}, s{t+1}")
    a(f"s_mul_i32 s{t+1}, s{S_HH}, 10240")
    a(f"s_add_u32 s{t}, s{t}, s{t+1}")
    a(f"s_mul_i32 s{t+1}, s{S_KQ}, {32*40960}")
    a(f"s_add_u32 s{S_WO_}, s{t}, s{t+1}")
    a(f"s_mul_i32 s{t+1}, s{S_KQ}, {14*40960}")
    a(f"s_add_u32 s{S_WF_}, s{t}, s{t+1}")
    a(f"s_add_u32 s{S_WF_}, s{S_WF_}, {128*40960}")
    a(f"s_lshl_b32 s{t}, s{S_FQB}, 2")
    a(f"s_add_u32 s{t}, s{t}, s{S_WAVE}")
    a(f"s_lshl_b32 s{t}, s{t}, 1")
    a(f"s_mul_i32 s{t+1}, s{t}, {54*1024}")
    a(f"s_mul_i32 s{t+2}, s{S_KQ}, {14*1024}")
    a(f"s_add_u32 s{t+1}, s{t+1}, s{t+2}")
    a(f"s_add_u32 s{S_AH}, s{t+1}, {WS_H}")
    a(f"s_add_u32 s{S_AH+1}, s{S_AH}, {54*1024}")
    a(f"s_cmp_eq_u32 s{S_KQ}, 3")
    a(f"s_cselect_b32 s{S_AH6}, {OOB}, s{S_AH}")
    a(f"s_cselect_b32 s{S_AH6+1}, {OOB}, s{S_AH+1}")
    a(f"s_lshl_b32 s{t+1}, s{t}, 17")
    a(f"s_lshl_b32 s{t+2}, s{S_KQ}, 15")
    a(f"s_add_u32 s{t+1}, s{t+1}, s{t+2}")
    a(f"s_add_u32 s{S_AC}, s{t+1}, {WS_CTX}")
    a(f"s_add_u32 s{S_AC+1}, s{S_AC}, {128*1024}")
    a(f"s_lshl_b32 s{t}, s{t}, 6")
    a(f"s_add_u32 s{t}, s{t}, {WS_G}")
    a("v_and_b32 v5, 15, v0")
    a("v_lshlrev_b32 v5, 2, v5")
    a(f"v_add_u32 v5, s{t}, v5")
    a(f"s_lshl_b32 s{t}, s{S_FQB}, 2")
    a(f"s_add_u32 s{t}, s{t}, s{S_HH}")
    a(f"s_lshl_b32 s{t}, s{t}, 2")
    a(f"s_add_u32 s{t}, s{t}, s{S_WAVE}")
    a(f"s_lshl_b32 s{t}, s{t}, 2")
    a(f"s_add_u32 s{t}, s{t}, s{S_KQ}")
    a(f"s_mul_i32 s{t}, s{t}, 10240")
    a(f"s_add_u32 s{S_PART}, s{t}, {WS_PART}")

class Fin:
    def __init__(self):
        self.G = Gaps(); self.t = 0
    def stmp(self):
        self.t = (self.t + 1) % 4
        return S_FT + self.t
    def w_dma(self, s):
        base, k = (S_WF_, s) if s < F_ST else (S_WO_, s - F_ST)
        out = []
        for f in range(5):
            if f in (0, 4):
                t = S_FT
                pre = [f"s_add_u32 m0, s{S_WM}, {(s % 8)*20480 + f*1024}", f"s_add_u32 s{t}, s{base}, {k*81920 + f*1024}"]
            else: pre = []
            out.append((pre, Op(f"buffer_load_dwordx4 v{V_L16}, s[{SRD_A}:{SRD_A+3}], s{t} offen offset:{(f & 3)*1024} lds", tag=f"W{s}")))
        return out
    def a_loads(self, s, sc=""):
        base, k = ((S_AH6 if s == F_ST - 1 else S_AH), s) if s < F_ST else (S_AC, s - F_ST)
        out = []
        for j in range(2):
            t = S_FT + 1
            for ks in range(2):
                pre = [None, f"s_add_u32 s{t}, s{base+j}, {k*2048}"] if ks == 0 else []
                out.append((pre, Op(f"buffer_load_dwordx4 {R(AF(s,j,ks),4)}, v{V_L16}, s[{SRD_WS}:{SRD_WS+3}], s{t} offen offset:{ks*1024}{sc}", tag=f"A{s}")))
        return out
    def w_reads(self, gi):
        s, nt = divmod(gi, 10)
        sl = s % 8
        return [Op(f"ds_read_b128 {R(WF(gi,ks),4)}, v{V_RA + sl//3} offset:{(sl % 3)*20480 + ks*10240 + nt*1024}", tag=f"t{gi}") for ks in range(2)]
    def build(self):
        G = self.G
        for s in range(NST):
            part = 0 if s < F_ST else 1
            first = s in (0, F_ST)
            for nt in range(10):
                for j in range(2):
                    for ks in range(2):
                        G.mfma(mfma(facc(part, nt, j), WF(s*10 + nt, ks), AF(s, j, ks), "0" if (first and ks == 0) else None))
        def pre(l):
            for p, o in l:
                for x in p:
                    if x: G.put(-1, x)
                G.put(-1, o)
        pre(self.w_dma(0)); pre(self.a_loads(0)); pre(self.w_dma(1)); pre(self.a_loads(1))
        for s in range(2, 5): pre(self.w_dma(s)); pre(self.a_loads(s))
        self.pre_hook = len(G.pre)
        G.put(-1, W(v=["W1", "A0"])); G.put(-1, "s_barrier")
        for gi in range(4):
            for o in self.w_reads(gi): G.put(-1, o)
        G.put(-1, W(l=["t0"]))
        ng = NST*10
        for gi in range(ng):
            if gi + 4 < ng:
                for o in self.w_reads(gi + 4): G.put(gi*4, o)
            if gi + 1 < ng:
                v = None
                if (gi + 1) % 10 == 0: v = [f"A{(gi+1)//10}"]
                nb = gi + 5
                if nb < ng and nb % 20 == 0:
                    sn = nb // 10
                    v = (v or []) + [f"W{min(sn + 1, NST - 1)}"]
                    G.put(gi*4 + 3, W(v=v, l=[f"t{gi+1}"])); G.put(gi*4 + 3, "s_barrier")
                else:
                    G.put(gi*4 + 3, W(v=v, l=[f"t{gi+1}"]))
        jobs = []
        for s in range(NST):
            lo = s*40 - 16 if s > 0 else 0
            if s + 5 < NST:
                for k_, x in enumerate(self.w_dma(s + 5)): jobs.append((lo + 1 + (k_*8 if s > 0 else k_*4), x))
        ajobs = []
        for s in range(NST):
            if s + 5 < NST:
                for k_, x in enumerate(self.a_loads(s + 5)): ajobs.append((s*40 + 5 + k_*8, x))
        alljobs = sorted(jobs + ajobs, key=lambda z: z[0])
        prev = -1
        for tgt, (p, ld) in alljobs:
            g = max(tgt, prev + 1)
            need_m0 = bool(p) and p[0] is not None
            while G.g[g] or (need_m0 and (G.has_scalar(g - 1) or g - 1 <= prev)): g += 1
            if need_m0: G.put(g - 1, p[0])
            if p: G.put(g, p[1])
            G.put(g, ld); prev = g
        return self

def gate_load_ops():
    return [Op(f"buffer_load_dword v{V_G+j}, v5, s[{SRD_WS}:{SRD_WS+3}], 0 offen offset:{64*j}", tag="g") for j in range(2)]

def fin_combine(a):
    for j in range(2):
        a(f"v_mov_b32 v{16+2*j}, v{V_G+j}"); a(f"v_mov_b32 v{17+2*j}, v{V_G+j}")
        a(f"v_sub_f32 v{20+2*j}, 1.0, v{V_G+j}"); a(f"v_sub_f32 v{21+2*j}, 1.0, v{V_G+j}")
    for nt in range(10):
        for j in range(2):
            for hf in (0, 2):
                rb, ra = facc(0, nt, j) + hf, facc(1, nt, j) + hf
                a(f"v_pk_mul_f32 v[{rb}:{rb+1}], v[{rb}:{rb+1}], v[{20+2*j}:{21+2*j}]")
    for nt in range(10):
        for j in range(2):
            for hf in (0, 2):
                rb, ra = facc(0, nt, j) + hf, facc(1, nt, j) + hf
                a(f"v_pk_fma_f32 v[{ra}:{ra+1}], v[{ra}:{ra+1}], v[{16+2*j}:{17+2*j}], v[{rb}:{rb+1}]")

def fin_store_partials(a, sc=""):
    a(f"s_add_u32 s{S_FT}, s{S_PART}, 4096")
    a(f"s_add_u32 s{S_FT+1}, s{S_PART}, 8192")
    for j in range(2):
        for p in range(5):
            ra, rb = facc(1, 2*p, j), facc(1, 2*p + 1, j)
            a(f"v_cvt_pk_bf16_f32 v{ra}, v{ra}, v{ra+1}")
            a(f"v_cvt_pk_bf16_f32 v{ra+1}, v{ra+2}, v{ra+3}")
            a(f"v_cvt_pk_bf16_f32 v{ra+2}, v{rb}, v{rb+1}")
            a(f"v_cvt_pk_bf16_f32 v{ra+3}, v{rb+2}, v{rb+3}")
            f = j*5 + p
            a(f"buffer_store_dwordx4 v[{ra}:{ra+3}], v{V_L16}, s[{SRD_WS}:{SRD_WS+3}], s{(S_PART, S_FT, S_FT+1)[f >> 2]} offen offset:{(f & 3)*1024}{sc}")

def gen_fin_kernel(name, stamps):
    a = Asm()
    entry(a, name)
    stamps.stamp(a, "start")
    fin_setup(a)
    F = Fin().build()
    F.G.pre[0:0] = gate_load_ops()
    if stamps.enabled:
        F.G.put(-1, stamps.stamp_op("mfma0"))
        F.G.put(F_ST*40 - 1, stamps.stamp_op("ffn2"))
    print(name, "overflow", F.G.overflow())
    a(resolve(F.G.ops())[0])
    stamps.stamp(a, "mm")
    fin_combine(a)
    fin_store_partials(a)
    a("s_waitcnt vmcnt(0)")
    stamps.stamp(a, "end")
    stamps.dump(a, 2)
    a.label(name + "_end")
    a("s_endpgm")
    lint(a.lines, name)
    return a

def gen_red_kernel(name, stamps):
    a = Asm()
    entry(a, name)
    stamps.stamp(a, "start")
    srd(a, SRD_A, P_OUT, SZ_OUT); srd(a, SRD_B, P_B2, 1280)
    a(f"v_lshlrev_b32 v{V_L16}, 4, v0")
    a("v_and_b32 v2, 15, v0")
    a("v_lshrrev_b32 v3, 4, v0")
    a("v_lshlrev_b32 v3, 4, v3")
    a("v_mul_u32_u24 v4, 1280, v2")
    a("v_add_u32 v4, v4, v3")
    a("v_lshlrev_b32 v2, 2, v2")
    a("s_mul_i32 s32, s2, 40960")
    a(f"s_add_u32 s32, s32, {WS_PART}")
    a("s_lshr_b32 s33, s2, 4")
    a("s_and_b32 s34, s2, 3")
    a("s_bfe_u32 s35, s2, 0x20002")
    a("s_lshl_b32 s33, s33, 2")
    a("s_add_u32 s33, s33, s34")
    a("s_lshl_b32 s33, s33, 1")
    a("s_mul_i32 s35, s35, 320")
    for it in range(3):
        b = 40 + it*8
        a(f"s_add_u32 s{b}, s{S_WAVE}, {4*it}")
        a(f"s_cmp_ge_u32 s{b}, 5")
        a(f"s_cselect_b32 s{b+1}, 1, 0")
        a(f"s_cselect_b32 s{b+2}, 5, 0")
        a(f"s_sub_u32 s{b+2}, s{b}, s{b+2}")
        a(f"s_add_u32 s{b+1}, s{b+1}, s33")
        a(f"s_lshl_b32 s{b+2}, s{b+2}, 6")
        a(f"s_add_u32 s{b+2}, s{b+2}, s35")
        a(f"s_mul_i32 s{b+3}, s{b+1}, {16*1280}")
        a(f"s_add_u32 s{b+3}, s{b+3}, s{b+2}")
        a(f"s_lshl_b32 s{b+1}, s{b+1}, 6")
        a(f"s_add_u32 s{b+1}, s{b+1}, {WS_G}")
        a(f"s_cmp_ge_u32 s{b}, 10")
        a(f"s_cselect_b32 s{b+3}, {OOB}, s{b+3}")
        a(f"s_lshl_b32 s{b}, s{b}, 10")
        a(f"s_add_u32 s{b}, s{b}, s32")
        r = 16 + it*32
        for src in range(4):
            a(f"s_add_u32 s{b+4}, s{b}, {src*10240}")
            a(f"buffer_load_dwordx4 v[{r+4*src}:{r+4*src+3}], v{V_L16}, s[{SRD_WS}:{SRD_WS+3}], s{b+4} offen")
        a(f"buffer_load_dwordx4 v[{r+16}:{r+19}], v3, s[{SRD_B}:{SRD_B+3}], s{b+2} offen")
        a(f"buffer_load_dword v{r+20}, v2, s[{SRD_WS}:{SRD_WS+3}], s{b+1} offen")
    for it in range(3):
        b = 40 + it*8; r = 16 + it*32
        a(f"s_waitcnt vmcnt({(2-it)*6 + it})")
        a(f"v_sub_f32 v{r+20}, 1.0, v{r+20}")
        for d in range(4):
            lo, hi = r + 22 + 2*d, r + 23 + 2*d
            a(f"v_lshlrev_b32 v{lo}, 16, v{r+16+d}"); a(f"v_and_b32 v{hi}, 0xffff0000, v{r+16+d}")
            a(f"v_mul_f32 v{lo}, v{lo}, v{r+20}"); a(f"v_mul_f32 v{hi}, v{hi}, v{r+20}")
            for src in range(4):
                a(f"v_lshlrev_b32 v5, 16, v{r+4*src+d}"); a(f"v_and_b32 v6, 0xffff0000, v{r+4*src+d}")
                a(f"v_add_f32 v{lo}, v{lo}, v5"); a(f"v_add_f32 v{hi}, v{hi}, v6")
        for d in range(4): a(f"v_cvt_pk_bf16_f32 v{r+d}, v{r+22+2*d}, v{r+23+2*d}")
        a(f"buffer_store_dwordx4 v[{r}:{r+3}], v4, s[{SRD_A}:{SRD_A+3}], s{b+3} offen")
    a("s_waitcnt vmcnt(0)")
    stamps.stamp(a, "end")
    stamps.dump(a, 3)
    a.label(name + "_end")
    a("s_endpgm")
    lint(a.lines, name)
    return a
```

```python
from gen_common import *

ACT_BASE = 0
W_BASE = 65536
V_L16 = 1
V_AC = 2
V_AX = 4
V_W = 6
V_W1 = 7
V_AR = 8
V_T = 10
V_TMP = 16
A_ACT = 256 + 32
A_WF = 256 + 96
S_ACTB = 32
S_WB = 33
S_ROWC = 34
S_ROWX = 38
S_COL = 42
S_COL1 = 43
S_KV = 44
S_T0 = 52

def acc_qf(G, u):
    if G < 4: return 96 + (G*4 + u)*4
    dt = G - 4
    return (176 if dt % 2 == 0 else 32) + (u*4 + dt//2)*4
def acc_kv(G, u):
    if G < 12: return acc_qf(G, u)
    if G == 12: return 160 + u*4
    if G == 13: return 240 + u*4
    return 256 + (G - 14)*16 + u*4

def proj_setup(a, kv=True, qf=True):
    a(f"v_lshlrev_b32 v{V_L16}, 4, v0")
    a("v_lshrrev_b32 v16, 3, v0")
    a("v_and_b32 v17, 7, v0")
    a("v_lshrrev_b32 v18, 4, v0")
    a("v_xor_b32 v19, v17, v18")
    a("v_xor_b32 v20, 4, v19")
    a("v_lshlrev_b32 v19, 4, v19")
    a("v_lshlrev_b32 v20, 4, v20")
    if kv:
        a(f"v_lshl_add_u32 v{V_AC}, v16, 10, v19")
        a(f"v_lshl_add_u32 v{V_AC+1}, v16, 10, v20")
        a(f"v_add_u32 v{V_AC+1}, {8*1024}, v{V_AC+1}")
    if qf:
        a("v_mul_u32_u24 v21, 1280, v16")
        a(f"v_add_u32 v{V_AX}, v21, v19")
        a(f"v_add_u32 v{V_AX+1}, v21, v20")
        a(f"v_add_u32 v{V_AX+1}, {8*1280}, v{V_AX+1}")
    a("v_and_b32 v21, 3, v16")
    a("v_lshrrev_b32 v22, 2, v16")
    a("v_lshl_add_u32 v21, v22, 3, v21")
    a(f"s_lshl_b32 s{S_T0}, s{S_WAVE}, 4")
    a(f"v_add_u32 v21, s{S_T0}, v21")
    a("v_lshlrev_b32 v22, 1, v18")
    a("v_xor_b32 v22, v17, v22")
    a("v_lshlrev_b32 v22, 4, v22")
    a(f"v_lshl_add_u32 v{V_W}, v21, 13, v22")
    if qf:
        a("v_mul_u32_u24 v21, 3456, v21")
        a(f"v_add_u32 v{V_W1}, v21, v22")
    a(f"s_lshl_b32 s{S_ACTB}, s{S_WAVE}, 13")
    a("v_and_b32 v21, 15, v0")
    a("v_lshrrev_b32 v22, 1, v21")
    a("v_xor_b32 v22, v22, v18")
    a("v_lshlrev_b32 v22, 4, v22")
    a("v_lshl_add_u32 v21, v21, 7, v22")
    a(f"v_add_u32 v{V_AR}, s{S_ACTB}, v21")
    a(f"v_xor_b32 v{V_AR+1}, 64, v{V_AR}")
    a("v_bfe_u32 v21, v0, 2, 3")
    a("v_lshrrev_b32 v22, 5, v0")
    a("v_lshlrev_b32 v22, 10, v22")
    a("v_lshl_add_u32 v22, v21, 7, v22")
    a("v_and_b32 v23, 1, v0")
    a("v_lshl_add_u32 v22, v23, 3, v22")
    a(f"v_add_u32 v22, {W_BASE}, v22")
    a("v_and_b32 v21, 6, v21")
    a("v_bfe_u32 v23, v0, 1, 1")
    a("v_or_b32 v21, v21, v23")
    for n in range(4):
        a(f"v_xor_b32 v23, {2*n}, v21")
        a(f"v_lshl_add_u32 v{V_T+n}, v23, 4, v22")
    a(f"s_lshr_b32 s{S_T0}, s{S_WAVE}, 1")
    a(f"s_lshl_b32 s{S_T0}, s{S_T0}, 12")
    a(f"s_and_b32 s{S_T0+1}, s{S_WAVE}, 1")
    a(f"s_lshl_b32 s{S_T0+1}, s{S_T0+1}, 10")
    a(f"s_add_u32 s{S_WB}, s{S_T0}, s{S_T0+1}")
    a(f"s_add_u32 s{S_WB}, s{S_WB}, {W_BASE}")
    a(f"s_lshl_b32 s{S_COL}, s{S_H}, 8")
    if kv:
        a(f"s_lshl_b32 s{S_T0}, s{S_I}, 2")
        a(f"s_add_u32 s{S_T0}, s{S_T0}, s{S_WAVE}")
        a(f"s_lshl_b32 s{S_ROWC}, s{S_T0}, 16")
        for u in range(1, 4): a(f"s_add_u32 s{S_ROWC+u}, s{S_ROWC}, {u*16*1024}")
        a(f"s_lshl_b32 s{S_T0+1}, s{S_H}, 5")
        a(f"s_add_u32 s{S_T0}, s{S_T0}, s{S_T0+1}")
        a(f"s_lshl_b32 s{S_KV}, s{S_T0}, 15")
        if WS_KV: a(f"s_add_u32 s{S_KV}, s{S_KV}, {WS_KV}")
        for j in range(1, 8): a(f"s_add_u32 s{S_KV+j}, s{S_KV}, {j*4096}")

class Stage:
    def __init__(self, phase, k, NT, acc, act, wsrc, swap, first, last):
        self.phase = phase; self.k = k; self.NT = NT; self.acc = acc
        self.act = act
        self.wsrc = wsrc
        self.swap = swap
        self.first = first; self.last = last
        self.cinit = None

def kv_stages(srd_c, srd_k, srd_v):
    ws = [(srd_k, V_W, S_COL, 0, 8192), (srd_k, V_W, S_COL, 128, 8192), (srd_v, V_W, S_COL, 0, 8192), (srd_v, V_W, S_COL, 128, 8192)]
    return [Stage("kv", k, 16, acc_kv, (srd_c, V_AC, S_ROWC), ws, lambda G: G >= 8, k == 0, k == 7) for k in range(8)]
def qf_stages(srd_x, srd_q, srd_1):
    ws = [(srd_1, V_W1, S_COL1, 0, 3456), (srd_q, V_W, S_COL, 0, 8192), (srd_q, V_W, S_COL, 128, 8192)]
    return [Stage("qf", k, 12, acc_qf, (srd_x, V_AX, S_ROWX), ws, lambda G: False, k == 0, k == 9) for k in range(10)]
def q_stages(srd_x, srd_q):
    ws = [(srd_q, V_W, S_COL, 0, 8192), (srd_q, V_W, S_COL, 128, 8192)]
    return [Stage("q", k, 8, lambda G, u: acc_qf(G + 4, u), (srd_x, V_AX, S_ROWX), ws, lambda G: False, k == 0, k == 9) for k in range(10)]

class Proj:
    def __init__(self, stages):
        self.st = stages
        self.G = Gaps()
        self.tmp = 0
        self.gap0 = []
    def stmp(self):
        self.tmp = (self.tmp + 1) % 4
        return S_T0 + self.tmp
    def w_dma(self, s):
        st = self.st[s]; out = []
        for cg, (srd_, vreg, scol, coff, stride) in enumerate(st.wsrc):
            for e in range(2):
                t = self.stmp()
                out.append((f"s_add_u32 m0, s{S_WB}, {(s%3)*32768 + cg*8192 + e*2048}",
                            f"s_add_u32 s{t}, s{scol}, {coff + (64*st.k + 4*e)*stride}",
                            Op(f"buffer_load_dwordx4 v{vreg}, s[{srd_}:{srd_+3}], s{t} offen lds", tag=f"W{s}")))
        return out
    def a_dma(self, s):
        st = self.st[s]; out = []
        srd_, vreg, srow = st.act
        for t8 in range(8):
            t = self.stmp()
            out.append((f"s_add_u32 m0, s{S_ACTB}, {(s%2)*32768 + t8*1024}",
                        f"s_add_u32 s{t}, s{srow + (t8>>1)}, {128*st.k}",
                        Op(f"buffer_load_dwordx4 v{vreg + (t8&1)}, s[{srd_}:{srd_+3}], s{t} offen lds", tag=f"A{s}")))
        return out
    def act_reg(self, s, u, ks): return A_ACT + (s % 2)*32 + (u*2 + ks)*4
    def a_read(self, s, u, ks):
        return Op(f"ds_read_b128 {R(self.act_reg(s,u,ks),4)}, v{V_AR+ks} offset:{(s%2)*32768 + 2048*u}", tag=f"ar{s}_{u}")
    def wf_reg(self, gi, ks): return A_WF + (gi % 4)*8 + ks*4
    def t_reads(self, s, Gi, gi):
        out = []
        for ks in range(2):
            for e in range(2):
                out.append(Op(f"ds_read_b64_tr_b16 {R(self.wf_reg(gi,ks)+2*e,2)}, v{V_T+(Gi&3)} offset:{(Gi>>2)*8192 + ks*4096 + e*2048}", tag=f"t{gi}"))
        return out
    def build(self, extra_group=None):
        G = self.G; S = self.st; n = len(S)
        groups = []
        for s, st in enumerate(S):
            for Gi in range(st.NT):
                gi = len(groups); groups.append((s, Gi)); self.gap0.append(len(G.m))
                for u in range(4):
                    for ks in range(2):
                        d = st.acc(Gi, u); w = self.wf_reg(gi, ks); x = self.act_reg(s, u, ks)
                        c = None
                        if st.first and ks == 0:
                            c = "0" if st.cinit is None else st.cinit(Gi, u)
                        G.mfma(mfma(d, x, w, c) if st.swap(Gi) else mfma(d, w, x, c))
                if extra_group and Gi == st.NT - 1: extra_group(self, s)
        self.groups = groups
        gstart = {}
        for gi, (s, Gi) in enumerate(groups): gstart[(s, Gi)] = gi
        ng = len(groups)
        g0 = lambda gi: self.gap0[gi]
        def emit_pre(trip):
            for m0, so, ld in trip:
                G.put(-1, m0); G.put(-1, so); G.put(-1, ld)
        emit_pre(self.w_dma(0)); emit_pre(self.a_dma(0)); emit_pre(self.w_dma(1)); emit_pre(self.a_dma(1))
        self.pre_hook = len(G.pre)
        G.put(-1, W(v=["W0", "A0"])); G.put(-1, "s_barrier")
        for u in range(4):
            for ks in range(2): G.put(-1, self.a_read(0, u, ks))
        for o in self.t_reads(0, 0, 0) + self.t_reads(0, 1, 1): G.put(-1, o)
        G.put(-1, W(l=["ar0_3"]))
        emit_pre(self.a_dma(2))
        G.put(-1, W(l=["t0"]))
        for gi, (s, Gi) in enumerate(groups):
            if gi + 2 < ng:
                s2, G2 = groups[gi + 2]
                for j, o in enumerate(self.t_reads(s2, G2, gi + 2)): G.put(g0(gi) + (j & 2), o)
            last_gap = (g0(gi + 1) if gi + 1 < ng else len(G.m)) - 1
            if gi + 3 < ng and groups[gi + 3][1] == 0:
                sn = groups[gi + 3][0]
                delta = 32768 if sn % 3 else -65536
                for n_ in range(4):
                    G.put(g0(gi) + (4, 4, 6, 6)[n_], f"v_add_u32 v{V_T+n_}, {delta & 0xffffffff}, v{V_T+n_}")
                G.put(last_gap, W(v=[f"W{sn}"], l="*")); G.put(last_gap, "s_barrier")
            elif gi + 1 < ng:
                G.put(last_gap, W(l=[f"t{gi+1}"]))
        jobs = []
        for s, st in enumerate(S):
            NT = st.NT
            base = gstart[(s, 0)]
            ga = 2 if NT >= 16 else 0
            per = 1 if NT >= 12 else 2
            if s + 1 < n:
                G.put(g0(base + ga) + 4, W(v=[f"A{s+1}"]))
                for u in range(4):
                    for ks in range(2): G.put(g0(base + ga + u // per) + 4 + 2*(u % per), self.a_read(s + 1, u, ks))
            lo = base - 2 if s > 0 else base
            ngap = (g0(gstart[(s + 1, 0)]) if s + 1 < n else len(G.m)) - g0(base) - (0 if s > 0 else 16)
            jl = []
            if s + 2 < n: jl += [(g0(lo), x) for x in self.w_dma(s + 2)]
            if s + 3 < n: jl += [(g0(base + ga + (t >> 1) // per + 3), x) for t, x in enumerate(self.a_dma(s + 3))]
            nfull = len(st.wsrc)*2 + 8
            for k_, (e, x) in enumerate(jl): jobs.append((e, g0(lo) + (k_ * ngap) // max(nfull, len(jl)), x))
        self.dma_gaps = []
        prev = -1
        for e, sp, (m0, so, ld) in jobs:
            g = max(e + 1, sp, prev + 2)
            while G.g[g] or G.has_scalar(g - 1): g += 1
            G.put(g - 1, m0); G.put(g, so); G.put(g, ld)
            self.dma_gaps.append((g, ld.tag)); prev = g
        return self
    def last_mfma(self, s, Gi, u):
        gi = [i for i, x in enumerate(self.groups) if x == (s, Gi)][0]
        return self.gap0[gi] + u*2 + 1

class Tail:
    def __init__(self, gaps):
        self.G = gaps; self.cur = 0; self.post = []
    def add(self, x, earliest=0):
        x = mk(x)
        if self.post: self.post.append(x); return
        lo = max(self.cur, earliest)
        if x.kind == "vm": lo = max(lo, self.cur + 1)
        g = self.G.fit(lo, x) if lo < len(self.G.m) else None
        if g is None:
            self.post.append(Op("s_nop 7")); self.post.append(x)
        else:
            self.cur = g + (1 if x.kind == "vm" else 0)

def pack_inplace(T, ra, rb, earliest, tmp=None):
    if ra >= 256:
        for j in range(4): T.add(f"v_accvgpr_read_b32 v{tmp+j}, {R(ra+j)}", earliest)
        for j in range(4): T.add(f"v_accvgpr_read_b32 v{tmp+4+j}, {R(rb+j)}", earliest)
        ra, rb = tmp, tmp + 4
    T.add(f"v_cvt_pk_bf16_f32 v{ra}, v{ra}, v{ra+1}", earliest)
    T.add(f"v_cvt_pk_bf16_f32 v{ra+1}, v{ra+2}, v{ra+3}")
    T.add(f"v_cvt_pk_bf16_f32 v{ra+2}, v{rb}, v{rb+1}")
    T.add(f"v_cvt_pk_bf16_f32 v{ra+3}, v{rb+2}, v{rb+3}")
    return ra

def kv_epilogue(P, s_last, sc=""):
    T = Tail(P.G); cnt = 0
    for Gi in range(16):
        if Gi < 8:
            if Gi % 2 == 0: continue
            kp = Gi // 2
            for u in range(4):
                r = pack_inplace(T, acc_kv(Gi - 1, u), acc_kv(Gi, u), P.last_mfma(s_last, Gi, u) + 8)
                T.add(Op(f"buffer_store_dwordx4 v[{r}:{r+3}], v{V_L16}, s[{SRD_WS}:{SRD_WS+3}], s{S_KV+u} offen offset:{kp*1024}{sc}", tag="KVst"))
        else:
            dt = Gi - 8
            for kb in range(2):
                cnt += 1
                r = pack_inplace(T, acc_kv(Gi, 2*kb), acc_kv(Gi, 2*kb + 1), P.last_mfma(s_last, Gi, 2*kb + 1) + 8, tmp=V_TMP + 8*(cnt % 2))
                T.add(Op(f"buffer_store_dwordx4 v[{r}:{r+3}], v{V_L16}, s[{SRD_WS}:{SRD_WS+3}], s{S_KV+4+kb*2+(dt>>2)} offen offset:{(dt&3)*1024}{sc}", tag="KVst"))
    return T

def gen_kv_kernel(name, stamps):
    a = Asm()
    entry(a, name)
    stamps.stamp(a, "start")
    srd(a, SRD_A, P_C, SZ_C); srd(a, SRD_B, P_WUK, SZ_WU); srd(a, SRD_C, P_WUV, SZ_WU)
    proj_setup(a, kv=True, qf=False)
    P = Proj(kv_stages(SRD_A, SRD_B, SRD_C)).build()
    T = kv_epilogue(P, 7)
    if stamps.enabled:
        P.G.put(-1, stamps.stamp_op("mfma0"))
        for s_ in (1, 2, 4, 7):
            P.G.put(P.gap0[16*s_] - 1, stamps.stamp_op(f"stage{s_}"))
    ops = P.G.ops() + T.post
    lines, _, _ = resolve(ops)
    print(name, "overflow cycles", P.G.overflow(), "post ops", len(T.post))
    a(lines)
    stamps.stamp(a, "issued")
    a("s_waitcnt vmcnt(0)")
    stamps.stamp(a, "end")
    stamps.dump(a, 0)
    a.label(name + "_end")
    a("s_endpgm")
    lint(a.lines, name)
    return a
```

```python
from gen_att import *
import math
QSCALE = math.log2(math.e) / math.sqrt(128.0)
GK0 = 2.0 * math.sqrt(2.0 / math.pi) * math.log2(math.e)
GK1 = GK0 * 0.044715
S_RT = 56
S_FB = 60
S_AUX = 61
A_GW = 256 + 128
ACC_G = 96

def qf_ids(a):
    t = S_T0
    a(f"s_lshl_b32 s{t}, s{S_I}, 3")
    a(f"s_add_u32 s{S_RT}, s{t}, s{S_WAVE}")
    a(f"s_sub_u32 s{S_RT+1}, s{t}, s{S_WAVE}")
    a(f"s_add_u32 s{S_RT+1}, s{S_RT+1}, 7")
    a(f"s_sub_u32 s{t}, 120, s{t}")
    a(f"s_add_u32 s{S_RT+2}, s{t}, s{S_WAVE}")
    a(f"s_sub_u32 s{S_RT+3}, s{t}, s{S_WAVE}")
    a(f"s_add_u32 s{S_RT+3}, s{S_RT+3}, 7")
    for u in range(4): a(f"s_mul_i32 s{S_ROWX+u}, s{S_RT+u}, {16*1280}")
    a(f"s_mul_i32 s{t}, s{S_I}, 5")
    a(f"s_sub_u32 s{t+1}, s{S_X}, s{t}")
    a(f"s_and_b32 s{t+1}, s{t+1}, 7")
    a(f"s_lshl_b32 s{S_FB}, s{S_HH}, 3")
    a(f"s_add_u32 s{S_FB}, s{S_FB}, s{S_X}")
    a(f"s_add_u32 s{t+2}, s{t+1}, 19")
    a(f"s_add_u32 s{t}, s{t}, s{t+1}")
    a(f"s_cmp_lt_u32 s{t+1}, 5")
    a(f"s_cselect_b32 s{t+2}, s{t}, s{t+2}")
    a(f"s_cselect_b32 s{S_AUX}, 1, 0")
    a(f"s_cmp_eq_u32 s{S_HH}, 3")
    a(f"s_cselect_b32 s{S_FB}, s{t+2}, s{S_FB}")
    a(f"s_cselect_b32 s{S_AUX}, s{S_AUX}, 0")
    a(f"s_lshl_b32 s{S_COL1}, s{S_FB}, 7")

def q_epilogue(a):
    a(f"v_mov_b32 v16, {f2h(QSCALE)}"); a("v_mov_b32 v17, v16")
    for u in range(4):
        for kp in range(4):
            ra, rb = acc_qf(4 + 2*kp, u), acc_qf(5 + 2*kp, u)
            for r in (ra, ra + 2, rb, rb + 2): a(f"v_pk_mul_f32 v[{r}:{r+1}], v[{r}:{r+1}], v[16:17]")
            a(f"v_cvt_pk_bf16_f32 v{ra}, v{ra}, v{ra+1}")
            a(f"v_cvt_pk_bf16_f32 v{ra+1}, v{ra+2}, v{ra+3}")
            a(f"v_cvt_pk_bf16_f32 v{ra+2}, v{rb}, v{rb+1}")
            a(f"v_cvt_pk_bf16_f32 v{ra+3}, v{rb+2}, v{rb+3}")

V_BIAS = 160
def bias_loads(srd_):
    return [Op(f"buffer_load_dwordx2 v[{240+2*ft}:{241+2*ft}], v14, s[{srd_}:{srd_+3}], s{S_COL1} offen offset:{32*ft}", tag="bias") for ft in range(4)]

def h_epilogue(a, sc=""):
    for ft in range(4):
        for hf in range(2):
            a(f"v_lshlrev_b32 v{V_BIAS+4*ft+2*hf}, 16, v{240+2*ft+hf}")
            a(f"v_and_b32 v{V_BIAS+4*ft+2*hf+1}, 0xffff0000, v{240+2*ft+hf}")
    a(f"v_mov_b32 v16, {f2h(-GK1)}"); a("v_mov_b32 v17, v16")
    a(f"v_mov_b32 v18, {f2h(-GK0)}"); a("v_mov_b32 v19, v18")
    a("v_mov_b32 v20, 1.0"); a("v_mov_b32 v21, 1.0")
    for u in range(4):
        a(f"s_mul_i32 s{S_T0}, s{S_RT+u}, {54*1024}")
        a(f"s_lshl_b32 s{S_T0+1}, s{S_FB}, 11")
        a(f"s_add_u32 s{S_T0}, s{S_T0}, s{S_T0+1}")
        a(f"s_add_u32 s{S_T0+2+(u&1)}, s{S_T0}, {WS_H}")
        for kb in range(2):
            regs = [acc_qf(2*kb + t, u) + 2*hf for t in range(2) for hf in range(2)]
            bias = [V_BIAS + 4*(2*kb + t) + 2*hf for t in range(2) for hf in range(2)]
            T = [24 + 2*i for i in range(4)]
            p = lambda r: f"v[{r}:{r+1}]"
            for r, b_ in zip(regs, bias): a(f"v_pk_add_f32 {p(r)}, {p(r)}, {p(b_)}")
            for r, t in zip(regs, T): a(f"v_pk_mul_f32 {p(t)}, {p(r)}, {p(r)}")
            for r, t in zip(regs, T): a(f"v_pk_fma_f32 {p(t)}, {p(t)}, v[16:17], v[18:19]")
            for r, t in zip(regs, T): a(f"v_pk_mul_f32 {p(t)}, {p(t)}, {p(r)}")
            for t in T: a(f"v_exp_f32 v{t}, v{t}"); a(f"v_exp_f32 v{t+1}, v{t+1}")
            for t in T: a(f"v_pk_add_f32 {p(t)}, {p(t)}, v[20:21]")
            for t in T: a(f"v_rcp_f32 v{t}, v{t}"); a(f"v_rcp_f32 v{t+1}, v{t+1}")
            for r, t in zip(regs, T): a(f"v_pk_mul_f32 {p(t)}, {p(t)}, {p(r)}")
            d = regs[0]
            for i, t in enumerate(T): a(f"v_cvt_pk_bf16_f32 v{d+i}, v{t}, v{t+1}")
            a(f"buffer_store_dwordx4 v[{d}:{d+3}], v{V_L16}, s[{SRD_WS}:{SRD_WS+3}], s{S_T0+2+(u&1)} offen offset:{kb*1024}{sc}")

def gate_group(P, s):
    st = P.st[s]
    if st.phase != "q": return
    for u in range(4):
        for ks in range(2):
            P.G.mfma(mfma(ACC_G + 4*u, A_GW + (2*st.k + ks)*4, P.act_reg(s, u, ks), "0" if (st.first and ks == 0) else None))
def gate_loads(srd_):
    return [Op(f"buffer_load_dwordx4 {R(A_GW+4*ks,4)}, v14, s[{srd_}:{srd_+3}], 0 offen offset:{64*ks}", tag="gw") for ks in range(20)]
def gate_epilogue(a, sc=""):
    a("v_and_b32 v14, 15, v0"); a("v_lshlrev_b32 v14, 2, v14")
    for u in range(4): a(f"v_mul_f32 v{ACC_G+4*u}, {f2h(-math.log2(math.e))}, v{ACC_G+4*u}")
    for u in range(4): a(f"v_exp_f32 v{ACC_G+4*u}, v{ACC_G+4*u}")
    for u in range(4): a(f"v_add_f32 v{ACC_G+4*u}, 1.0, v{ACC_G+4*u}")
    for u in range(4): a(f"v_rcp_f32 v{ACC_G+4*u}, v{ACC_G+4*u}")
    for u in range(4):
        a(f"s_lshl_b32 s{S_T0}, s{S_RT+u}, 6")
        a(f"s_add_u32 s{S_T0}, s{S_T0}, {WS_G}")
        a(f"buffer_store_dword v{ACC_G+4*u}, v14, s[{SRD_WS}:{SRD_WS+3}], s{S_T0} offen{sc}")

def wt_transform(a, sc=""):
    srd(a, SRD_A, P_WO, SZ_WO); srd(a, SRD_B, P_W2, SZ_W2)
    srd_off(a, SRD_C, P_WS, WS_WT, 182*40*1024)
    SJ, SS, SD, SL = 32, 33, 34, 35
    a(f"s_lshl_b32 s{SJ}, s{S_FB}, 2")
    a(f"s_add_u32 s{SJ}, s{SJ}, s{S_WAVE}")
    a(f"s_mul_i32 s{S_T0}, s{SJ}, 6554")
    a(f"s_lshr_b32 s{S_T0}, s{S_T0}, 16")
    a(f"s_mul_i32 s{S_T0+1}, s{S_T0}, 10")
    a(f"s_sub_u32 s{S_T0+1}, s{SJ}, s{S_T0+1}")
    a(f"s_mul_i32 s{SS}, s{S_T0}, 40960")
    a(f"s_lshl_b32 s{S_T0+1}, s{S_T0+1}, 7")
    a(f"s_add_u32 s{SS}, s{SS}, s{S_T0+1}")
    a(f"s_lshl_b32 s{SD}, s{SJ}, 12")
    a(f"s_mul_i32 s{SL}, s{S_WAVE}, 40960")
    a("v_lshrrev_b32 v16, 3, v0")
    a("v_mul_u32_u24 v16, 1280, v16")
    a("v_bfe_u32 v17, v0, 4, 1")
    a("v_lshlrev_b32 v17, 2, v17")
    a("v_and_b32 v18, 7, v0")
    a("v_xor_b32 v17, v17, v18")
    a("v_lshl_add_u32 v2, v17, 4, v16")
    a("v_bfe_u32 v16, v0, 2, 3")
    a("v_lshrrev_b32 v17, 5, v0")
    a("v_lshlrev_b32 v17, 10, v17")
    a("v_lshl_add_u32 v17, v16, 7, v17")
    a(f"v_add_u32 v17, s{SL}, v17")
    a("v_bfe_u32 v16, v0, 3, 1")
    a("v_lshlrev_b32 v16, 2, v16")
    a("v_and_b32 v18, 3, v0")
    a("v_or_b32 v16, v16, v18")
    a("v_lshl_add_u32 v3, v16, 4, v17")
    a("v_xor_b32 v4, 64, v3")
    ops = []
    def issue(it):
        srd_ = SRD_A if it < 8 else SRD_B
        base = (it if it < 8 else it - 8) * 16 * 40960
        for q in range(4):
            ops.append(Op(f"s_add_u32 m0, s{SL}, {(it % 10)*4096 + q*1024}"))
            ops.append(Op(f"s_add_u32 s{S_T0}, s{SS}, {base + q*8*1280}"))
            ops.append(Op(f"buffer_load_dwordx4 v2, s[{srd_}:{srd_+3}], s{S_T0} offen lds", tag=f"j{it}"))
    for it in range(10): issue(it)
    for it in range(12):
        ops.append(W(v=[f"j{it}"]))
        rb = 32 + (it % 2)*16
        for n in range(4):
            for e in range(2):
                ops.append(Op(f"ds_read_b64_tr_b16 v[{rb+4*n+2*e}:{rb+4*n+2*e+1}], v{3+(n>>1)} offset:{(it % 10)*4096 + e*2048 + 8*(n&1)}", tag="t"))
        ops.append(Op(f"s_add_u32 s{S_T0+1}, s{SD}, {it*160*4096}"))
        ops.append(W(l="*"))
        if it + 10 < 12: issue(it + 10)
        for n in range(4):
            ops.append(Op(f"buffer_store_dwordx4 v[{rb+4*n}:{rb+4*n+3}], v{V_L16}, s[{SRD_C}:{SRD_C+3}], s{S_T0+1} offen offset:{n*1024}{sc}", tag="st"))
    a(resolve(ops)[0])

def gen_qa_kernel(name, stamps):
    a = Asm()
    entry(a, name)
    stamps.stamp(a, "start")
    srd(a, SRD_A, P_X, SZ_X); srd(a, SRD_B, P_WQ, SZ_WQ); srd(a, SRD_C, P_W1, SZ_W1)
    srd(a, SRD_D, P_B1, 1728*2); srd(a, SRD_E, P_GW, 640*2)
    proj_setup(a, kv=False, qf=True)
    qf_ids(a)
    a("v_lshrrev_b32 v14, 4, v0")
    a("v_lshlrev_b32 v14, 3, v14")
    common = list(a.lines)
    a(f"s_cmp_lg_u32 s{S_AUX}, 0")
    a(f"s_cbranch_scc1 {name}_aux")
    n0 = len(a.lines)
    P = Proj(qf_stages(SRD_A, SRD_B, SRD_C)).build()
    P.G.pre[P.pre_hook:P.pre_hook] = bias_loads(SRD_D)
    print(name, "qf overflow", P.G.overflow())
    a(resolve(P.G.ops())[0])
    a("s_barrier")
    sv = (stamps.n, list(stamps.names))
    stamps.stamp(a, "qf_mm")
    att_setup(a); att_prefetch0(a)
    h_epilogue(a)
    q_epilogue(a)
    normal = a.lines[n0:]
    a(f"s_branch {name}_att")
    a.label(name + "_aux")
    n0 = len(a.lines)
    a("v_lshlrev_b32 v14, 1, v14")
    P = Proj(q_stages(SRD_A, SRD_B)).build(extra_group=gate_group)
    P.G.pre[0:0] = gate_loads(SRD_E)
    print(name, "q overflow", P.G.overflow())
    a(resolve(P.G.ops())[0])
    a("s_barrier")
    stamps.n, stamps.names = sv
    stamps.stamp(a, "qf_mm")
    a("s_nop 7")
    gate_epilogue(a)
    q_epilogue(a)
    wt_transform(a)
    a("s_barrier")
    att_setup(a); att_prefetch0(a)
    aux = a.lines[n0:]
    a.label(name + "_att")
    stamps.stamp(a, "att0")
    lint(common + normal, name + " qf"); lint(common + aux, name + " aux")
    gen_att(a, name, stamps)
    stamps.stamp(a, "blk2")
    a("s_waitcnt vmcnt(0)")
    stamps.stamp(a, "end")
    stamps.dump(a, 1)
    a.label(name + "_end")
    a("s_endpgm")
    return a
```

```python
import re

class Op:
    __slots__ = ("text", "kind", "tag", "vtags", "ltags", "note")
    def __init__(self, text, kind=None, tag=None, vtags=None, ltags=None):
        self.text = text
        self.kind = kind or classify(text)
        self.tag = tag
        self.vtags = vtags
        self.ltags = ltags

def classify(t):
    m = t.split()[0]
    if t.endswith(":") or m.startswith("."): return "label"
    if m.startswith("v_mfma"): return "mfma"
    if m.startswith("ds_"): return "ds"
    if m.startswith("buffer_") or m.startswith("global_"): return "vm"
    if m == "s_waitcnt": return "wait"
    if m == "s_barrier": return "bar"
    if m.startswith("s_load") or m.startswith("s_mem"): return "smem"
    if m.startswith("s_"): return "salu"
    if re.match(r"v_(exp|log|rcp|rsq|sqrt|sin|cos)_", m): return "trans"
    if m.startswith("v_"): return "valu"
    raise ValueError(t)

def W(v=None, l=None):
    if isinstance(v, str): v = [v]
    if isinstance(l, str): l = [l]
    return Op("s_waitcnt ?", "wait", vtags=v, ltags=l)

def mk(x):
    return x if isinstance(x, Op) else Op(x)

def resolve(ops, vm0=None, ds0=None):
    vm = list(vm0 or []); ds = list(ds0 or [])
    out = []
    waited = set()
    for o in ops:
        if o.kind == "vm" and o.tag in waited: raise AssertionError(f"op with tag {o.tag} issued after it was waited for")
        if o.kind == "wait" and o.text == "s_waitcnt ?":
            waited.update(t for t in (o.vtags or []) if t != "*")
            parts = []
            for tags, hist, name, mx in ((o.vtags, vm, "vmcnt", 63), (o.ltags, ds, "lgkmcnt", 15)):
                if tags is None: continue
                if "*" in tags:
                    n = 0
                else:
                    idx = -1
                    for t in tags:
                        found = [i for i, x in enumerate(hist) if x == t]
                        assert found, f"wait on unknown tag {t}"
                        idx = max(idx, found[-1])
                    n = len(hist) - 1 - idx
                n = min(n, mx)
                parts.append(f"{name}({n})")
            out.append("s_waitcnt " + " ".join(parts))
            continue
        if o.kind == "vm" and not o.text.startswith("buffer_inv") and not o.text.startswith("buffer_wbl2"): vm.append(o.tag)
        elif o.kind == "vm": vm.append(o.tag)
        if o.kind == "ds": ds.append(o.tag)
        out.extend(o.text.split("\n"))
    return out, vm, ds

COST = {"valu": 4, "trans": 8, "ds": 4, "vm": 8, "salu": 4, "wait": 4, "bar": 4, "smem": 4}
ORDER = {"wait": 0, "bar": 0, "salu": 0, "smem": 0, "ds": 1, "vm": 1, "valu": 2, "trans": 2}

class Gaps:
    def __init__(self):
        self.m = []
        self.g = []
        self.pre = []
    def mfma(self, text):
        self.m.append(Op(text)); self.g.append([])
        return len(self.m) - 1
    def put(self, gap, x):
        if gap < 0: self.pre.append(mk(x))
        else: self.g[gap].append(mk(x))
    def cost(self, gap):
        c = 0; first = True
        for o in self.ordered(gap):
            if first and ORDER[o.kind] == 0: first = False; continue
            first = False
            c += COST[o.kind]
        return c
    def ordered(self, gap):
        return sorted(self.g[gap], key=lambda o: ORDER[o.kind])
    def has_scalar(self, gap):
        return any(ORDER[o.kind] == 0 for o in self.g[gap])
    def fit(self, lo, x, hi=None, budget=8):
        x = mk(x)
        hi = len(self.m) - 1 if hi is None else hi
        for g in range(lo, hi + 1):
            self.g[g].append(x)
            ok = self.cost(g) <= budget
            kinds = [o.kind for o in self.g[g]]
            if ok and kinds.count("vm") and (kinds.count("vm") + kinds.count("ds") + kinds.count("valu") + kinds.count("trans") > 1): ok = False
            if ok: return g
            self.g[g].pop()
        return None
    def ops(self):
        out = list(self.pre)
        for i, m in enumerate(self.m):
            out.append(m)
            out.extend(self.ordered(i))
        return out
    def overflow(self):
        return sum(max(0, self.cost(i) - 8) for i in range(len(self.m)))

def regs_of(tok):
    tok = tok.strip()
    neg = tok.lstrip("-|").rstrip("|")
    if neg.startswith("abs("): neg = neg[4:-1]
    m = re.fullmatch(r"([vas])(\d+)", neg)
    if m: return [(m.group(1), int(m.group(2)))]
    m = re.fullmatch(r"([vas])\[(\d+):(\d+)\]", neg)
    if m: return [(m.group(1), i) for i in range(int(m.group(2)), int(m.group(3)) + 1)]
    if neg == "vcc": return [("s", 106), ("s", 107)]
    if neg == "m0": return [("s", 124)]
    if neg == "exec": return [("s", 126), ("s", 127)]
    return []

def parse(line):
    t = line.split(";")[0].strip()
    if not t: return None
    k = classify(t)
    if k == "label": return None
    sp = t.split(None, 1)
    mn = sp[0]
    args = []
    if len(sp) > 1:
        body = sp[1]
        args = [x.strip() for x in body.split(",")]
        last = args[-1].split()
        mods = last[1:]
        args[-1] = last[0]
    else:
        mods = []
    R = [regs_of(x) for x in args]
    w, r, ex = [], [], {}
    if k == "mfma":
        w = R[0]; ex["a"] = R[1]; ex["b"] = R[2]; ex["c"] = R[3]; r = R[1] + R[2] + R[3]
    elif k == "ds":
        if mn.startswith("ds_read") or mn.startswith("ds_bpermute") or mn.startswith("ds_swizzle"):
            w = R[0]; r = sum(R[1:], [])
        else:
            r = sum(R, [])
    elif k == "vm":
        if mn.startswith("buffer_inv") or mn.startswith("buffer_wbl2"):
            pass
        elif "lds" in mods:
            r = sum(R, []) + [("s", 124)]; ex["dma"] = True
        elif mn.startswith("buffer_load"):
            w = R[0]; r = sum(R[1:], [])
        elif mn.startswith("buffer_store"):
            r = sum(R, []); ex["sdata"] = R[0] if len(R[0]) >= 3 else []
        elif mn.startswith("buffer_atomic"):
            r = sum(R, [])
            if "sc0" in mods: w = R[0]
        else:
            raise ValueError(line)
    elif k in ("valu", "trans"):
        if mn.startswith("v_cmp"):
            w = R[0]; r = sum(R[1:], [])
        elif mn.startswith("v_permlane") and "swap" in mn:
            w = R[0] + R[1]; r = R[0] + R[1]; ex["perm"] = True
        elif mn.startswith("v_nop"):
            pass
        else:
            w = R[0]; r = sum(R[1:], [])
            if mn.startswith("v_fmac") or mn.startswith("v_writelane") or mn.startswith("v_pk_fmac") or "dpp" in mn: r = r + R[0]
            if "dpp" in mn: ex["perm"] = True
            if mn.startswith("v_readfirstlane") or mn.startswith("v_readlane"): ex["rl"] = True
            if mn.startswith("v_add_co") or mn.startswith("v_sub_co"): w = R[0] + R[1]; r = sum(R[2:], [])
    elif k == "salu":
        if mn.startswith("s_cmp") or mn.startswith("s_cbranch") or mn in ("s_branch", "s_nop", "s_endpgm", "s_sleep", "s_setprio", "s_bitcmp1_b32", "s_bitcmp0_b32"):
            r = sum(R, [])
            if "vcc" in mn: r = r + [("s", 106), ("s", 107)]
        else:
            w = R[0]; r = sum(R[1:], [])
            if mn.startswith("s_addk") or mn.startswith("s_mulk") or mn.startswith("s_cmov"): r = r + R[0]
            if "saveexec" in mn: w = w + [("s", 126), ("s", 127)]
    elif k == "smem":
        w = R[0]; r = sum(R[1:], [])
    return mn, k, w, r, ex, t

def lint(lines, name="", verbose=True):
    errs = []
    pos = 0
    last_valu_w = {}
    last_trans_w = {}
    last_mfma_w = {}
    last_mfma_c = {}
    last_salu_w = {}
    last_store = {}
    vm = []; lg = []
    def err(msg, t): errs.append(f"{name}: {msg}: {t}")
    for line in lines:
        p = parse(line)
        if p is None: continue
        mn, k, w, r, ex, t = p
        if k == "wait":
            m = re.search(r"vmcnt\((\d+)\)", t)
            if m:
                n = int(m.group(1)); vm = vm[len(vm) - n:] if n < len(vm) else vm
                if n == 0: vm = []
            m = re.search(r"lgkmcnt\((\d+)\)", t)
            if m:
                n = int(m.group(1))
                if n == 0: lg = []
                elif any(x[0] == "smem" for x in lg): pass
                else: lg = lg[len(lg) - n:] if n < len(lg) else lg
            pos += 1
            continue
        pend = set()
        for d in vm: pend.update(d)
        for d in lg: pend.update(d[1])
        for x in r:
            if x in pend: err(f"read of pending load dest {x}", t)
        for x in w:
            if x in pend and not (k in ("ds", "vm")): err(f"write of pending load dest {x}", t)
        def dist(tbl, x):
            v = tbl.get(x)
            if v is None: return 999
            if isinstance(v, tuple): v = v[0]
            return pos - v - 1
        if k == "mfma":
            for x in r:
                if dist(last_valu_w, x) < 2: err(f"VALU->MFMA {x} needs 2", t)
            for x in ex["a"] + ex["b"]:
                if dist(last_mfma_w, x) < 8: err(f"MFMA D->A/B {x} needs 8", t)
            for x in ex["c"]:
                if x in last_mfma_w and dist(last_mfma_w, x) < 6 and last_mfma_w[x][1] != tuple(ex["c"]): err(f"MFMA D->C overlap {x}", t)
            for x in w:
                if x in last_mfma_w and dist(last_mfma_w, x) < 6 and x not in ex["c"]: err(f"MFMA WAW {x} (conservative)", t)
        if k in ("valu", "trans"):
            for x in r + w:
                if dist(last_mfma_w, x) < 8: err(f"MFMA D->VALU {x} needs 8 (has {dist(last_mfma_w, x)})", t)
            for x in w:
                if dist(last_mfma_c, x) < 3: err(f"MFMA C WAR {x} needs 3", t)
                if dist(last_store, x) < 2: err(f"store data WAR {x} needs 2", t)
            for x in r:
                if k == "valu" and dist(last_trans_w, x) < 1: err(f"trans->VALU {x} needs 1", t)
                if x[0] == "s" and dist(last_valu_w, x) < 2: err(f"VALU sgpr write->VALU read {x} needs 2", t)
                if ex.get("perm") and x[0] == "v" and dist(last_valu_w, x) < 2: err(f"VALU->perm/dpp {x} needs 2", t)
                if ex.get("rl") and x[0] == "v" and dist(last_valu_w, x) < 1: err(f"VALU->readlane {x} needs 1", t)
        if k in ("ds", "vm"):
            for x in r + w:
                if dist(last_mfma_w, x) < 8: err(f"MFMA D->mem {x} needs 8", t)
            for x in r:
                if k == "vm" and x[0] == "s" and dist(last_valu_w, x) < 5: err(f"VALU sgpr->VMEM {x} needs 5", t)
                if dist(last_trans_w, x) < 1: err(f"trans->mem {x} (conservative)", t)
            if ex.get("dma") and dist(last_salu_w, ("s", 124)) < 1: err("M0->DMA needs 1", t)
            for x in w:
                if dist(last_store, x) < 1: err(f"store data WAR {x} needs 1", t)
        if k == "mfma":
            for x in w: last_mfma_w[x] = (pos, tuple(w)); last_valu_w.pop(x, None)
            for x in ex["c"]: last_mfma_c[x] = pos
        elif k in ("valu", "trans"):
            for x in w:
                last_valu_w[x] = pos; last_mfma_w.pop(x, None)
                if k == "trans": last_trans_w[x] = pos
                else: last_trans_w.pop(x, None)
        elif k == "salu":
            for x in w: last_salu_w[x] = pos; last_valu_w.pop(x, None)
        if k == "vm":
            vm.append(list(w))
            for x in ex.get("sdata", []): last_store[x] = pos
            if len(vm) > 63 + 64: pass
        if k == "ds": lg.append(("ds", list(w)))
        if k == "smem": lg.append(("smem", list(w)))
        if mn == "s_nop": pos += int(t.split()[1]) + 1
        else: pos += 1
    if verbose:
        seen = set()
        for e in errs[:40]:
            if e not in seen: print("LINT", e); seen.add(e)
        if errs: print(f"LINT {name}: {len(errs)} errors")
    return errs
```

```python
import sys, json
from gen_fin import *
stamp = "stamp" in sys.argv
ks = []; sts = []
for nm, fn in (("kv_kernel", gen_kv_kernel), ("qa_kernel", gen_qa_kernel), ("fin_kernel", gen_fin_kernel), ("red_kernel", gen_red_kernel)):
    st = Stamps(stamp); ks.append((nm, fn(nm, st))); sts.append(st)
launches = [(n, 256, 256, 0 if n == "red_kernel" else 163840) for n, _ in ks]
txt = file_text(launches, "\n".join(x.text() for _, x in ks), [kernel_desc(n, 256, 256) for n, _ in ks])
open(sys.argv[1], "w").write(txt)
json.dump({"stamps": [s.names for s in sts]}, open(sys.argv[1] + ".json", "w"))
```

```python
from gen_proj import *

V_KA = 2; V_VA = 3; V_TB = 4
def O_(dt, j): return 16 + (dt*2 + j)*4
def L_(j): return 80 + 4*j
def S_(b, kt, j): return 88 + b*16 + (j*2 + kt)*4
def P_(b, j): return 120 + b*8 + 4*j
def NM(j): return 136 + 4*j
def CM(j, k4): return 144 + (j*4 + k4)*4
def Q_(j, ks): return 176 + (j*4 + ks)*4
QNEXT = 208
def KF(kt, ks): return 256 + (kt*4 + ks)*4
def VF(dt): return 256 + 32 + dt*4
ONES = 256 + 64
SLOWK = 256 + 164; SLOWV = 256 + 196
BIG = 2.0**100

S_OFFK = 12; S_OFFV = 13; S_CNT = 14; S_N1 = 15; S_BASE = 16; S_RK = 17; S_RV = 18; S_PER = 19; S_QB = 20; S_BLK = 21
S_CTX = 22
S_TA = 62
S_SL = 66

def kread(unit_in_pair, idx):
    return Op(f"ds_read_b128 {R(KF(idx >> 2, idx & 3),4)}, v{V_KA} offset:{unit_in_pair*8192 + idx*1024}", tag=f"k{idx>>2}")
def vread(unit_in_pair, dt):
    return Op(f"ds_read_b128 {R(VF(dt),4)}, v{V_VA} offset:{unit_in_pair*8192 + dt*1024}", tag=f"v{dt>>2}")
def dma(which, j):
    s = S_OFFK if which == "K" else S_OFFV
    return Op(f"buffer_load_dwordx4 v{V_L16}, {SR(SRD_WS)}, s{s} offen offset:{j*1024}{SC} lds", tag="dma")
def exps(b, j): return [f"v_exp_f32 v{S_(b,kt,j)+r}, v{S_(b,kt,j)+r}" for kt in range(2) for r in range(4)]
def cvts(b, j): return [f"v_cvt_pk_bf16_f32 v{P_(b,j)+i}, v{S_(b,i>>1,j)+2*(i&1)}, v{S_(b,i>>1,j)+2*(i&1)+1}" for i in range(4)]
def k_pre():  return [f"s_mov_b32 m0, s{S_RK}"]
def k_post(): return [f"s_add_u32 s{S_RK}, s{S_RK}, 16384", f"s_and_b32 s{S_RK}, s{S_RK}, 0xffff"]
def v_pre():  return [f"s_add_u32 m0, s{S_RV}, 65536"]
def v_post():
    return [f"s_add_u32 s{S_RV}, s{S_RV}, 16384", f"s_and_b32 s{S_RV}, s{S_RV}, 0xffff",
            f"s_add_u32 s{S_OFFV}, s{S_OFFK}, 16384",
            f"s_add_u32 s{S_OFFK}, s{S_OFFK}, 32768", f"s_add_u32 s{S_CNT}, s{S_CNT}, 1",
            f"s_cmp_eq_u32 s{S_CNT}, s{S_N1}", f"s_cselect_b32 s{S_OFFK}, s{S_BASE}, s{S_OFFK}",
            f"s_cmp_ge_u32 s{S_CNT}, 34", f"s_cselect_b32 s{S_OFFK}, {OOB}, s{S_OFFK}"]

def q_mfmas(G, b, js, cfun):
    for j in js:
        for kt in range(2):
            for ks in range(4):
                G.mfma(mfma(S_(b, kt, j), KF(kt, ks), Q_(j, ks), cfun(j, kt) if ks == 0 else None))
def barrier_ops(): return [Op("s_waitcnt vmcnt(16) lgkmcnt(0)"), Op("s_barrier")]

V_POLL = 244
V_EP = 252
def fq_poll(so): return f"buffer_load_dwordx4 v[{V_POLL}:{V_POLL+3}], v{V_L16}, {SR(SRD_WS)}, s{so} offen{SC}"
DSLOT = (6, 15, 16 + 11, 16 + 15)
def put_loads(G, loads, slots):
    assert len(loads) <= len(slots)
    for (m0, so, op), g in zip(loads, slots):
        if m0: G.put(g - 1, m0)
        if so: G.put(g, so)
        G.put(g, op)

def full_step(p, cfun=None, last=None, poll=False):
    G = Gaps(); b = p & 1; pb = b ^ 1
    if cfun is None: cfun = lambda j, kt: NM(j)
    q_mfmas(G, b, (0, 1), cfun)
    G.mfma(mfma(L_(0), ONES, P_(pb, 0)))
    for dt in range(8):
        for j in range(2): G.mfma(mfma(O_(dt, j), VF(dt), P_(pb, j)))
    G.mfma(mfma(L_(1), ONES, P_(pb, 1)))
    which = "K" if p & 1 else "V"
    vr_ = [vread((p - 1) & 3, dt) for dt in range(8)]
    kr = [kread((p + 1) & 3, i) for i in range(8)]
    e1 = exps(pb, 1); c1 = cvts(pb, 1); e0 = exps(b, 0); c0 = cvts(b, 0)
    qpat = [[e1[0]], [e1[1]], [vr_[0], c1[0]], [e1[2]], [e1[3]], [vr_[1], c1[1]], [], [e1[4]], [e1[5]], [vr_[2], c1[2]],
            [e1[6]], [e1[7]], [vr_[3], c1[3]], [vr_[4], vr_[5]], [vr_[6], vr_[7]], []]
    ppat = [[kr[0], kr[1]], [e0[0]], [kr[2], kr[3]], [e0[1]], [kr[4], c0[0]], [e0[2]], [e0[3]], [kr[5], c0[1]], [e0[4]], [kr[6], kr[7]],
            [e0[5]], [], [e0[6]], [c0[2]], [e0[7]], [], [c0[3]], []]
    for i, l in enumerate(qpat + ppat):
        for o in l: G.put(i, o)
    G.put(15, W(l=["v0"])); G.put(16 + 7, W(l=["v1"]))
    if p == 0: G.put(16 + 13, f"v_xor_b32 v{V_VA}, 0x8000, v{V_VA}")
    if p == 2: G.put(16 + 13, f"v_xor_b32 v{V_KA}, 0x8000, v{V_KA}")
    if which == "V": G.put(3, W(l=["k1"]))
    lastg = len(G.m) - 1
    if last is None:
        for j in range(4): G.put(DSLOT[j], dma(which, j))
        if which == "K":
            place_scalars(G, k_pre(), 4, 5)
            place_scalars(G, k_post(), 16 + 8, 16 + 14)
        else:
            place_scalars(G, v_pre(), 4, 5)
            vp = v_post()
            place_scalars(G, vp[:2], 6, 14)
            place_scalars(G, [f"s_add_u32 s{S_TA}, s{S_OFFK}, 16384"] + vp[3:], 16, 16 + 14)
            G.put(16 + 16, f"s_mov_b32 s{S_OFFV}, s{S_TA}")
        bar = barrier_ops()
    else:
        put_loads(G, last[0], last[1])
        bar = [last[2], Op("s_barrier")]
    if which == "V":
        for o in bar: G.put(lastg, o)
    else:
        G.put(lastg, W(l=["k0"]))
        if poll:
            place_scalars(G, [f"s_cmp_eq_u32 s{S_PER}, s{S_BLK}", f"s_cselect_b32 s{S_TA+2}, s{S_TA+3}, {OOB}"], 16 + 12, 16 + 16)
            G.put(lastg, Op(fq_poll(S_TA + 2), tag="poll"))
    return G

def att_setup_v(a):
    a(f"v_mov_b32 v{V_KA}, v{V_L16}")
    a(f"v_add_u32 v{V_VA}, {65536 + 32768}, v{V_L16}")
    a("v_and_b32 v6, 15, v0")
    a(f"s_lshl_b32 s{S_TA}, s{S_WAVE}, 4")
    a("v_lshrrev_b32 v7, 4, v0")
    a(f"s_sub_u32 s{S_TA+1}, 112, s{S_TA}")
    a("v_lshlrev_b32 v7, 2, v7")
    a("v_sub_u32 v6, v6, v7")
    a(f"v_add_u32 v7, s{S_TA}, v6")
    a(f"v_add_u32 v8, s{S_TA+1}, v6")
    a("v_cvt_f32_i32 v7, v7"); a("v_cvt_f32_i32 v8, v8")
    a("v_add_f32 v7, 0.5, v7"); a("v_add_f32 v8, 0.5, v8")
    a(f"v_mul_f32 v{V_TB}, {f2h(BIG)}, v7"); a(f"v_mul_f32 v{V_TB+1}, {f2h(BIG)}, v8")
    a("v_mov_b32 v6, 0x3f803f80")
    for i in range(4): a(f"v_accvgpr_write_b32 {R(ONES+i)}, v6")

def att_setup_s():
    return [f"s_lshl_b32 s{S_BASE}, s{S_H}, 20", f"s_lshl_b32 s{S_RK}, s{S_WAVE}, 12", f"s_add_u32 s{S_BASE}, s{S_BASE}, s{S_RK}",
            f"s_mov_b32 s{S_RV}, s{S_RK}", f"s_mov_b32 s{S_OFFK}, s{S_BASE}", f"s_mov_b32 s{S_CNT}, 0",
            f"s_lshl_b32 s{S_N1}, s{S_I}, 1", f"s_add_u32 s{S_N1}, s{S_N1}, 2", f"s_mov_b32 s{S_QB}, s{S_I}", f"s_mov_b32 s{S_BLK}, 0",
            f"s_mov_b32 s{S_TA+3}, {WS_FQ}"]

def att_prefetch0(G, lo, spacing=2):
    g = lo
    def grp(which, pre, post):
        nonlocal g
        for j in range(4):
            o = dma(which, j); o.tag = "K0" if first[0] else "dma"
            g = place_vm(G, g + spacing, o, pre[0] if j == 0 else None, None, g)
        first[0] = False
        ops = []
        for x in post:
            if x.startswith("s_cselect"): ops[-1] = block([ops[-1], x])
            else: ops.append(x)
        g = place_scalars(G, ops, g + 1, len(G.m) - 1) - 1
    first = [True]
    grp("K", k_pre(), k_post() + v_post()[2:])
    for w in range(2):
        grp("K", k_pre(), k_post())
        grp("V", v_pre(), v_post())
    return g

def fitd(G, x, lo, hi):
    g = G.fit(lo, x, hi)
    if g is None:
        g = min(range(lo, hi + 1), key=lambda i: (G.cost(i), i))
        G.put(g, x)
    return g

def softmax_fill(G, b, j, lo_kt, hi):
    e = exps(b, j); c = cvts(b, j); cur = 0
    for i in range(4):
        lo = max(cur, lo_kt[i >> 1])
        g1 = fitd(G, e[2*i], lo, hi - 1); g2 = fitd(G, e[2*i+1], g1, hi - 1)
        cur = g2
        fitd(G, c[i], g2 + 1, hi)

def diag_tail(last=None):
    G = Gaps()
    cm = lambda base: (lambda j, kt: CM(1, base + kt))
    q_mfmas(G, 0, (1,), cm(0))
    G.mfma(mfma(L_(0), ONES, P_(1, 0)))
    for dt in range(8): G.mfma(mfma(O_(dt, 0), VF(dt), P_(1, 0)))
    for dt in range(8): G.mfma(mfma(O_(dt, 1), VF(dt), P_(1, 1)))
    G.mfma(mfma(L_(1), ONES, P_(1, 1)))
    q_mfmas(G, 1, (1,), cm(2))
    G.mfma(mfma(L_(1), ONES, P_(0, 1)))
    for dt in range(8): G.mfma(mfma(O_(dt, 1), VF(dt), P_(0, 1)))
    G.mfma(mfma(L_(1), ONES, P_(1, 1)))
    for dt in range(8): G.mfma(mfma(O_(dt, 1), VF(dt), P_(1, 1)))
    G.put(3, W(l=["k1"]))
    for dt in range(8): G.put(dt // 2, vread(1, dt))
    G.put(8, W(l=["v0"])); G.put(12, W(l=["v1"]))
    softmax_fill(G, 1, 1, (4, 4), 14)
    for i in range(8): fitd(G, kread(3, i), 13, 19)
    if last is None:
        G.put(19, f"s_add_u32 m0, s{S_RV}, 65536")
        for j in range(4): G.put(20 + j, dma("V", j))
        vp = v_post()
        place_scalars(G, vp[:2], 20, 22)
        place_scalars(G, [f"s_add_u32 s{S_TA}, s{S_OFFK}, 16384"] + vp[3:], 9, 18)
        G.put(24, f"s_mov_b32 s{S_OFFV}, s{S_TA}")
        G.put(24, f"v_xor_b32 v{V_KA}, 0x8000, v{V_KA}")
        for o in barrier_ops(): G.put(25, o)
    else:
        put_loads(G, last[0], (5, 10, 15, 20, 22, 23, 24))
        G.put(25, last[1]); G.put(25, "s_barrier")
    for dt in range(8): G.put(26 + dt // 2, vread(2, dt))
    softmax_fill(G, 0, 1, (24, 24), 31)
    G.put(34, W(l=["v0"])); G.put(38, W(l=["v1"]))
    if last is None: G.put(33, k_pre()[0])
    softmax_fill(G, 1, 1, (37, 41), 42)
    for dt in range(8): G.put(35 + dt, vread(3, dt))
    G.put(42, Op("s_nop 1", "valu"))
    G.put(43, W(l=["v0"])); G.put(47, W(l=["v1"]))
    if last is None:
        for i in range(8): G.put(44 + i // 2, kread(0, i))
        for j in range(4): G.put(48 + j, dma("K", j))
        place_scalars(G, k_post(), 48, 51)
    else:
        put_loads(G, last[2], (30, 32, 34, 36, 40, 44, 46, 48, 50))
    return G

def row_max(a, dst, regs, tmp):
    a(f"v_max3_f32 v{dst}, v{regs[0]}, v{regs[1]}, v{regs[2]}")
    a(f"v_max3_f32 v{tmp}, v{regs[3]}, v{regs[4]}, v{regs[5]}")
    a(f"v_max3_f32 v{dst}, v{dst}, v{regs[6]}, v{regs[7]}")
    a(f"v_max_f32 v{dst}, v{dst}, v{tmp}")
def cross_max(a, pairs):
    for op in ("v_permlane32_swap_b32", "v_permlane16_swap_b32"):
        for d, t in pairs: a(f"v_mov_b32 v{t}, v{d}")
        a("s_nop 1")
        for d, t in pairs: a(f"{op} v{t}, v{d}")
        a("s_nop 1")
        for d, t in pairs: a(f"v_max_f32 v{d}, v{d}, v{t}")

def head_ops():
    a = Asm()
    a(f"v_mov_b32 v6, {f2h(2.0**120)}")
    a(f"s_cmp_eq_u32 s{S_QB}, 0")
    a(f"s_cselect_b64 vcc, -1, 0")
    a(f"v_cndmask_b32 v6, v6, v{V_TB}, vcc")
    for kt in range(2):
        for r in range(4):
            a(f"v_subrev_f32 v{CM(0,kt)+r}, {f2h((16*kt+r)*BIG)}, v6")
            a(f"v_min_f32 v{CM(0,kt)+r}, 0, v{CM(0,kt)+r}")
    a(v_pre())
    pre = [Op(x.strip()) for x in a.lines] + [W(l="*")]
    G = Gaps()
    q_mfmas(G, 0, (0, 1), lambda j, kt: CM(0, kt) if j == 0 else "0")
    for j in range(4): G.put(1 + 2*j, dma("V", j))
    z = [f"v_mov_b32 v{r}, 0" for r in range(16, 88)]
    zi = 0
    for g in range(16):
        while zi < len(z) and G.fit(g, z[zi], g) is not None: zi += 1
    place_scalars(G, v_post(), 8, 15)
    a = Asm()
    for i in range(8): a(kread(1, i).text)
    a(f"v_xor_b32 v{V_VA}, 0x8000, v{V_VA}")
    assert (len(z) - zi) % 2 == 0
    for r in range(16 + zi, 88, 2): a(f"v_mov_b64 v[{r}:{r+1}], 0")
    for j in range(2): row_max(a, 6 + j, [S_(0, kt, j) + r for kt in range(2) for r in range(4)], 8 + j)
    cross_max(a, [(6, 8), (7, 9)])
    for j in range(2):
        for kt in range(2):
            for r in range(4): a(f"v_sub_f32 v{S_(0,kt,j)+r}, v{S_(0,kt,j)+r}, v{6+j}")
    for j in range(2):
        for r in range(4): a(f"v_sub_f32 v{NM(j)+r}, 0, v{6+j}")
    e = exps(0, 0); c = cvts(0, 0)
    cmops = []
    for j in range(2):
        for k4 in range(4):
            for r in range(4):
                cmops.append(f"v_subrev_f32 v{CM(j,k4)+r}, {f2h((16*(k4+4*j)+r)*BIG)}, v{V_TB+j}")
                cmops.append(f"v_min_f32 v{CM(j,k4)+r}, v{NM(j)}, v{CM(j,k4)+r}")
    a(e); a(cmops); a(c)
    a(f"s_mov_b32 s{S_PER}, s{S_QB}")
    post = [Op(x.strip()) for x in a.lines] + barrier_ops()
    return pre + G.ops() + post

def ctx_addr_ops():
    o = [f"s_lshl_b32 s{S_TA}, s{S_QB}, 3", f"s_add_u32 s{S_CTX}, s{S_TA}, s{S_WAVE}", f"s_sub_u32 s{S_CTX+1}, s{S_TA}, s{S_WAVE}",
         f"s_add_u32 s{S_CTX+1}, s{S_CTX+1}, 7", f"s_lshl_b32 s{S_TA}, s{S_H}, 12", f"s_add_u32 s{S_TA}, s{S_TA}, {WS_CTX}"]
    for j in range(2): o += [f"s_lshl_b32 s{S_CTX+j}, s{S_CTX+j}, 17", f"s_add_u32 s{S_CTX+j}, s{S_CTX+j}, s{S_TA}"]
    return o

def epilogue(sfx, loads=()):
    o = [Op(f"s_mov_b32 s{S_SL}, 0"), Op(f"norm{sfx}:")]
    a = lambda x: o.append(mk(x))
    loads = list(loads); sca = ctx_addr_ops()
    a(f"v_rcp_f32 v6, v{L_(0)}"); a("v_mov_b32 v10, 0"); a("v_mov_b32 v7, v6")
    for j in range(2):
        for kp in range(4):
            ra, rb = O_(2*kp, j), O_(2*kp + 1, j)
            ld = loads.pop(0) if loads else (None, None, None)
            if ld[0]: a(ld[0])
            for r in (ra, ra + 2, rb, rb + 2): a(f"v_pk_mul_f32 v[{r}:{r+1}], v[{r}:{r+1}], v[{6+2*j}:{7+2*j}]")
            if ld[1]: a(ld[1])
            if ld[2]: a(ld[2])
            for x in cvt4(ra, ra, rb): a(x)
            if sca: a(sca.pop(0))
            a(f"v_pk_maximum3_f16 v10, v10, v{ra}, v{ra+1}")
            if sca: a(sca.pop(0))
            a(f"v_pk_maximum3_f16 v10, v10, v{ra+2}, v{ra+3}")
            if j == 0 and kp == 2: a(f"v_rcp_f32 v8, v{L_(1)}")
            if j == 0 and kp == 3: a("v_mov_b32 v9, v8")
    for ld in loads:
        if ld[0]: a(ld[0])
        if ld[1]: a(ld[1])
        elif ld[0]: a("s_nop 0")
        a(ld[2])
    a("v_lshrrev_b32 v11, 16, v10")
    a(f"v_min_f32 v12, v{L_(0)}, v{L_(1)}")
    a(f"v_max_f32 v13, v{L_(0)}, v{L_(1)}")
    a("v_cmp_u_f16 vcc, v10, v11")
    a(f"v_cmp_u_f32 s[{S_TA}:{S_TA+1}], v{L_(0)}, v{L_(1)}")
    a(f"s_or_b64 s[{S_TA}:{S_TA+1}], s[{S_TA}:{S_TA+1}], vcc")
    a(f"v_cmp_gt_f32 vcc, {f2h(2.0**-64)}, v12")
    a(f"s_or_b64 s[{S_TA}:{S_TA+1}], s[{S_TA}:{S_TA+1}], vcc")
    a(f"v_cmp_lt_f32 vcc, {f2h(2.0**24)}, v13")
    a(f"s_or_b64 s[{S_TA}:{S_TA+1}], s[{S_TA}:{S_TA+1}], vcc")
    a(f"s_cbranch_scc0 store{sfx}")
    a(f"s_cmp_eq_u32 s{S_SL}, 0")
    a(f"s_cbranch_scc1 slow")
    a(f"store{sfx}:")
    for j in range(2):
        for kp in range(4):
            ra = O_(2*kp, j)
            o.append(Op(f"buffer_store_dwordx4 v[{ra}:{ra+3}], v{V_L16}, {SR(SRD_WS)}, s{S_CTX+j} offen offset:{kp*1024}{SC}", tag="ctxst"))
    return o

def slow_path(a):
    a.label("slow")
    SO, SN = S_SL + 1, S_SL + 2
    a(f"s_mov_b32 s{S_SL}, 1")
    a(f"s_lshl_b32 s{SO}, s{S_H}, 20")
    if WS_KV: a(f"s_add_u32 s{SO}, s{SO}, {WS_KV}")
    a(f"s_lshl_b32 s{SN}, s{S_QB}, 2")
    a(f"s_add_u32 s{SN}, s{SN}, 4")
    a(f"s_lshl_b32 s{S_TA}, s{S_QB}, 7")
    a(f"v_cvt_f32_u32 v6, s{S_TA}")
    a(f"v_mul_f32 v6, {f2h(BIG)}, v6")
    for j in range(2):
        a(f"v_add_f32 v{240+j}, v{V_TB+j}, v6")
        a(f"v_mov_b32 v{242+j}, {f2h(-2.0**126)}")
    for r in range(16, 88): a(f"v_mov_b32 v{r}, 0")
    a.label("slow_loop")
    a(f"s_add_u32 s{S_TA}, s{SO}, 4096")
    a(f"s_add_u32 s{S_TA+1}, s{SO}, 16384")
    a(f"s_add_u32 s{S_TA+2}, s{SO}, 20480")
    for i in range(8):
        a(f"buffer_load_dwordx4 {R(SLOWK+4*i,4)}, v{V_L16}, {SR(SRD_WS)}, s{SO if i < 4 else S_TA} offen offset:{(i&3)*1024}{SC}")
    for i in range(8):
        a(f"buffer_load_dwordx4 {R(SLOWV+4*i,4)}, v{V_L16}, {SR(SRD_WS)}, s{S_TA+1 if i < 4 else S_TA+2} offen offset:{(i&3)*1024}{SC}")
    a("s_waitcnt vmcnt(0)")
    for j in range(2):
        for kt in range(2):
            for ks in range(4): a(mfma(S_(0, kt, j), SLOWK + (kt*4 + ks)*4, Q_(j, ks), "0" if ks == 0 else None))
    a("s_nop 7")
    for j in range(2):
        for kt in range(2):
            for r in range(4):
                a(f"v_subrev_f32 v6, {f2h((16*kt+r)*BIG)}, v{240+j}")
                a(f"v_min_f32 v6, 0, v6")
                a(f"v_add_f32 v{S_(0,kt,j)+r}, v{S_(0,kt,j)+r}, v6")
        a(f"v_subrev_f32 v{240+j}, {f2h(32*BIG)}, v{240+j}")
    for j in range(2): row_max(a, 6 + j, [S_(0, kt, j) + r for kt in range(2) for r in range(4)], 8 + j)
    cross_max(a, [(6, 8), (7, 9)])
    for j in range(2):
        a(f"v_max_f32 v{6+j}, v{6+j}, v{242+j}")
        a(f"v_sub_f32 v{8+j}, v{242+j}, v{6+j}")
        a(f"v_mov_b32 v{242+j}, v{6+j}")
        a(f"v_exp_f32 v{8+j}, v{8+j}")
        for kt in range(2):
            for r in range(4): a(f"v_sub_f32 v{S_(0,kt,j)+r}, v{S_(0,kt,j)+r}, v{6+j}")
        a(exps(0, j)); a("s_nop 0"); a(cvts(0, j))
        for dt in range(8):
            for r in range(4): a(f"v_mul_f32 v{O_(dt,j)+r}, v{O_(dt,j)+r}, v{8+j}")
        for r in range(4): a(f"v_mul_f32 v{L_(j)+r}, v{L_(j)+r}, v{8+j}")
    a("s_nop 1")
    for j in range(2):
        a(mfma(L_(j), ONES, P_(0, j)))
        for dt in range(8): a(mfma(O_(dt, j), SLOWV + 4*dt, P_(0, j)))
    a(f"s_bitcmp1_b32 s{SO}, 13")
    a(f"s_cselect_b32 s{S_TA}, 24576, 8192") if False else None
    a(f"s_mov_b32 s{S_TA}, 8192")
    a(f"s_cmov_b32 s{S_TA}, 24576")
    a(f"s_add_u32 s{SO}, s{SO}, s{S_TA}")
    a(f"s_sub_u32 s{SN}, s{SN}, 1")
    a(f"s_cmp_lg_u32 s{SN}, 0")
    a("s_nop 7")
    a("s_cbranch_scc1 slow_loop")
    a(f"s_cmp_eq_u32 s{S_BLK}, 0")
    a("s_cbranch_scc1 norm1")
    a("s_branch norm2")
```

```python
from asmgen import *
from gsched import *
import struct, math

MB = 1 << 20
WS_KV = 0
WS_CTX = 32 * MB
WS_H = 48 * MB
WS_WT = 56 * MB
WS_G = 64 * MB
WS_PART = 65 * MB
WS_FC = 80 * MB
WS_FP = 80 * MB + 65536
WS_FK = 80 * MB + 131072
WS_FQ = 80 * MB + 196608
WS_EP = 80 * MB + 262144
WS_STAMP = 250 * MB
WS_BYTES = 268435456
SZ_X = 2048*640*2; SZ_C = 2048*512*2; SZ_WQ = 640*4096*2; SZ_WU = 512*4096*2; SZ_WO = 4096*640*2
SZ_W1 = 640*1728*2; SZ_W2 = 1728*640*2; SZ_OUT = 2048*640*2; SZ_WT = 182*40*1024
OOB = 0x20000000
SC = " sc1"

S_WAVE = 3; S_X = 4; S_HH = 5; S_I = 6; S_H = 7
SRD_WS = 8; SRD_C = 12; SRD_WK = 16; SRD_WV = 20; SRD_X = 24; SRD_WQ = 28; SRD_W1 = 32; SRD_WO = 36; SRD_W2 = 40
SRD_B1 = 44; SRD_B2 = 48; SRD_OUT = 52; SRD_DBG = 56
def SR(d): return f"s[{d}:{d+3}]"
V_L16 = 1

def f2h(x): return "0x%08x" % struct.unpack("<I", struct.pack("<f", x))[0]

def mfma(d, a_, b_, c=None):
    cs = R(d, 4) if c is None else (c if isinstance(c, str) else R(c, 4))
    return f"v_mfma_f32_16x16x32_bf16 {R(d,4)}, {R(a_,4)}, {R(b_,4)}, {cs}"

def block(lines, kind="salu", tag=None):
    return Op("\n".join(lines), kind, tag=tag)

class Stamps:
    def __init__(self, enabled, areg=255):
        self.enabled = enabled; self.n = 0; self.names = []; self.areg = areg
    def stamp(self, a, name):
        if not self.enabled: return
        a("s_waitcnt lgkmcnt(0)")
        a("s_memtime s[98:99]")
        a("s_memrealtime s[100:101]")
        a("s_waitcnt lgkmcnt(0)")
        a(f"v_accvgpr_read_b32 v15, a{self.areg}")
        a(f"v_writelane_b32 v15, s98, {2*self.n}")
        a(f"v_writelane_b32 v15, s100, {2*self.n+1}")
        a(f"v_accvgpr_write_b32 a{self.areg}, v15")
        self.names.append(name); self.n += 1
    def put(self, G, gap, name):
        if not self.enabled: return
        t = Asm(); self.stamp(t, name)
        G.put(gap, Op("\n".join(x.strip() for x in t.lines), "valu"))
    def dump(self, a, kidx=0):
        if not self.enabled: return
        a(f"v_accvgpr_read_b32 v15, a{self.areg}")
        a("v_mbcnt_lo_u32_b32 v14, -1, 0")
        a("v_mbcnt_hi_u32_b32 v14, -1, v14")
        a("v_lshlrev_b32 v14, 2, v14")
        a(f"s_lshl_b32 s98, s2, 2")
        a(f"s_add_u32 s98, s98, s{S_WAVE}")
        a("s_lshl_b32 s98, s98, 8")
        a(f"s_add_u32 s98, s98, {WS_STAMP + kidx*(1<<18)}")
        a(f"buffer_store_dword v15, v14, {SR(SRD_WS)}, s98 offen")
        a("s_waitcnt vmcnt(0)")

class Spins:
    def __init__(self): self.blocks = []; self.n = 0
    def check(self, load, test, cnt=94):
        k = self.n; self.n += 1
        self.blocks.append([f"spin{k}:", f"s_mov_b32 s{cnt}, 0", f"spin{k}_l:", "s_sleep 1", load, "s_waitcnt vmcnt(0)"] + test +
                           [f"s_cbranch_scc1 spin{k}_ok", f"s_add_u32 s{cnt}, s{cnt}, 1", f"s_cmp_lt_u32 s{cnt}, 0x20000",
                            f"s_cbranch_scc1 spin{k}_l", f"s_branch spin{k}_ok"])
        return test + [f"s_cbranch_scc0 spin{k}", f"spin{k}_ok:"]
    def emit(self, a):
        for b in self.blocks: a(b)

def place_scalars(G, ops, lo, hi):
    g = lo
    for o in ops:
        while g <= hi and G.has_scalar(g): g += 1
        if g > hi: G.put(hi, o)
        else: G.put(g, o); g += 1
    return g

def place_vm(G, lo, ld, m0=None, so=None, prev=-1):
    g = max(lo, prev + (2 if m0 else 1))
    while G.g[g] or (m0 and G.has_scalar(g - 1)): g += 1
    if m0: G.put(g - 1, m0)
    if so: G.put(g, so)
    G.put(g, ld)
    return g
```

```python
from gen_att import *

NST = 23
F_ST = 7
V_RA = 2
V_G = 248
V_GA = 250
V_FA = 251
V_FPOLL = 14
def facc(part, nt, j): return 88 + part*80 + (nt*2 + j)*4
AF_DEPTH = 6
def AF(s, j, ks): return 256 + 68 + (s % AF_DEPTH)*16 + (j*2 + ks)*4
def WF(gi, ks): return 256 + 164 + (gi % 5)*8 + ks*4
def slot(s): return (s + 5) % 8
SRD_WT = 24
S_KQ = 28; S_FQB = 29; S_WM = 30; S_WO_ = 31; S_WF_ = 32; S_PART = 33; S_AH = 34; S_AC = 44; S_AH6 = 46; S_FG = 56; S_FRT = 58; S_FCP = 0
S_FT = 76

def fin_setup():
    a = Asm(); t = S_FT
    a(f"s_add_u32 s{SRD_WT}, s{SRD_WS}, {WS_WT}")
    a(f"s_addc_u32 s{SRD_WT+1}, s{SRD_WS+1}, 0")
    a(srd_tail(SRD_WT, SZ_WT))
    a(f"s_lshr_b32 s{S_KQ}, s{S_X}, 1")
    a(f"s_sub_u32 s{t}, 15, s{S_I}")
    a(f"s_bitcmp1_b32 s{S_X}, 0")
    a(f"s_cselect_b32 s{S_FQB}, s{t}, s{S_I}")
    a(f"s_cselect_b32 s{S_FRT}, s{S_RT+2}, s{S_RT}")
    a(f"s_cselect_b32 s{S_FRT+1}, s{S_RT+3}, s{S_RT+1}")
    a(f"s_mul_i32 s{S_WM}, s{S_WAVE}, 5120")
    a(f"s_lshr_b32 s{t}, s{S_WAVE}, 1")
    a(f"s_mul_i32 s{t}, s{t}, {40960 - 10240}")
    a(f"s_add_u32 s{t}, s{t}, s{S_WM}")
    a(f"s_mul_i32 s{t+1}, s{S_HH}, 10240")
    a(f"s_add_u32 s{t}, s{t}, s{t+1}")
    a(f"s_mul_i32 s{t+1}, s{S_KQ}, {32*40960}")
    a(f"s_add_u32 s{S_WO_}, s{t}, s{t+1}")
    a(f"s_mul_i32 s{t+1}, s{S_KQ}, {14*40960}")
    a(f"s_add_u32 s{S_WF_}, s{t}, s{t+1}")
    a(f"s_add_u32 s{S_WF_}, s{S_WF_}, {128*40960}")
    a(f"s_mul_i32 s{t}, s{S_KQ}, {14*1024}")
    a(f"s_add_u32 s{t}, s{t}, {WS_H}")
    a(f"s_lshl_b32 s{t+1}, s{S_KQ}, 15")
    a(f"s_add_u32 s{t+1}, s{t+1}, {WS_CTX}")
    for j in range(2):
        a(f"s_mul_i32 s{S_AH+j}, s{S_FRT+j}, {54*1024}")
        a(f"s_add_u32 s{S_AH+j}, s{S_AH+j}, s{t}")
        a(f"s_lshl_b32 s{S_AC+j}, s{S_FRT+j}, 17")
        a(f"s_add_u32 s{S_AC+j}, s{S_AC+j}, s{t+1}")
        a(f"s_lshl_b32 s{S_FG+j}, s{S_FRT+j}, 6")
        a(f"s_add_u32 s{S_FG+j}, s{S_FG+j}, {WS_G}")
    a(f"s_cmp_eq_u32 s{S_KQ}, 3")
    a(f"s_cselect_b32 s{S_AH6}, {OOB}, s{S_AH}")
    a(f"s_cselect_b32 s{S_AH6+1}, {OOB}, s{S_AH+1}")
    a(f"s_lshl_b32 s{t}, s{S_FQB}, 2")
    a(f"s_add_u32 s{t+1}, s{t}, s{S_WAVE}")
    a(f"s_lshl_b32 s{t+1}, s{t+1}, 2")
    a(f"s_add_u32 s{t+1}, s{t+1}, s{S_KQ}")
    a(f"s_lshl_b32 s{t+1}, s{t+1}, 5")
    a(f"s_add_u32 s{S_FCP}, s{t+1}, {WS_FC}")
    a(f"s_add_u32 s{t}, s{t}, s{S_HH}")
    a(f"s_lshl_b32 s{t}, s{t}, 2")
    a(f"s_add_u32 s{t}, s{t}, s{S_WAVE}")
    a(f"s_mul_i32 s{t}, s{t}, 40960")
    a(f"s_add_u32 s{S_PART}, s{t}, {WS_PART}")
    v = [f"v_and_b32 v{V_GA}, 15, v0", f"v_lshlrev_b32 v{V_GA}, 2, v{V_GA}", f"v_and_b32 v{V_FA}, 28, v{V_GA}"]
    return [x.strip() for x in a.lines], v

class Fin:
    def __init__(self):
        self.G = Gaps()
    def w_dma(self, s):
        base, k = (S_WF_, s) if s < F_ST else (S_WO_, s - F_ST)
        out = []
        for f in range(5):
            m0 = so = None
            if f in (0, 4):
                m0 = f"s_add_u32 m0, s{S_WM}, {slot(s)*20480 + f*1024}"; so = f"s_add_u32 s{S_FT}, s{base}, {k*81920 + f*1024}"
            out.append((m0, so, Op(f"buffer_load_dwordx4 v{V_L16}, {SR(SRD_WT)}, s{S_FT} offen offset:{(f & 3)*1024}{SC} lds", tag=f"fW{s}")))
        return out
    def a_loads(self, s):
        base, k = ((S_AH6 if s == F_ST - 1 else S_AH), s) if s < F_ST else (S_AC, s - F_ST)
        out = []
        for j in range(2):
            for ks in range(2):
                so = f"s_add_u32 s{S_FT+1}, s{base+j}, {k*2048}" if ks == 0 else None
                out.append((None, so, Op(f"buffer_load_dwordx4 {R(AF(s,j,ks),4)}, v{V_L16}, {SR(SRD_WS)}, s{S_FT+1} offen offset:{ks*1024}{SC}", tag=f"fA{s}")))
        return out
    def g_loads(self):
        return [(None, None, Op(f"buffer_load_dword v{V_G+j}, v{V_GA}, {SR(SRD_WS)}, s{S_FG+j} offen{SC}", tag="g")) for j in range(2)]
    def w_reads(self, gi):
        s, nt = divmod(gi, 10)
        sl = slot(s)
        return [Op(f"ds_read_b128 {R(WF(gi,ks),4)}, v{V_RA + sl//3} offset:{(sl % 3)*20480 + ks*10240 + nt*1024}", tag=f"t{gi}") for ks in range(2)]
    def build(self, spins, flag_gap=70, poll_stage=4):
        G = self.G
        for s in range(NST):
            part = 0 if s < F_ST else 1
            first = s in (0, F_ST)
            for nt in range(10):
                for j in range(2):
                    for ks in range(2):
                        G.mfma(mfma(facc(part, nt, j), WF(s*10 + nt, ks), AF(s, j, ks), "0" if (first and ks == 0) else None))
        G.put(-1, f"v_mov_b32 v{V_RA}, v{V_L16}")
        G.put(-1, f"v_add_u32 v{V_RA+1}, 61440, v{V_L16}")
        G.put(-1, f"v_add_u32 v{V_RA+2}, 122880, v{V_L16}")
        G.put(-1, W(v=["fW1", "fA0"])); G.put(-1, "s_barrier")
        for gi in range(4):
            for o in self.w_reads(gi): G.put(-1, o)
        G.put(-1, W(l=["t0"]))
        ng = NST*10
        for gi in range(ng):
            if gi + 4 < ng:
                for o in self.w_reads(gi + 4): G.put(gi*4, o)
            if gi + 1 < ng:
                v = None
                if (gi + 1) % 10 == 0: v = [f"fA{(gi+1)//10}"]
                nb = gi + 5
                if nb < ng and nb % 20 == 0:
                    sn = nb // 10
                    v = (v or []) + [f"fW{min(sn + 1, NST - 1)}"]
                    G.put(gi*4 + 3, W(v=v, l=[f"t{gi+1}"])); G.put(gi*4 + 3, "s_barrier")
                else:
                    G.put(gi*4 + 3, W(v=v, l=[f"t{gi+1}"]))
        G.put(flag_gap, W(v=["ctxst"]))
        G.put(flag_gap, Op(flag_set(V_EP, S_FC + 1), tag="fl"))
        pl = f"buffer_load_dword v{V_FPOLL}, v{V_FA}, {SR(SRD_WS)}, s{S_FCP} offen{SC}"
        pg = poll_stage*40 + 2
        G.put(pg - 40, Op(pl, tag="cpoll"))
        G.put(pg, W(v=["cpoll"])); G.put(pg, block(spins.check(pl, flag_test(V_FPOLL)), "valu"))
        jobs = []
        for k_, x in enumerate(self.w_dma(4)): jobs.append((1 + k_*2, x))
        for s in range(NST):
            lo = s*40 - 16 if s > 0 else 10
            if s + 5 < NST:
                for k_, x in enumerate(self.w_dma(s + 5)): jobs.append((lo + 1 + (k_*8 if s > 0 else k_*2), x))
        late = 0
        for s in range(NST):
            if s + 5 < NST:
                for k_, x in enumerate(self.a_loads(s + 5)):
                    tgt = s*40 + 5 + k_*8
                    if s + 5 >= F_ST:
                        tgt = max(tgt, pg + 1 + 4*late); late += 1
                    jobs.append((tgt, x))
        prev = -1
        for tgt, (m0, so, ld) in sorted(jobs, key=lambda z: z[0]):
            prev = place_vm(G, tgt, ld, m0, so, prev)
        return self

def fin_tail(a, spins):
    t = S_FT
    sc = [f"s_mul_i32 s{t}, s{S_KQ}, 10240", f"s_add_u32 s60, s{S_PART}, s{t}", "s_add_u32 s61, s60, 4096", "s_add_u32 s62, s60, 8192",
          f"s_mul_i32 s63, s{S_HH}, 320", f"s_lshl_b32 s{t}, s{S_KQ}, 10", f"s_add_u32 s64, s{S_PART}, s{t}"]
    for it in range(3):
        b = 65 + it*3
        sc += [f"s_add_u32 s{t}, s{S_KQ}, {4*it}", f"s_cmp_ge_u32 s{t}, 5\ns_cselect_b32 s{t+1}, s{S_FRT+1}, s{S_FRT}\ns_cselect_b32 s{b}, s{S_FG+1}, s{S_FG}\ns_cselect_b32 s{t+2}, 5, 0",
               f"s_sub_u32 s{t+2}, s{t}, s{t+2}", f"s_lshl_b32 s{t+2}, s{t+2}, 6", f"s_add_u32 s{b+1}, s{t+2}, s63",
               f"s_mul_i32 s{t+1}, s{t+1}, {16*1280}", f"s_add_u32 s{b+2}, s{t+1}, s{b+1}",
               f"s_cmp_ge_u32 s{t}, 10\ns_cselect_b32 s{b+2}, {OOB}, s{b+2}"]
    sc += [f"s_cselect_b32 s75, {OOB}, s64", f"s_and_b32 s74, s{S_FP}, 0xffffff80"]
    for j in range(2):
        a(f"v_mov_b32 v{16+2*j}, v{V_G+j}"); a(f"v_mov_b32 v{17+2*j}, v{V_G+j}")
        a(f"v_sub_f32 v{20+2*j}, 1.0, v{V_G+j}"); a(f"v_sub_f32 v{21+2*j}, 1.0, v{V_G+j}")
    a("v_lshrrev_b32 v3, 4, v0")
    a("v_lshlrev_b32 v3, 4, v3")
    a(f"v_mul_u32_u24 v4, 320, v{V_GA}")
    a("v_add_u32 v4, v4, v3")
    a(f"v_and_b32 v5, 12, v{V_GA}")
    for nt in range(10):
        for j in range(2):
            for hf in (0, 2):
                rb = facc(0, nt, j) + hf
                a(f"v_pk_mul_f32 v[{rb}:{rb+1}], v[{rb}:{rb+1}], v[{20+2*j}:{21+2*j}]")
                if sc: a(sc.pop(0))
    assert not sc
    for it in range(3):
        b = 65 + it*3; r = 24 + it*8
        a(f"buffer_load_dwordx4 v[{r}:{r+3}], v3, {SR(SRD_B2)}, s{b+1} offen")
        a(f"buffer_load_dword v{r+4}, v{V_GA}, {SR(SRD_WS)}, s{b} offen{SC}")
    for j in range(2):
        for p in range(5):
            for nt in (2*p, 2*p + 1):
                for hf in (0, 2):
                    rb, ra = facc(0, nt, j) + hf, facc(1, nt, j) + hf
                    a(f"v_pk_fma_f32 v[{ra}:{ra+1}], v[{ra}:{ra+1}], v[{16+2*j}:{17+2*j}], v[{rb}:{rb+1}]")
            ra, rb = facc(1, 2*p, j), facc(1, 2*p + 1, j)
            a(cvt4(ra, ra, rb))
            f = j*5 + p
            a(f"buffer_store_dwordx4 v[{ra}:{ra+3}], v{V_L16}, {SR(SRD_WS)}, s{60 + (f >> 2)} offen offset:{(f & 3)*1024}{SC}")
    a("s_waitcnt vmcnt(10)")
    for it in range(3):
        r = 24 + it*8; d = 48 + it*8
        a(f"v_sub_f32 v{r+4}, 1.0, v{r+4}")
        for q in range(4):
            a(f"v_lshlrev_b32 v{d+2*q}, 16, v{r+q}"); a(f"v_and_b32 v{d+2*q+1}, 0xffff0000, v{r+q}")
        for q in range(8): a(f"v_mul_f32 v{d+q}, v{d+q}, v{r+4}")
    a("s_waitcnt vmcnt(0)")
    a(flag_set(V_EP, S_FP))
    pl = f"buffer_load_dword v{V_FPOLL}, v5, {SR(SRD_WS)}, s74 offen{SC}"
    a(pl); a("s_waitcnt vmcnt(0)")
    a(spins.check(pl, flag_test(V_FPOLL)))
    for it in range(3):
        for src in range(4):
            r = 88 + it*16 + src*4
            a(f"s_add_u32 s{t}, s{75 if it == 2 else 64}, {it*4096 + src*10240}")
            a(f"buffer_load_dwordx4 v[{r}:{r+3}], v{V_L16}, {SR(SRD_WS)}, s{t} offen{SC}")
    for it in range(3):
        d = 48 + it*8
        a(f"s_waitcnt vmcnt({(2-it)*4 + it})")
        for src in range(4):
            r = 88 + it*16 + src*4
            for q in range(4):
                a(f"v_lshlrev_b32 v{16+2*q}, 16, v{r+q}"); a(f"v_and_b32 v{17+2*q}, 0xffff0000, v{r+q}")
            for q in range(4): a(f"v_pk_add_f32 v[{d+2*q}:{d+2*q+1}], v[{d+2*q}:{d+2*q+1}], v[{16+2*q}:{17+2*q}]")
        a(cvt4(d, d, d + 4))
        a(f"buffer_store_dwordx4 v[{d}:{d+3}], v4, {SR(SRD_OUT)}, s{65 + it*3 + 2} offen")
    a(f"s_add_u32 s{t}, s2, s{S_WAVE}")
    a(f"s_mov_b32 s{t+1}, {WS_EP}")
    a(f"s_cmp_eq_u32 s{t}, 0")
    a(f"s_cselect_b32 s{t}, s{t+1}, {OOB}")
    a(flag_set(V_EP, t))
```

```python
from gen_common import *

W_BASE = 65536
V_AC = 2
V_AX = 4
V_W = 6; V_W1 = 7
V_AR = 8
V_T = 10
V_JD = 14
V_TMP = 16
A_ACT = 256 + 32
A_WF = 256 + 96
A_PARK = 256 + 128
S_ACTB = 60; S_WB = 61; S_ROWC = 62; S_ROWX = 66; S_COL = 70; S_W1OFF = 71; S_INC4 = 72; S_INC60 = 73; S_KV = 74; S_ST = 75
S_T0 = 76
S_RT = 80; S_FB = 84; S_AUX = 85; S_JS = 86; S_JD = 88; S_JL = 90; S_FC = 91; S_FP = 93
S_FQ = 95
S_EP = 97
S_FK = 96
SRD_W1P = 56
QSCALE = math.log2(math.e) / math.sqrt(128.0)
GK0 = 2.0 * math.sqrt(2.0 / math.pi) * math.log2(math.e)
GK1 = GK0 * 0.044715

def acc_qf(G, u):
    if G < 4: return 96 + (G*4 + u)*4
    dt = G - 4
    return (176 if dt % 2 == 0 else 32) + (u*4 + dt//2)*4
def acc_kv(G, u):
    if G < 12: return acc_qf(G, u)
    if G == 12: return 160 + u*4
    if G == 13: return 240 + u*4
    return 256 + (G - 14)*16 + u*4

def srd_tail(d, nbytes): return [f"s_mov_b32 s{d+2}, {nbytes}", f"s_mov_b32 s{d+3}, 0x20000"]

def entry(a, name):
    kernel_begin(a, name)
    a("s_cmp_lt_u32 s2, 256")
    a(f"s_cbranch_scc1 L_go")
    a("s_endpgm")
    a.label("L_go")
    for d, off in ((SRD_C, 8), (SRD_WK, 24), (SRD_WV, 32), (SRD_WS, 112), (SRD_X, 0), (SRD_WQ, 16), (SRD_W1, 56), (SRD_WO, 40),
                   (SRD_W2, 72), (SRD_B1, 64), (SRD_B2, 80), (SRD_OUT, 96), (S_JS, 88)):
        a(f"s_load_dwordx2 s[{d}:{d+1}], s[0:1], {off}")
    a("v_lshrrev_b32 v1, 6, v0")
    a("v_and_b32 v0, 63, v0")
    a(f"v_readfirstlane_b32 s{S_WAVE}, v1")
    a(f"s_and_b32 s{S_X}, s2, 7")
    a(f"s_bfe_u32 s{S_HH}, s2, 0x20003")
    a(f"s_lshr_b32 s{S_I}, s2, 5")
    a(f"s_lshl_b32 s{S_H}, s{S_X}, 2")
    a(f"s_add_u32 s{S_H}, s{S_H}, s{S_HH}")

def setup_first(a):
    a("v_lshrrev_b32 v16, 3, v0")
    a("v_and_b32 v17, 7, v0")
    a("v_lshrrev_b32 v18, 4, v0")
    a("v_xor_b32 v19, v17, v18")
    a("v_xor_b32 v20, 4, v19")
    a("v_lshlrev_b32 v19, 4, v19")
    a("v_lshlrev_b32 v20, 4, v20")
    a(f"v_lshl_add_u32 v{V_AC}, v16, 10, v19")
    a(f"v_lshl_add_u32 v{V_AC+1}, v16, 10, v20")
    a(f"v_add_u32 v{V_AC+1}, {8*1024}, v{V_AC+1}")
    a("v_and_b32 v21, 3, v16")
    a("v_lshrrev_b32 v22, 2, v16")
    a("v_lshl_add_u32 v21, v22, 3, v21")
    a(f"s_lshl_b32 s{S_T0}, s{S_WAVE}, 4")
    a(f"v_add_u32 v21, s{S_T0}, v21")
    a("v_lshlrev_b32 v22, 1, v18")
    a("v_xor_b32 v24, v17, v22")
    a("v_lshlrev_b32 v22, 4, v24")
    a(f"v_lshl_add_u32 v{V_W}, v21, 13, v22")
    a(f"s_lshl_b32 s{S_ACTB}, s{S_WAVE}, 13")
    a(f"s_lshr_b32 s{S_T0}, s{S_WAVE}, 1")
    a(f"s_lshl_b32 s{S_T0}, s{S_T0}, 12")
    a(f"s_and_b32 s{S_T0+1}, s{S_WAVE}, 1")
    a(f"s_lshl_b32 s{S_T0+1}, s{S_T0+1}, 10")
    a(f"s_add_u32 s{S_WB}, s{S_T0}, s{S_T0+1}")
    a(f"s_add_u32 s{S_WB}, s{S_WB}, {W_BASE}")
    a(f"s_lshl_b32 s{S_COL}, s{S_H}, 8")
    a(f"s_lshl_b32 s{S_T0}, s{S_I}, 2")
    a(f"s_add_u32 s{S_T0}, s{S_T0}, s{S_WAVE}")
    a(f"s_lshl_b32 s{S_ROWC}, s{S_T0}, 16")
    for u in range(1, 4): a(f"s_add_u32 s{S_ROWC+u}, s{S_ROWC}, {u*16*1024}")
    a(f"s_lshl_b32 s{S_T0+1}, s{S_H}, 5")
    a(f"s_add_u32 s{S_T0}, s{S_T0}, s{S_T0+1}")
    a(f"s_lshl_b32 s{S_KV}, s{S_T0}, 15")
    a(srd_tail(SRD_C, SZ_C) + srd_tail(SRD_WK, SZ_WU) + srd_tail(SRD_WV, SZ_WU) + srd_tail(SRD_WS, WS_BYTES))
    a("s_waitcnt lgkmcnt(0)")

def setup_rest(a):
    t = S_T0
    a(f"s_add_u32 s0, s{SRD_WS}, {WS_EP}")
    a(f"s_addc_u32 s1, s{SRD_WS+1}, 0")
    a(f"s_load_dword s{S_EP}, s[0:1], 0")
    a(f"v_lshlrev_b32 v{V_L16}, 4, v0")
    a("v_mul_u32_u24 v23, 1280, v16")
    a(f"v_add_u32 v{V_AX}, v23, v19")
    a(f"v_add_u32 v{V_AX+1}, v23, v20")
    a(f"v_add_u32 v{V_AX+1}, {8*1280}, v{V_AX+1}")
    a("v_and_b32 v25, 1, v18")
    a("v_lshlrev_b32 v25, 2, v25")
    a("v_xor_b32 v25, v25, v17")
    a(f"v_lshl_add_u32 v{V_JD}, v25, 4, v23")
    a(f"s_lshl_b32 s{t}, s{S_I}, 3")
    a(f"s_add_u32 s{S_RT}, s{t}, s{S_WAVE}")
    a(f"s_sub_u32 s{S_RT+1}, s{t}, s{S_WAVE}")
    a(f"s_add_u32 s{S_RT+1}, s{S_RT+1}, 7")
    a(f"s_sub_u32 s{t}, 120, s{t}")
    a(f"s_add_u32 s{S_RT+2}, s{t}, s{S_WAVE}")
    a(f"s_sub_u32 s{S_RT+3}, s{t}, s{S_WAVE}")
    a(f"s_add_u32 s{S_RT+3}, s{S_RT+3}, 7")
    for u in range(4): a(f"s_mul_i32 s{S_ROWX+u}, s{S_RT+u}, {16*1280}")
    a(f"s_mul_i32 s{t}, s{S_I}, 5")
    a(f"s_sub_u32 s{t+1}, s{S_X}, s{t}")
    a(f"s_and_b32 s{t+1}, s{t+1}, 7")
    a(f"s_lshl_b32 s{S_FB}, s{S_HH}, 3")
    a(f"s_add_u32 s{S_FB}, s{S_FB}, s{S_X}")
    a(f"s_add_u32 s{t+2}, s{t+1}, 19")
    a(f"s_cmp_lt_u32 s{t+1}, 5")
    a(f"s_cselect_b32 s{S_AUX}, 1, 0")
    a(f"s_cmp_eq_u32 s{S_HH}, 3")
    a(f"s_cselect_b32 s{S_FB}, s{t+2}, s{S_FB}")
    a(f"s_cselect_b32 s{S_AUX}, s{S_AUX}, 0")
    a(f"s_lshl_b32 s{S_W1OFF}, s{S_FB}, 7")
    a("v_mul_u32_u24 v23, 3456, v21")
    a(f"v_add_u32 v{V_W1}, v23, v22")
    a("v_and_b32 v23, 1, v21")
    a("v_cmp_eq_u32 vcc, v23, v24")
    a("v_and_b32 v23, 0xfe, v21")
    a("v_lshlrev_b32 v23, 1, v23")
    a(f"v_mov_b32 v25, {OOB}")
    a("v_cndmask_b32 v23, v25, v23, vcc")
    a(f"s_mov_b64 s[{SRD_W1P}:{SRD_W1P+1}], s[{SRD_W1}:{SRD_W1+1}]")
    a(srd_tail(SRD_W1P, SZ_W1))
    a(f"s_mov_b32 s{SRD_W1+2}, {SZ_W1}")
    a(f"s_mov_b32 s{S_INC4}, {4*3456}")
    a(f"s_mov_b32 s{S_INC60}, {60*3456}")
    a(f"s_cmp_lg_u32 s{S_AUX}, 0")
    a("s_cselect_b64 vcc, -1, 0")
    a(f"s_cselect_b64 s[{SRD_W1}:{SRD_W1+1}], s[{S_JS}:{S_JS+1}], s[{SRD_W1}:{SRD_W1+1}]")
    a(f"s_cmov_b32 s{SRD_W1+2}, 1280")
    a(f"s_cmov_b32 s{S_INC4}, 8")
    a(f"s_cmov_b32 s{S_INC60}, 120")
    a(f"s_cmov_b32 s{S_W1OFF}, 0")
    a(f"s_mov_b32 s{SRD_W1+3}, 0x20000")
    a(f"v_cndmask_b32 v{V_W1}, v{V_W1}, v23, vcc")
    a(f"s_sub_u32 s{S_W1OFF}, s{S_W1OFF}, s{S_INC60}")
    a("v_and_b32 v21, 15, v0")
    a("v_lshrrev_b32 v22, 1, v21")
    a("v_xor_b32 v22, v22, v18")
    a("v_lshlrev_b32 v22, 4, v22")
    a("v_lshl_add_u32 v21, v21, 7, v22")
    a(f"v_add_u32 v{V_AR}, s{S_ACTB}, v21")
    a(f"v_xor_b32 v{V_AR+1}, 64, v{V_AR}")
    a("v_bfe_u32 v21, v0, 2, 3")
    a("v_lshrrev_b32 v22, 5, v0")
    a("v_lshlrev_b32 v22, 10, v22")
    a("v_lshl_add_u32 v22, v21, 7, v22")
    a("v_and_b32 v23, 1, v0")
    a("v_lshl_add_u32 v22, v23, 3, v22")
    a(f"v_add_u32 v22, {W_BASE}, v22")
    a("v_and_b32 v21, 6, v21")
    a("v_bfe_u32 v23, v0, 1, 1")
    a("v_or_b32 v21, v21, v23")
    for n in range(4):
        a(f"v_xor_b32 v23, {2*n}, v21")
        a(f"v_lshl_add_u32 v{V_T+n}, v23, 4, v22")
    a(srd_tail(SRD_X, SZ_X) + srd_tail(SRD_WQ, SZ_WQ) + srd_tail(SRD_WO, SZ_WO) + srd_tail(SRD_W2, SZ_W2) + srd_tail(SRD_B1, 3456)
      + srd_tail(SRD_B2, 1280) + srd_tail(SRD_OUT, SZ_OUT))
    a(f"s_lshl_b32 s{t}, s2, 2")
    a(f"s_add_u32 s{t}, s{t}, s{S_WAVE}")
    for jb in range(2):
        if jb: a(f"s_add_u32 s{t}, s{t}, 1024")
        a(f"s_mul_i32 s{t+1}, s{t}, 52429")
        a(f"s_lshr_b32 s{t+1}, s{t+1}, 19")
        a(f"s_mul_i32 s{t+2}, s{t+1}, {40960 - 1280}")
        a(f"s_lshl_b32 s{t+3}, s{t}, 7")
        a(f"s_add_u32 s{S_JS+jb}, s{t+2}, s{t+3}")
        a(f"s_lshl_b32 s{S_JD+jb}, s{t}, 12")
        a(f"s_add_u32 s{S_JD+jb}, s{S_JD+jb}, {WS_WT}")
    a(f"s_sub_u32 s{t+1}, s{S_JS+1}, {SZ_WO}")
    a(f"s_cmp_lt_u32 s{t}, 1280")
    a(f"s_cselect_b64 s[{SRD_W2}:{SRD_W2+1}], s[{SRD_WO}:{SRD_WO+1}], s[{SRD_W2}:{SRD_W2+1}]")
    a(f"s_cmov_b32 s{SRD_W2+2}, {SZ_WO}")
    a(f"s_cselect_b32 s{S_JS+1}, s{S_JS+1}, s{t+1}")
    a(f"s_cmp_ge_u32 s{t}, 1820")
    a(f"s_cmov_b32 s{S_JD+1}, {OOB}")
    a(f"s_lshl_b32 s{S_JL}, s{S_WAVE}, 13")
    a(f"s_add_u32 s{S_JL}, s{S_JL}, 131072")
    a(f"s_lshl_b32 s{t}, s{S_WAVE}, 5")
    a(f"s_add_u32 s{t}, s{t}, s{S_H}")
    a(f"s_lshl_b32 s{t}, s{t}, 2")
    a(f"s_add_u32 s{t}, s{t}, {WS_FC}")
    a(f"s_lshl_b32 s{t+1}, s{S_I}, 9")
    a(f"s_add_u32 s{S_FC}, s{t}, s{t+1}")
    a(f"s_sub_u32 s{S_FC+1}, s{t}, s{t+1}")
    a(f"s_add_u32 s{S_FC+1}, s{S_FC+1}, {15*512}")
    a(f"s_sub_u32 s{t}, 15, s{S_I}")
    a(f"s_bitcmp1_b32 s{S_X}, 0")
    a(f"s_cselect_b32 s{t}, s{t}, s{S_I}")
    a(f"s_lshl_b32 s{t}, s{t}, 2")
    a(f"s_add_u32 s{t}, s{t}, s{S_HH}")
    a(f"s_lshl_b32 s{t}, s{t}, 2")
    a(f"s_add_u32 s{t}, s{t}, s{S_WAVE}")
    a(f"s_lshl_b32 s{t}, s{t}, 7")
    a(f"s_lshr_b32 s{t+1}, s{S_X}, 1")
    a(f"s_lshl_b32 s{t+1}, s{t+1}, 2")
    a(f"s_add_u32 s{t}, s{t}, s{t+1}")
    a(f"s_add_u32 s{S_FP}, s{t}, {WS_FP}")
    a(f"s_lshr_b32 s{S_FK}, s{S_KV}, 13")
    a(f"s_add_u32 s{S_FK}, s{S_FK}, {WS_FK}")
    a(f"s_lshl_b32 s{S_FQ}, s2, 2")
    a(f"s_add_u32 s{S_FQ}, s{S_FQ}, {WS_FQ}")
    a(f"s_cmp_eq_u32 s{S_WAVE}, 0")
    a(f"s_cselect_b32 s{S_FQ}, s{S_FQ}, {OOB}")
    a(f"s_lshl_b32 s{t}, s2, 2")
    a(f"s_add_u32 s{t}, s{t}, s{S_WAVE}")
    a("v_lshlrev_b32 v23, 7, v0")
    a(f"v_mov_b32 v25, {OOB}")
    a(f"s_mul_i32 s{t+1}, s{t}, {20*128}")
    a(f"s_mul_i32 s{t+2}, s{t}, {17*128}")
    a(f"v_add_u32 v26, s{t+1}, v23")
    a(f"v_add_u32 v27, s{t+2}, v23")
    a(f"s_lshr_b32 s{t}, s2, 3")
    a(f"s_lshl_b32 s{t}, s{t}, 2")
    a(f"s_add_u32 s{t}, s{t}, s{S_WAVE}")
    a(f"s_mul_i32 s{t}, s{t}, {5*8192}")
    a(f"s_lshl_b32 s{t+1}, s{S_X}, 10")
    a(f"s_add_u32 s{t}, s{t}, s{t+1}")
    a("v_lshlrev_b32 v28, 13, v16")
    a("v_lshl_add_u32 v28, v17, 7, v28")
    a(f"v_add_u32 v28, s{t}, v28")
    a("v_mul_u32_u24 v29, 1280, v0")
    for v, n in ((26, 20), (27, 17), (28, 40), (29, 32)):
        a(f"v_cmp_gt_u32 vcc, {n}, v0")
        a("s_nop 1")
        a(f"v_cndmask_b32 v{v}, v25, v{v}, vcc")
    a("s_waitcnt lgkmcnt(0)")
    a(f"s_mul_i32 s{S_EP}, s{S_EP}, 0x9e3779b5")
    a(f"s_add_u32 s{S_EP}, s{S_EP}, 0x7f4a7c15")
def warm_ops():
    return [Op(f"buffer_load_dword v31, v{v}, {SR(d)}, {so} offen", tag="warm")
            for v, d, so in ((26, SRD_X, 0), (28, SRD_WQ, 0), (27, SRD_W1P, 0), (29, SRD_WO, f"s{S_JS}"), (29, SRD_W2, f"s{S_JS+1}"))]
def flag_set(v, s): return f"buffer_store_dword v{v}, off, {SR(SRD_WS)}, s{s}{SC}"
def flag_test(v, n=1):
    o = []
    for i in range(1, n): o += [f"v_xor_b32 v{v+i}, s{S_EP}, v{v+i}"]
    o += [f"v_xor_b32 v{v}, s{S_EP}, v{v}"]
    if n == 4: o += [f"v_or3_b32 v{v}, v{v}, v{v+1}, v{v+2}", f"v_or_b32 v{v}, v{v}, v{v+3}"]
    return o + [f"v_cmp_eq_u32 vcc, 0, v{v}", "s_cmp_eq_u64 vcc, -1"]

NKV = 8; NQF = 10; NS = NKV + NQF
class Proj:
    def __init__(self):
        self.G = Gaps(); self.tmp = 0; self.gap0 = []
    def NT(self, s): return 16 if s < NKV else 12
    def stmp(self):
        self.tmp = (self.tmp + 1) % 4
        return S_T0 + self.tmp
    def w_dma(self, s):
        out = []
        kv = s < NKV; k = s if kv else s - NKV
        for cg in range(4 if kv else 3):
            for e in range(2):
                m0 = f"s_add_u32 m0, s{S_WB}, {(s%3)*32768 + cg*8192 + e*2048}"
                if not kv and cg == 0:
                    t, vreg, srd_ = S_W1OFF, V_W1, SRD_W1
                    so = f"s_add_u32 s{t}, s{t}, s{S_INC4 if e else S_INC60}"
                else:
                    t = self.stmp(); vreg = V_W
                    srd_, half = ((SRD_WK, SRD_WV)[cg >> 1], cg & 1) if kv else (SRD_WQ, cg - 1)
                    so = f"s_add_u32 s{t}, s{S_COL}, {half*128 + (64*k + 4*e)*8192}"
                out.append((m0, so, Op(f"buffer_load_dwordx4 v{vreg}, {SR(srd_)}, s{t} offen lds", tag=f"W{s}")))
        return out
    def a_dma(self, s):
        out = []
        srd_, vreg, srow, k = (SRD_C, V_AC, S_ROWC, s) if s < NKV else (SRD_X, V_AX, S_ROWX, s - NKV)
        for t8 in range(8):
            t = self.stmp()
            out.append((f"s_add_u32 m0, s{S_ACTB}, {(s%2)*32768 + t8*1024}",
                        f"s_add_u32 s{t}, s{srow + (t8>>1)}, {128*k}",
                        Op(f"buffer_load_dwordx4 v{vreg + (t8&1)}, {SR(srd_)}, s{t} offen lds", tag=f"A{s}")))
        return out
    def act_reg(self, s, u, ks): return A_ACT + (s % 2)*32 + (u*2 + ks)*4
    def a_read(self, s, u, ks):
        return Op(f"ds_read_b128 {R(self.act_reg(s,u,ks),4)}, v{V_AR+ks} offset:{(s%2)*32768 + 2048*u}", tag=f"ar{s}_{u}")
    def wf_reg(self, gi, ks): return A_WF + (gi % 4)*8 + ks*4
    def t_reads(self, Gi, gi):
        return [Op(f"ds_read_b64_tr_b16 {R(self.wf_reg(gi,ks)+2*e,2)}, v{V_T+(Gi&3)} offset:{(Gi>>2)*8192 + ks*4096 + e*2048}", tag=f"t{gi}")
                for ks in range(2) for e in range(2)]
    def gap(self, s, Gi=0, j=0): return self.gap0[self.gstart[(s, Gi)]] + j
    def bar_gap(self, s): return self.gap(s, self.NT(s) - 2) - 1
    def build(self, mid_ops):
        G = self.G; n = NS
        groups = []
        for s in range(n):
            kv = s < NKV
            for Gi in range(self.NT(s)):
                gi = len(groups); groups.append((s, Gi)); self.gap0.append(len(G.m))
                for u in range(4):
                    for ks in range(2):
                        d = (acc_kv if kv else acc_qf)(Gi, u); w = self.wf_reg(gi, ks); x = self.act_reg(s, u, ks)
                        c = "0" if (s in (0, NKV) and ks == 0) else None
                        G.mfma(mfma(d, x, w, c) if (kv and Gi >= 8) else mfma(d, w, x, c))
        self.gstart = {g: i for i, g in enumerate(groups)}
        ng = len(groups); g0 = lambda gi: self.gap0[gi]
        def emit_pre(trip):
            for m0, so, ld in trip:
                G.put(-1, m0); G.put(-1, so); G.put(-1, ld)
        emit_pre(self.w_dma(0)); emit_pre(self.a_dma(0)); emit_pre(self.w_dma(1)); emit_pre(self.a_dma(1))
        for o in mid_ops: G.put(-1, o)
        G.put(-1, W(v=["W0", "A0"])); G.put(-1, "s_barrier")
        for u in range(4):
            for ks in range(2): G.put(-1, self.a_read(0, u, ks))
        for o in self.t_reads(0, 0) + self.t_reads(1, 1): G.put(-1, o)
        G.put(-1, W(l=["t0"]))
        self.bar_wait = {}
        for gi, (s, Gi) in enumerate(groups):
            if gi + 2 < ng:
                for j, o in enumerate(self.t_reads(groups[gi + 2][1], gi + 2)): G.put(g0(gi) + (j & 2), o)
            last_gap = g0(gi) + 7
            if gi + 3 < ng and groups[gi + 3][1] == 0:
                sn = groups[gi + 3][0]
                delta = 32768 if sn % 3 else -65536
                for n_ in range(4):
                    G.put(g0(gi) + (4, 4, 6, 6)[n_], f"v_add_u32 v{V_T+n_}, {delta & 0xffffffff}, v{V_T+n_}")
                self.bar_wait[s] = W(v=[f"W{sn}"], l="*")
                G.put(last_gap, self.bar_wait[s]); G.put(last_gap, "s_barrier")
            elif gi + 1 < ng:
                G.put(last_gap, W(l=[f"t{gi+1}"]))
        jobs = []
        for s in range(n):
            NT = self.NT(s); base = self.gstart[(s, 0)]
            ga = 2 if NT >= 16 else 0
            if s + 1 < n:
                G.put(g0(base + ga) + 4, W(v=[f"A{s+1}"]))
                for u in range(4):
                    for ks in range(2): G.put(g0(base + ga + u) + 4, self.a_read(s + 1, u, ks))
            lo = base - 2 if s > 0 else base
            ngap = NT*8 - (0 if s > 0 else 16)
            jl = []
            if s == 0: jl += [(0, x) for x in self.a_dma(2)]
            if s + 2 < n: jl += [(g0(lo), x) for x in self.w_dma(s + 2)]
            if s + 3 < n: jl += [(g0(base + ga + (t >> 1) + 3), x) for t, x in enumerate(self.a_dma(s + 3))]
            for k_, (e, x) in enumerate(jl): jobs.append((e, g0(lo) + (k_ * ngap) // max(14, len(jl)), x))
        prev = -1
        for e, sp, (m0, so, ld) in jobs:
            prev = place_vm(G, max(e + 1, sp), ld, m0, so, prev)
        return self
    def last_mfma(self, s, Gi, u): return self.gap(s, Gi, u*2 + 1)

class Tail:
    def __init__(self, gaps):
        self.G = gaps; self.cur = 0; self.post = []
    def add(self, x, earliest=0):
        x = mk(x)
        if self.post: self.post.append(x); return None
        lo = max(self.cur, earliest)
        g = self.G.fit(lo, x) if lo < len(self.G.m) else None
        if g is None: self.post.append(x); return None
        self.cur = g
        return g

def cvt4(d, ra, rb):
    return [f"v_cvt_pk_bf16_f32 v{d}, v{ra}, v{ra+1}", f"v_cvt_pk_bf16_f32 v{d+1}, v{ra+2}, v{ra+3}",
            f"v_cvt_pk_bf16_f32 v{d+2}, v{rb}, v{rb+1}", f"v_cvt_pk_bf16_f32 v{d+3}, v{rb+2}, v{rb+3}"]

def kv_epilogue(P, first=26, step=18, ndirect=6, sc=SC):
    G = P.G; s = NKV - 1
    frags = []
    for kp in range(4):
        for u in range(4): frags.append((acc_kv(2*kp, u), acc_kv(2*kp + 1, u), P.last_mfma(s, 2*kp + 1, u), ((2*kp, u), (2*kp + 1, u)), (u*4 + kp)*1024))
    for dt in range(8):
        for kb in range(2): frags.append((acc_kv(8 + dt, 2*kb), acc_kv(8 + dt, 2*kb + 1), P.last_mfma(s, 8 + dt, 2*kb + 1), ((8 + dt, 2*kb), (8 + dt, 2*kb + 1)), 16384 + (kb*8 + dt)*1024))
    home = []; npark = 0
    for n, (ra, rb, rdy, grp, off) in enumerate(frags):
        Gi = grp[0][0]
        if n < ndirect or Gi in (12, 13): home.append(ra)
        elif Gi >= 14: home.append(acc_kv(Gi - 2, grp[1][1]))
        else: home.append(A_PARK + 4*npark); npark += 1
    sg = []; prev = -1
    for n, f in enumerate(frags):
        ld = Op(f"buffer_store_dwordx4 {R(home[n],4)}, v{V_L16}, {SR(SRD_WS)}, s{S_ST} offen{sc}", tag="KVst")
        prev = place_vm(G, P.gap(s) + first + step*n, ld, None, f"s_add_u32 s{S_ST}, s{S_KV}, {WS_KV + f[4]}", prev)
        sg.append(prev)
    T = Tail(G)
    for n, (ra, rb, rdy, grp, off) in enumerate(frags):
        e = rdy + 8
        if ra >= 256:
            tmp = V_TMP + 8*(n % 2)
            for j in range(4): T.add(f"v_accvgpr_read_b32 v{tmp+j}, {R(ra+j)}", e)
            for j in range(4): T.add(f"v_accvgpr_read_b32 v{tmp+4+j}, {R(rb+j)}")
            for o in cvt4(home[n], tmp, tmp + 4): g = T.add(o)
        elif home[n] >= 256:
            for o in cvt4(ra, ra, rb): T.add(o, e)
            for j in range(4): g = T.add(f"v_accvgpr_write_b32 {R(home[n]+j)}, v{ra+j}")
        else:
            for o in cvt4(ra, ra, rb): g = T.add(o, e)
        assert g < sg[n], ("store before pack", n, g, sg[n])
        for (Gi, u) in grp:
            if Gi < 12:
                need = P.gap(NKV, Gi, 2*u) - 1
                assert g <= need - 1, ("acc reuse", n, g, need)
                if home[n] == acc_kv(Gi, u): assert sg[n] <= need - 1, ("acc reuse by store", n, sg[n], need)
    assert not T.post
    P.kv_pack_end = T.cur
    return sg[-1]

def wt_addr(P, e):
    T = Tail(P.G)
    for o in ["v_bfe_u32 v16, v0, 2, 3", "v_lshrrev_b32 v17, 5, v0", "v_lshlrev_b32 v17, 10, v17", "v_lshl_add_u32 v17, v16, 7, v17",
              f"v_add_u32 v17, s{S_JL}, v17", "v_bfe_u32 v16, v0, 3, 1", "v_lshlrev_b32 v16, 2, v16", "v_and_b32 v18, 3, v0",
              "v_or_b32 v16, v16, v18", "v_lshl_add_u32 v2, v16, 4, v17", "v_xor_b32 v3, 64, v2"]: T.add(o, e)
def wt_dma():
    return [(f"s_add_u32 m0, s{S_JL}, {jb*4096 + q*1024}", f"s_add_u32 s{S_W1OFF}, s{S_JS+jb}, {q*8*1280}",
             f"buffer_load_dwordx4 v{V_JD}, {SR((SRD_WO, SRD_W2)[jb])}, s{S_W1OFF} offen lds") for jb in range(2) for q in range(4)]
A_WT = 128
def wt_reads():
    return [f"ds_read_b64_tr_b16 a[{A_WT+16*jb+4*n+2*e}:{A_WT+16*jb+4*n+2*e+1}], v{2+(n>>1)} offset:{jb*4096 + e*2048 + 8*(n&1)}"
            for jb in range(2) for n in range(4) for e in range(2)]
def wt_stores():
    return [f"buffer_store_dwordx4 a[{A_WT+16*jb+4*n}:{A_WT+16*jb+4*n+3}], v{V_L16}, {SR(SRD_WS)}, s{S_JD+jb} offen offset:{n*1024}{SC}"
            for jb in range(2) for n in range(4)]

V_BIAS = 160
def bias_ops(P, s):
    G = P.G; T = Tail(G)
    T.add(f"v_lshrrev_b32 v23, 4, v0", P.gap(s)); g = T.add(f"v_lshlrev_b32 v23, 3, v23")
    prev = g
    for ft in range(4):
        prev = place_vm(G, prev + 2, Op(f"buffer_load_dwordx2 v[{240+2*ft}:{241+2*ft}], v23, {SR(SRD_B1)}, s{S_ST} offen offset:{32*ft}", tag="bias"),
                        None, f"s_lshl_b32 s{S_ST}, s{S_FB}, 7", prev)
    return prev

def q_epilogue(a):
    rd = wt_reads(); st = wt_stores()
    a(f"v_mov_b32 v16, {f2h(QSCALE)}"); a("v_mov_b32 v17, v16")
    for u in range(4):
        for kp in range(4):
            n = u*4 + kp
            if n < 4: a(rd[4*n:4*n+4])
            if n == 6: a("s_waitcnt lgkmcnt(0)")
            if 6 <= n < 14: a(st[n - 6])
            ra, rb = acc_qf(4 + 2*kp, u), acc_qf(5 + 2*kp, u)
            for r in (ra, ra + 2, rb, rb + 2): a(f"v_pk_mul_f32 v[{r}:{r+1}], v[{r}:{r+1}], v[16:17]")
            a(cvt4(ra, ra, rb))

def h_epilogue(a):
    sc = [f"s_lshl_b32 s{S_ST}, s{S_FB}, 11", f"s_add_u32 s{S_ST}, s{S_ST}, {WS_H}"]
    for u in range(4): sc += [f"s_mul_i32 s{S_T0+u}, s{S_RT+u}, {54*1024}", f"s_add_u32 s{S_T0+u}, s{S_T0+u}, s{S_ST}"]
    for ft in range(4):
        for hf in range(2):
            a(f"v_lshlrev_b32 v{V_BIAS+4*ft+2*hf}, 16, v{240+2*ft+hf}")
            a(f"v_and_b32 v{V_BIAS+4*ft+2*hf+1}, 0xffff0000, v{240+2*ft+hf}")
            a(sc.pop(0))
    a(f"v_mov_b32 v16, {f2h(-GK1)}"); a("v_mov_b32 v17, v16"); a(sc.pop(0))
    a(f"v_mov_b32 v18, {f2h(-GK0)}"); a("v_mov_b32 v19, v18"); a(sc.pop(0))
    a("v_mov_b32 v20, 1.0"); a("v_mov_b32 v21, 1.0")
    dm = wt_dma()
    def dma_():
        if dm: a(list(dm.pop(0)))
    for u in range(4):
        for kb in range(2):
            regs = [acc_qf(2*kb + t, u) + 2*hf for t in range(2) for hf in range(2)]
            bias = [V_BIAS + 4*(2*kb + t) + 2*hf for t in range(2) for hf in range(2)]
            T = [24 + 2*i for i in range(4)]
            p = lambda r: f"v[{r}:{r+1}]"
            for r, b_ in zip(regs, bias): a(f"v_pk_add_f32 {p(r)}, {p(r)}, {p(b_)}")
            for r, t in zip(regs, T): a(f"v_pk_mul_f32 {p(t)}, {p(r)}, {p(r)}")
            dma_()
            for r, t in zip(regs, T): a(f"v_pk_fma_f32 {p(t)}, {p(t)}, v[16:17], v[18:19]")
            for r, t in zip(regs, T): a(f"v_pk_mul_f32 {p(t)}, {p(t)}, {p(r)}")
            for t in T: a(f"v_exp_f32 v{t}, v{t}"); a(f"v_exp_f32 v{t+1}, v{t+1}")
            dma_()
            for t in T: a(f"v_pk_add_f32 {p(t)}, {p(t)}, v[20:21]")
            for t in T: a(f"v_rcp_f32 v{t}, v{t}"); a(f"v_rcp_f32 v{t+1}, v{t+1}")
            for r, t in zip(regs, T): a(f"v_pk_mul_f32 {p(t)}, {p(t)}, {p(r)}")
            d = regs[0]
            for i, t in enumerate(T): a(f"v_cvt_pk_bf16_f32 v{d+i}, v{t}, v{t+1}")
            a(f"buffer_store_dwordx4 v[{d}:{d+3}], v{V_L16}, {SR(SRD_WS)}, s{S_T0+u} offen offset:{kb*1024}{SC}")
    a("s_waitcnt vmcnt(5)")

def gate_epilogue(a):
    for d in wt_dma(): a(list(d))
    a("v_lshlrev_b32 v16, 2, v0")
    a(f"v_mov_b32 v17, {OOB}")
    a("v_cmp_gt_u32 vcc, 16, v0")
    for u in range(4):
        a(f"s_lshl_b32 s{S_T0+u}, s{S_RT+u}, 6")
        a(f"s_add_u32 s{S_T0+u}, s{S_T0+u}, {WS_G}")
    a("v_cndmask_b32 v16, v17, v16, vcc")
    r = [acc_qf(0, u) for u in range(4)]
    for x in r: a(f"v_permlane32_swap_b32 v{x+1}, v{x+2}")
    a("s_nop 1")
    for x in r: a(f"v_add_f32 v{x}, v{x}, v{x+2}")
    for x in r: a(f"v_mul_f32 v{x}, {f2h(-math.log2(math.e))}, v{x}")
    for x in r: a(f"v_exp_f32 v{x}, v{x}")
    for x in r: a(f"v_add_f32 v{x}, 1.0, v{x}")
    for x in r: a(f"v_rcp_f32 v{x}, v{x}")
    a("s_nop 0")
    for u, x in enumerate(r): a(f"buffer_store_dword v{x}, v16, {SR(SRD_WS)}, s{S_T0+u} offen{SC}")
    a("s_waitcnt vmcnt(4)")
```

```python
import sys, json
from gen_fin import *

def flat(ops): return resolve(ops)[0]

def gen(name, stamps, opt):
    a = Asm(); spins = Spins()
    entry(a, name)
    setup_first(a)
    stamps.stamp(a, "start")
    m = Asm(); setup_rest(m)
    P = Proj().build([Op(x.strip()) for x in m.lines])
    G = P.G
    if not opt.get('nowarm'):
        for k, o in enumerate(warm_ops()): place_vm(G, P.gap(1) + 40 + opt.get('warmstep', 100)*k, o)
    last_st = kv_epilogue(P, **opt.get('kv', {}))
    wt_addr(P, P.gap(11))
    bias_ops(P, 16)
    T = Tail(G)
    T.add(f"v_mov_b32 v20, s{S_EP}", P.gap(12)); T.add("v_and_b32 v21, 31, v0"); T.add("v_lshlrev_b32 v21, 2, v21")
    def free_gap(g):
        while G.g[g]: g += 1
        return g
    g = free_gap(last_st + opt.get('kvflag', 110)); G.put(g, W(v=["KVst"])); G.put(g, Op(flag_set(20, S_FK), tag="fl"))
    place_scalars(G, [f"s_and_b32 s{S_FK}, s{S_FK}, 0xffffff80"] + att_setup_s(), max(g + 1, P.gap(15)), P.gap(16) - 1)
    pl = f"buffer_load_dword v22, v21, {SR(SRD_WS)}, s{S_FK} offen{SC}"
    place_vm(G, P.gap(16), Op(pl, tag="p1"))
    g = free_gap(P.bar_gap(16) + 1); G.put(g, W(v=["p1"])); G.put(g, block(spins.check(pl, flag_test(22)), "valu"))
    ge = att_prefetch0(G, g + 1)
    print("att prefetch ends at gap", ge, "of", len(G.m), "overflow", G.overflow())
    stamps.put(G, -1, "mfma0")
    for s_ in (4, 7, 8, 10, 12, 14, 16): stamps.put(G, P.gap(s_) - 1, f"stage{s_}")
    lines, vm, _ = resolve(G.ops() + [W(v=["bias"])])
    a(lines)
    stamps.stamp(a, "qf_mm")
    pre = list(a.lines)
    n0 = len(a.lines)
    a("s_barrier")
    a(f"s_cmp_lg_u32 s{S_AUX}, 0")
    a("s_cbranch_scc1 L_gate")
    h_epilogue(a)
    hpath = a.lines[n0:]
    a.label("L_qepi")
    n0 = len(a.lines)
    q_epilogue(a)
    att_setup_v(a)
    stamps.stamp(a, "att0")
    a("s_barrier")
    for i in range(8): a(kread(0, i).text)
    a(k_pre()); a("s_nop 0")
    for j in range(4): a(dma("K", j).text)
    a(k_post())
    first = a.lines[n0:]
    head = flat(head_ops())
    st = [full_step(p, poll=(p == 1)) for p in range(4)]
    place_scalars(st[3], [f"s_sub_u32 s{S_PER}, s{S_PER}, 1", f"s_cmp_lg_u32 s{S_PER}, 0"], 16 + 12, 16 + 16)
    for p in range(4): assert st[p].overflow() == 0, (p, st[p].overflow())
    ops = [g.ops() for g in st]
    tr = flat(ops[1] + ops[2] + ops[3] + ops[0])
    n1, n2, n3 = len(ops[1]), len(ops[2]), len(ops[3])
    s1, s2, s3, s0 = tr[:n1], tr[n1:n1+n2], tr[n1+n2:n1+n2+n3], tr[n1+n2+n3:]
    c0 = lambda j, kt: CM(0, kt) if j == 0 else NM(1)
    c1 = lambda j, kt: CM(0, 2 + kt) if j == 0 else NM(1)
    d0l = flat(ops[3] + full_step(0, c0).ops())[n3:]
    d1l = flat(full_step(1, c1).ops() + diag_tail().ops())
    a.label("L_head")
    a(head)
    a(f"s_cmp_eq_u32 s{S_QB}, 0")
    a("s_cbranch_scc1 L_B")
    a("s_branch L_A")
    a(".p2align 6")
    a.label("L_loop")
    a(s0)
    a.label("L_A")
    a(s1); a(s2); a(s3)
    a("s_cbranch_scc1 L_loop")
    a(f"s_cmp_lg_u32 s{S_BLK}, 0")
    a("s_cbranch_scc1 L_last")
    a(d0l)
    a.label("L_B")
    a(d1l)
    n0 = len(a.lines)
    a(flat(epilogue("1")))
    fs, fv = fin_setup()
    mv = [f"v_mov_b64 v[{176+r}:{177+r}], v[{QNEXT+r}:{QNEXT+r+1}]" for r in range(0, 32, 2)] + fv
    fs += [f"s_mov_b32 s{S_BLK}, 1", f"s_sub_u32 s{S_QB}, 15, s{S_I}"]
    while fs or mv:
        if mv: a(mv.pop(0))
        for _ in range(3):
            if fs: a(fs.pop(0))
    a(flag_set(V_EP, S_FQ))
    epi1 = a.lines[n0:]
    stamps.stamp(a, "blk1")
    a("s_branch L_head")
    n0 = len(a.lines); slow_path(a); slow = a.lines[n0:]
    a.label("L_gate")
    n0 = len(a.lines); gate_epilogue(a); gpath = a.lines[n0:]
    a("s_branch L_qepi")
    F = Fin()
    fl1 = (None, None, Op(flag_set(V_EP, S_FC), tag="fl"))
    chk = [W(v=["poll"]), block(spins.check(fq_poll(S_TA + 3), flag_test(V_POLL, 4)), "valu")]
    slots9 = (2, 6, 10, 15, 19, 23, 27, 31, 32)
    d0L = full_step(0, c0, last=(F.a_loads(0) + F.a_loads(1) + [fl1], slots9, W(v=["K35"], l="*")))
    d1L = full_step(1, c1, last=(F.w_dma(0) + F.a_loads(2), (2, 6, 10, 15, 19, 23, 27, 31, 33), None))
    dtL = diag_tail(last=(F.w_dma(1) + F.g_loads(), W(l="*"), F.w_dma(2) + F.a_loads(3)))
    epi2 = epilogue("2", F.w_dma(3) + F.a_loads(4))
    F.build(spins, **opt.get("fin", {}))
    print("last: overflow", d0L.overflow(), d1L.overflow(), dtL.overflow(), F.G.overflow())
    sb = Asm(); stamps.stamp(sb, "blk2")
    stamps.put(F.G, -1, "fmfma0"); stamps.put(F.G, F_ST*40 - 1, "ffn2")
    _, _, ds3 = resolve(ops[3])
    lastl, _, _ = resolve(chk + d0L.ops() + d1L.ops() + dtL.ops() + epi2 + [Op(x.strip()) for x in sb.lines] + F.G.ops() + [W(v=["g"])],
                          vm0=["poll"] + ["V33"]*4 + ["K35"]*4, ds0=ds3)
    a.label("L_last")
    n0 = len(a.lines)
    a(lastl)
    stamps.stamp(a, "fmm")
    fin_tail(a, spins)
    last = a.lines[n0:]
    stamps.stamp(a, "issued")
    if stamps.enabled: a("s_waitcnt vmcnt(0)")
    stamps.stamp(a, "end")
    stamps.dump(a, 0)
    a("s_endpgm")
    spins.emit(a)
    lint(pre + hpath + first + head + s1 + s2 + s3 + s0 + s1 + s2 + s3 + d0l + d1l + epi1 + head + s1 + s2 + s3 + last, "main")
    lint(pre[-200:] + hpath[:3] + gpath + first + head + d1l + epi1, "gate")
    k = [i for i, x in enumerate(epi1) if x.startswith("store1")][0]
    lint(d1l + epi1[:k] + slow + slow[90:] + epi1[1:], "slow")
    return a

if __name__ == "__main__":
    out = sys.argv[1]
    st = Stamps("stamp" in sys.argv)
    opt = eval(sys.argv[2])
    name = KNAME + "_kernel"
    a = gen(name, st, opt)
    txt = file_text([(name, 256, 256, 163840)], a.text(), [kernel_desc(name, 256, 256)], single=True)
    open(out, "w").write(txt)
    json.dump({"stamps": [st.names]}, open(out + ".json", "w"))
```

```python
import sys, re
from gen_common import *
src = open(sys.argv[1]).read()
K = KNAME + "_kernel"
def variant(out, order, extra_body="", extra_desc=""):
    hdr = "".join(f"; @launch kernel={k} grid=(256,1,1) block=(256,1,1) lds={163840 if k == K else 0}\n" for k in order)
    t = re.sub(r"; @launch grid[^\n]*\n", hdr, src, count=1)
    t = t.replace('.section .rodata,"a"', "code_end:\n" + extra_body + '.section .rodata,"a"\n' + extra_desc)
    open(out, "w").write(t)
def kern(name, body):
    a = Asm(); kernel_begin(a, name)
    a("s_cmp_lt_u32 s2, 256"); a(f"s_cbranch_scc1 {name}_go"); a("s_endpgm"); a.label(name + "_go")
    body(a); a("s_waitcnt vmcnt(0)"); a("s_endpgm")
    return a.text(), ".p2align 6\n" + kernel_desc(name, 32, 0, 64)
variant("build/e1.s", [K])
variant("build/e2.s", [K, K])
b, d = kern("nop_kernel", lambda a: None)
variant("build/e3.s", ["nop_kernel", K], b, d)
def code(a):
    a("s_getpc_b64 s[4:5]")
    a("s_sub_u32 s4, s4, 71680"); a("s_subb_u32 s5, s5, 0")
    a("s_mov_b32 s6, 71680"); a("s_mov_b32 s7, 0x20000")
    a("s_lshr_b32 s8, s2, 3"); a("s_mul_i32 s8, s8, 2240")
    a("v_lshlrev_b32 v1, 4, v0")
    a("buffer_load_dwordx4 v[4:7], v1, s[4:7], s8 offen")
b, d = kern("code_kernel", code)
variant("build/e4.s", ["code_kernel", K], b, d)
def pages(a):
    a("s_load_dwordx2 s[4:5], s[0:1], 112")
    a("s_load_dwordx16 s[16:31], s[0:1], 0")
    a("s_load_dwordx8 s[32:39], s[0:1], 64")
    a("s_lshr_b32 s8, s2, 3"); a("s_lshl_b32 s8, s8, 8")
    a("v_add_u32 v1, s8, v0"); a("v_lshlrev_b32 v1, 12, v1")
    a("s_waitcnt lgkmcnt(0)")
    a(f"s_mov_b32 s6, {84*MB}"); a("s_mov_b32 s7, 0x20000")
    for k in range(3):
        a(f"s_mov_b32 s9, {k*32*MB}")
        a("buffer_load_dword v4, v1, s[4:7], s9 offen")
    for p, sz in ((16, SZ_X), (18, SZ_C), (20, SZ_WQ), (22, SZ_WU), (24, SZ_WU), (26, SZ_WO), (30, SZ_W1), (34, SZ_W2)):
        a(f"s_mov_b32 s12, s{p}"); a(f"s_mov_b32 s13, s{p+1}"); a(f"s_mov_b32 s14, {sz}"); a("s_mov_b32 s15, 0x20000")
        a("buffer_load_dword v4, v1, s[12:15], 0 offen")
b, d = kern("page_kernel", pages)
variant("build/e5.s", ["page_kernel", K], b, d)
```

```python
from gen_proj import *

V_KA = 2; V_VA = 3; V_TB = 4
def O_(dt, j): return 16 + (dt*2 + j)*4
def L_(j): return 80 + 4*j
def S_(b, kt, j): return 88 + b*16 + (j*2 + kt)*4
def P_(b, j): return 120 + b*8 + 4*j
def NM(j): return 136 + 4*j
def CM(j, k4): return 144 + (j*4 + k4)*4
def Q_(j, ks): return 176 + (j*4 + ks)*4
QNEXT = 208
def KF(kt, ks): return 256 + (kt*4 + ks)*4
def VF(dt): return 256 + 32 + dt*4
ONES = 256 + 64
SLOWK = 256 + 164; SLOWV = 256 + 196
BIG = 2.0**100

S_OFFK = 12; S_OFFV = 13; S_CNT = 14; S_N1 = 15; S_BASE = 16; S_RK = 17; S_RV = 18; S_PER = 19; S_QB = 20; S_BLK = 21
S_CTX = 22
S_TA = 62
S_FQP = 69
S_SL = 66

def kread(unit_in_pair, idx):
    return Op(f"ds_read_b128 {R(KF(idx >> 2, idx & 3),4)}, v{V_KA} offset:{unit_in_pair*8192 + idx*1024}", tag=f"k{idx>>2}")
def vread(unit_in_pair, dt):
    return Op(f"ds_read_b128 {R(VF(dt),4)}, v{V_VA} offset:{unit_in_pair*8192 + dt*1024}", tag=f"v{dt>>2}")
def dma(which, j):
    s = S_OFFK if which == "K" else S_OFFV
    return Op(f"buffer_load_dwordx4 v{V_L16}, {SR(SRD_WS)}, s{s} offen offset:{j*1024}{SC} lds", tag="dma")
def exps(b, j): return [f"v_exp_f32 v{S_(b,kt,j)+r}, v{S_(b,kt,j)+r}" for kt in range(2) for r in range(4)]
def cvts(b, j): return [f"v_cvt_pk_bf16_f32 v{P_(b,j)+i}, v{S_(b,i>>1,j)+2*(i&1)}, v{S_(b,i>>1,j)+2*(i&1)+1}" for i in range(4)]
def k_pre():  return [f"s_mov_b32 m0, s{S_RK}"]
def k_post(): return [f"s_add_u32 s{S_RK}, s{S_RK}, 16384", f"s_and_b32 s{S_RK}, s{S_RK}, 0xffff"]
def v_pre():  return [f"s_add_u32 m0, s{S_RV}, 65536"]
def v_post():
    return [f"s_add_u32 s{S_RV}, s{S_RV}, 16384", f"s_and_b32 s{S_RV}, s{S_RV}, 0xffff",
            f"s_add_u32 s{S_OFFV}, s{S_OFFK}, 16384",
            f"s_add_u32 s{S_OFFK}, s{S_OFFK}, 32768", f"s_add_u32 s{S_CNT}, s{S_CNT}, 1",
            f"s_cmp_eq_u32 s{S_CNT}, s{S_N1}", f"s_cselect_b32 s{S_OFFK}, s{S_BASE}, s{S_OFFK}",
            f"s_cmp_ge_u32 s{S_CNT}, 34", f"s_cselect_b32 s{S_OFFK}, {OOB}, s{S_OFFK}"]

def q_mfmas(G, b, js, cfun):
    for j in js:
        for kt in range(2):
            for ks in range(4):
                G.mfma(mfma(S_(b, kt, j), KF(kt, ks), Q_(j, ks), cfun(j, kt) if ks == 0 else None))
def barrier_ops(n=16): return [Op(f"s_waitcnt vmcnt({n}) lgkmcnt(0)"), Op("s_barrier")]

V_POLL = 244
V_EP = 252
def fq_poll(so): return f"buffer_load_dwordx4 v[{V_POLL}:{V_POLL+3}], v{V_L16}, {SR(SRD_WS)}, s{so} offen{SC}"
DSLOT = (6, 15, 16 + 11, 16 + 15)
def put_loads(G, loads, slots):
    assert len(loads) <= len(slots)
    for (m0, so, op), g in zip(loads, slots):
        if m0: G.put(g - 1, m0)
        if so: G.put(g, so)
        G.put(g, op)

def full_step(p, cfun=None, last=None, poll=False, extra=None, fq=False):
    G = Gaps(); b = p & 1; pb = b ^ 1
    if cfun is None: cfun = lambda j, kt: NM(j)
    q_mfmas(G, b, (0, 1), cfun)
    G.mfma(mfma(L_(0), ONES, P_(pb, 0)))
    for dt in range(8):
        for j in range(2): G.mfma(mfma(O_(dt, j), VF(dt), P_(pb, j)))
    G.mfma(mfma(L_(1), ONES, P_(pb, 1)))
    which = "K" if p & 1 else "V"
    vr_ = [vread((p - 1) & 3, dt) for dt in range(8)]
    kr = [kread((p + 1) & 3, i) for i in range(8)]
    e1 = exps(pb, 1); c1 = cvts(pb, 1); e0 = exps(b, 0); c0 = cvts(b, 0)
    qpat = [[e1[0]], [e1[1]], [vr_[0], c1[0]], [e1[2]], [e1[3]], [vr_[1], c1[1]], [], [e1[4]], [e1[5]], [vr_[2], c1[2]],
            [e1[6]], [e1[7]], [vr_[3], c1[3]], [vr_[4], vr_[5]], [vr_[6], vr_[7]], []]
    ppat = [[kr[0], kr[1]], [e0[0]], [kr[2], kr[3]], [e0[1]], [kr[4], c0[0]], [e0[2]], [e0[3]], [kr[5], c0[1]], [e0[4]], [kr[6], kr[7]],
            [e0[5]], [], [e0[6]], [c0[2]], [e0[7]], [], [c0[3]], []]
    for i, l in enumerate(qpat + ppat):
        for o in l: G.put(i, o)
    G.put(15, W(l=["v0"])); G.put(16 + 7, W(l=["v1"]))
    if p == 0: G.put(16 + 13, f"v_xor_b32 v{V_VA}, 0x8000, v{V_VA}")
    if p == 2: G.put(16 + 13, f"v_xor_b32 v{V_KA}, 0x8000, v{V_KA}")
    if which == "V": G.put(3, W(l=["k1"]))
    lastg = len(G.m) - 1
    if last is None:
        ds_ = DSLOT if extra is None else (2, 4, 6, 8)
        for j in range(4): G.put(ds_[j], dma(which, j))
        if extra: put_loads(G, extra, (11, 15, 18, 21, 24, 27, 29, 31))
        if which == "K":
            place_scalars(G, k_pre(), ds_[0] - 2, ds_[0] - 1)
            place_scalars(G, k_post(), 16 + 8, 16 + 14)
        else:
            place_scalars(G, v_pre(), 4, 5)
            vp = v_post()
            place_scalars(G, vp[:2], 6, 14)
            place_scalars(G, [f"s_add_u32 s{S_TA}, s{S_OFFK}, 16384"] + vp[3:], 16, 16 + 14)
            G.put(16 + 16, f"s_mov_b32 s{S_OFFV}, s{S_TA}")
        bar = barrier_ops()
    else:
        put_loads(G, last[0], last[1])
        bar = [last[2], Op("s_barrier")]
    if which == "V":
        for o in bar: G.put(lastg, o)
    else:
        G.put(lastg, W(l=["k0"]))
        if fq:
            place_scalars(G, [f"s_cmp_eq_u32 s{S_PER}, s{S_FQP}", f"s_cselect_b32 s{S_TA+2}, s{S_FQ}, {OOB}"], 7, 12)
            G.put(lastg, Op(flag_set(V_EP, S_TA + 2), tag="fq"))
        if poll:
            place_scalars(G, [f"s_cmp_eq_u32 s{S_PER}, s{S_BLK}", f"s_cselect_b32 s{S_TA+2}, s{S_TA+3}, {OOB}"], 16 + 12, 16 + 16)
            G.put(lastg, Op(fq_poll(S_TA + 2), tag="poll"))
    return G

def att_setup_v(a):
    a(f"v_mov_b32 v{V_KA}, v{V_L16}")
    a(f"v_add_u32 v{V_VA}, {65536 + 32768}, v{V_L16}")
    a("v_and_b32 v6, 15, v0")
    a(f"s_lshl_b32 s{S_TA}, s{S_WAVE}, 4")
    a("v_lshrrev_b32 v7, 4, v0")
    a(f"s_sub_u32 s{S_TA+1}, 112, s{S_TA}")
    a("v_lshlrev_b32 v7, 2, v7")
    a("v_sub_u32 v6, v6, v7")
    a(f"v_add_u32 v7, s{S_TA}, v6")
    a(f"v_add_u32 v8, s{S_TA+1}, v6")
    a("v_cvt_f32_i32 v7, v7"); a("v_cvt_f32_i32 v8, v8")
    a("v_add_f32 v7, 0.5, v7"); a("v_add_f32 v8, 0.5, v8")
    a(f"v_mul_f32 v{V_TB}, {f2h(BIG)}, v7"); a(f"v_mul_f32 v{V_TB+1}, {f2h(BIG)}, v8")
    a(f"v_mov_b32 v{V_EP}, s{S_EP}")
    a("v_mov_b32 v6, 0x3f803f80")
    for i in range(4): a(f"v_accvgpr_write_b32 {R(ONES+i)}, v6")

def att_setup_s():
    return [f"s_lshl_b32 s{S_BASE}, s{S_H}, 20", f"s_lshl_b32 s{S_RK}, s{S_WAVE}, 12", f"s_add_u32 s{S_BASE}, s{S_BASE}, s{S_RK}",
            f"s_mov_b32 s{S_RV}, s{S_RK}", f"s_mov_b32 s{S_OFFK}, s{S_BASE}", f"s_mov_b32 s{S_CNT}, 0",
            f"s_lshl_b32 s{S_N1}, s{S_I}, 1", f"s_add_u32 s{S_N1}, s{S_N1}, 2", f"s_mov_b32 s{S_QB}, s{S_I}", f"s_mov_b32 s{S_BLK}, 0",
            f"s_mov_b32 s{S_TA+3}, {WS_FQ}", f"s_mov_b32 s{S_FQP}, -1"]

def att_prefetch0(G, lo, spacing=2):
    g = lo
    def grp(which, pre, post):
        nonlocal g
        for j in range(4):
            o = dma(which, j); o.tag = "K0" if first[0] else "dma"
            g = place_vm(G, g + spacing, o, pre[0] if j == 0 else None, None, g)
        first[0] = False
        ops = []
        for x in post:
            if x.startswith("s_cselect"): ops[-1] = block([ops[-1], x])
            else: ops.append(x)
        g = place_scalars(G, ops, g + 1, len(G.m) - 1) - 1
    first = [True]
    grp("K", k_pre(), k_post() + v_post()[2:])
    for w in range(2):
        grp("K", k_pre(), k_post())
        grp("V", v_pre(), v_post())
    return g

def fitd(G, x, lo, hi):
    g = G.fit(lo, x, hi)
    if g is None:
        g = min(range(lo, hi + 1), key=lambda i: (G.cost(i), i))
        G.put(g, x)
    return g

def softmax_fill(G, b, j, lo_kt, hi):
    e = exps(b, j); c = cvts(b, j); cur = 0
    for i in range(4):
        lo = max(cur, lo_kt[i >> 1])
        g1 = fitd(G, e[2*i], lo, hi - 1); g2 = fitd(G, e[2*i+1], g1, hi - 1)
        cur = g2
        fitd(G, c[i], g2 + 1, hi)

def diag_tail(last=None, bar16=16):
    G = Gaps()
    cm = lambda base: (lambda j, kt: CM(1, base + kt))
    q_mfmas(G, 0, (1,), cm(0))
    G.mfma(mfma(L_(0), ONES, P_(1, 0)))
    for dt in range(8): G.mfma(mfma(O_(dt, 0), VF(dt), P_(1, 0)))
    for dt in range(8): G.mfma(mfma(O_(dt, 1), VF(dt), P_(1, 1)))
    G.mfma(mfma(L_(1), ONES, P_(1, 1)))
    q_mfmas(G, 1, (1,), cm(2))
    G.mfma(mfma(L_(1), ONES, P_(0, 1)))
    for dt in range(8): G.mfma(mfma(O_(dt, 1), VF(dt), P_(0, 1)))
    G.mfma(mfma(L_(1), ONES, P_(1, 1)))
    for dt in range(8): G.mfma(mfma(O_(dt, 1), VF(dt), P_(1, 1)))
    G.put(3, W(l=["k1"]))
    for dt in range(8): G.put(dt // 2, vread(1, dt))
    G.put(8, W(l=["v0"])); G.put(12, W(l=["v1"]))
    softmax_fill(G, 1, 1, (4, 4), 14)
    for i in range(8): fitd(G, kread(3, i), 13, 19)
    if last is None:
        G.put(19, f"s_add_u32 m0, s{S_RV}, 65536")
        for j in range(4): G.put(20 + j, dma("V", j))
        vp = v_post()
        place_scalars(G, vp[:2], 20, 22)
        place_scalars(G, [f"s_add_u32 s{S_TA}, s{S_OFFK}, 16384"] + vp[3:], 9, 18)
        G.put(24, f"s_mov_b32 s{S_OFFV}, s{S_TA}")
        G.put(24, f"v_xor_b32 v{V_KA}, 0x8000, v{V_KA}")
        for o in barrier_ops(bar16): G.put(25, o)
    else:
        put_loads(G, last[0], (5, 10, 15, 20, 22, 23, 24))
        G.put(25, last[1]); G.put(25, "s_barrier")
    for dt in range(8): G.put(26 + dt // 2, vread(2, dt))
    softmax_fill(G, 0, 1, (24, 24), 31)
    G.put(34, W(l=["v0"])); G.put(38, W(l=["v1"]))
    if last is None: G.put(33, k_pre()[0])
    softmax_fill(G, 1, 1, (37, 41), 42)
    for dt in range(8): G.put(35 + dt, vread(3, dt))
    G.put(42, Op("s_nop 1", "valu"))
    G.put(43, W(l=["v0"])); G.put(47, W(l=["v1"]))
    if last is None:
        for i in range(8): G.put(44 + i // 2, kread(0, i))
        for j in range(4): G.put(48 + j, dma("K", j))
        place_scalars(G, k_post(), 48, 51)
    else:
        put_loads(G, last[2], (30, 32, 34, 36, 40, 44, 46, 48, 50))
    return G

def row_max(a, dst, regs, tmp):
    a(f"v_max3_f32 v{dst}, v{regs[0]}, v{regs[1]}, v{regs[2]}")
    a(f"v_max3_f32 v{tmp}, v{regs[3]}, v{regs[4]}, v{regs[5]}")
    a(f"v_max3_f32 v{dst}, v{dst}, v{regs[6]}, v{regs[7]}")
    a(f"v_max_f32 v{dst}, v{dst}, v{tmp}")
def cross_max(a, pairs):
    for op in ("v_permlane32_swap_b32", "v_permlane16_swap_b32"):
        for d, t in pairs: a(f"v_mov_b32 v{t}, v{d}")
        a("s_nop 1")
        for d, t in pairs: a(f"{op} v{t}, v{d}")
        a("s_nop 1")
        for d, t in pairs: a(f"v_max_f32 v{d}, v{d}, v{t}")

def head_ops():
    a = Asm()
    a(f"v_mov_b32 v6, {f2h(2.0**120)}")
    a(f"s_cmp_eq_u32 s{S_QB}, 0")
    a(f"s_cselect_b64 vcc, -1, 0")
    a(f"v_cndmask_b32 v6, v6, v{V_TB}, vcc")
    for kt in range(2):
        for r in range(4):
            a(f"v_subrev_f32 v{CM(0,kt)+r}, {f2h((16*kt+r)*BIG)}, v6")
            a(f"v_min_f32 v{CM(0,kt)+r}, 0, v{CM(0,kt)+r}")
    a(v_pre())
    pre = [Op(x.strip()) for x in a.lines] + [W(l="*")]
    G = Gaps()
    q_mfmas(G, 0, (0, 1), lambda j, kt: CM(0, kt) if j == 0 else "0")
    for j in range(4): G.put(1 + 2*j, dma("V", j))
    z = [f"v_mov_b32 v{r}, 0" for r in range(16, 88)]
    zi = 0
    for g in range(16):
        while zi < len(z) and G.fit(g, z[zi], g) is not None: zi += 1
    place_scalars(G, v_post(), 8, 15)
    a = Asm()
    for i in range(8): a(kread(1, i).text)
    a(f"v_xor_b32 v{V_VA}, 0x8000, v{V_VA}")
    assert (len(z) - zi) % 2 == 0
    for r in range(16 + zi, 88, 2): a(f"v_mov_b64 v[{r}:{r+1}], 0")
    for j in range(2): row_max(a, 6 + j, [S_(0, kt, j) + r for kt in range(2) for r in range(4)], 8 + j)
    cross_max(a, [(6, 8), (7, 9)])
    for j in range(2):
        for kt in range(2):
            for r in range(4): a(f"v_sub_f32 v{S_(0,kt,j)+r}, v{S_(0,kt,j)+r}, v{6+j}")
    for j in range(2):
        for r in range(4): a(f"v_sub_f32 v{NM(j)+r}, 0, v{6+j}")
    e = exps(0, 0); c = cvts(0, 0)
    cmops = []
    for j in range(2):
        for k4 in range(4):
            for r in range(4):
                cmops.append(f"v_subrev_f32 v{CM(j,k4)+r}, {f2h((16*(k4+4*j)+r)*BIG)}, v{V_TB+j}")
                cmops.append(f"v_min_f32 v{CM(j,k4)+r}, v{NM(j)}, v{CM(j,k4)+r}")
    a(e); a(cmops); a(c)
    a(f"s_mov_b32 s{S_PER}, s{S_QB}")
    post = [Op(x.strip()) for x in a.lines] + barrier_ops()
    return pre + G.ops() + post

def ctx_addr_ops():
    o = [f"s_lshl_b32 s{S_TA}, s{S_QB}, 3", f"s_add_u32 s{S_CTX}, s{S_TA}, s{S_WAVE}", f"s_sub_u32 s{S_CTX+1}, s{S_TA}, s{S_WAVE}",
         f"s_add_u32 s{S_CTX+1}, s{S_CTX+1}, 7", f"s_lshl_b32 s{S_TA}, s{S_H}, 12", f"s_add_u32 s{S_TA}, s{S_TA}, {WS_CTX}"]
    for j in range(2): o += [f"s_lshl_b32 s{S_CTX+j}, s{S_CTX+j}, 17", f"s_add_u32 s{S_CTX+j}, s{S_CTX+j}, s{S_TA}"]
    return o

def epilogue(sfx, loads=()):
    o = [Op(f"s_mov_b32 s{S_SL}, 0"), Op(f"norm{sfx}:")]
    a = lambda x: o.append(mk(x))
    loads = list(loads); sca = ctx_addr_ops()
    a(f"v_rcp_f32 v6, v{L_(0)}"); a("v_mov_b32 v10, 0"); a("v_mov_b32 v7, v6")
    for j in range(2):
        for kp in range(4):
            ra, rb = O_(2*kp, j), O_(2*kp + 1, j)
            ld = loads.pop(0) if loads else (None, None, None)
            if ld[0]: a(ld[0])
            for r in (ra, ra + 2, rb, rb + 2): a(f"v_pk_mul_f32 v[{r}:{r+1}], v[{r}:{r+1}], v[{6+2*j}:{7+2*j}]")
            if ld[1]: a(ld[1])
            if ld[2]: a(ld[2])
            for x in cvt4(ra, ra, rb): a(x)
            if sca: a(sca.pop(0))
            a(f"v_pk_maximum3_f16 v10, v10, v{ra}, v{ra+1}")
            if sca: a(sca.pop(0))
            a(f"v_pk_maximum3_f16 v10, v10, v{ra+2}, v{ra+3}")
            if j == 0 and kp == 2: a(f"v_rcp_f32 v8, v{L_(1)}")
            if j == 0 and kp == 3: a("v_mov_b32 v9, v8")
    for ld in loads:
        if ld[0]: a(ld[0])
        if ld[1]: a(ld[1])
        elif ld[0]: a("s_nop 0")
        a(ld[2])
    a("v_lshrrev_b32 v11, 16, v10")
    a(f"v_min_f32 v12, v{L_(0)}, v{L_(1)}")
    a(f"v_max_f32 v13, v{L_(0)}, v{L_(1)}")
    a("v_cmp_u_f16 vcc, v10, v11")
    a(f"v_cmp_u_f32 s[{S_TA}:{S_TA+1}], v{L_(0)}, v{L_(1)}")
    a(f"s_or_b64 s[{S_TA}:{S_TA+1}], s[{S_TA}:{S_TA+1}], vcc")
    a(f"v_cmp_gt_f32 vcc, {f2h(2.0**-64)}, v12")
    a(f"s_or_b64 s[{S_TA}:{S_TA+1}], s[{S_TA}:{S_TA+1}], vcc")
    a(f"v_cmp_lt_f32 vcc, {f2h(2.0**24)}, v13")
    a(f"s_or_b64 s[{S_TA}:{S_TA+1}], s[{S_TA}:{S_TA+1}], vcc")
    a(f"s_cbranch_scc0 store{sfx}")
    a(f"s_cmp_eq_u32 s{S_SL}, 0")
    a(f"s_cbranch_scc1 slow")
    a(f"store{sfx}:")
    for j in range(2):
        for kp in range(4):
            ra = O_(2*kp, j)
            o.append(Op(f"buffer_store_dwordx4 v[{ra}:{ra+3}], v{V_L16}, {SR(SRD_WS)}, s{S_CTX+j} offen offset:{kp*1024}{SC}", tag="ctxst"))
    return o

def slow_path(a):
    a.label("slow")
    SO, SN = S_SL + 1, S_SL + 2
    a(f"s_mov_b32 s{S_SL}, 1")
    a(f"s_lshl_b32 s{SO}, s{S_H}, 20")
    if WS_KV: a(f"s_add_u32 s{SO}, s{SO}, {WS_KV}")
    a(f"s_lshl_b32 s{SN}, s{S_QB}, 2")
    a(f"s_add_u32 s{SN}, s{SN}, 4")
    a(f"s_lshl_b32 s{S_TA}, s{S_QB}, 7")
    a(f"v_cvt_f32_u32 v6, s{S_TA}")
    a(f"v_mul_f32 v6, {f2h(BIG)}, v6")
    for j in range(2):
        a(f"v_add_f32 v{240+j}, v{V_TB+j}, v6")
        a(f"v_mov_b32 v{242+j}, {f2h(-2.0**126)}")
    for r in range(16, 88): a(f"v_mov_b32 v{r}, 0")
    a.label("slow_loop")
    a(f"s_add_u32 s{S_TA}, s{SO}, 4096")
    a(f"s_add_u32 s{S_TA+1}, s{SO}, 16384")
    a(f"s_add_u32 s{S_TA+2}, s{SO}, 20480")
    for i in range(8):
        a(f"buffer_load_dwordx4 {R(SLOWK+4*i,4)}, v{V_L16}, {SR(SRD_WS)}, s{SO if i < 4 else S_TA} offen offset:{(i&3)*1024}{SC}")
    for i in range(8):
        a(f"buffer_load_dwordx4 {R(SLOWV+4*i,4)}, v{V_L16}, {SR(SRD_WS)}, s{S_TA+1 if i < 4 else S_TA+2} offen offset:{(i&3)*1024}{SC}")
    a("s_waitcnt vmcnt(0)")
    for j in range(2):
        for kt in range(2):
            for ks in range(4): a(mfma(S_(0, kt, j), SLOWK + (kt*4 + ks)*4, Q_(j, ks), "0" if ks == 0 else None))
    a("s_nop 7")
    for j in range(2):
        for kt in range(2):
            for r in range(4):
                a(f"v_subrev_f32 v6, {f2h((16*kt+r)*BIG)}, v{240+j}")
                a(f"v_min_f32 v6, 0, v6")
                a(f"v_add_f32 v{S_(0,kt,j)+r}, v{S_(0,kt,j)+r}, v6")
        a(f"v_subrev_f32 v{240+j}, {f2h(32*BIG)}, v{240+j}")
    for j in range(2): row_max(a, 6 + j, [S_(0, kt, j) + r for kt in range(2) for r in range(4)], 8 + j)
    cross_max(a, [(6, 8), (7, 9)])
    for j in range(2):
        a(f"v_max_f32 v{6+j}, v{6+j}, v{242+j}")
        a(f"v_sub_f32 v{8+j}, v{242+j}, v{6+j}")
        a(f"v_mov_b32 v{242+j}, v{6+j}")
        a(f"v_exp_f32 v{8+j}, v{8+j}")
        for kt in range(2):
            for r in range(4): a(f"v_sub_f32 v{S_(0,kt,j)+r}, v{S_(0,kt,j)+r}, v{6+j}")
        a(exps(0, j)); a("s_nop 0"); a(cvts(0, j))
        for dt in range(8):
            for r in range(4): a(f"v_mul_f32 v{O_(dt,j)+r}, v{O_(dt,j)+r}, v{8+j}")
        for r in range(4): a(f"v_mul_f32 v{L_(j)+r}, v{L_(j)+r}, v{8+j}")
    a("s_nop 1")
    for j in range(2):
        a(mfma(L_(j), ONES, P_(0, j)))
        for dt in range(8): a(mfma(O_(dt, j), SLOWV + 4*dt, P_(0, j)))
    a(f"s_bitcmp1_b32 s{SO}, 13")
    a(f"s_cselect_b32 s{S_TA}, 24576, 8192") if False else None
    a(f"s_mov_b32 s{S_TA}, 8192")
    a(f"s_cmov_b32 s{S_TA}, 24576")
    a(f"s_add_u32 s{SO}, s{SO}, s{S_TA}")
    a(f"s_sub_u32 s{SN}, s{SN}, 1")
    a(f"s_cmp_lg_u32 s{SN}, 0")
    a("s_nop 7")
    a("s_cbranch_scc1 slow_loop")
    a(f"s_cmp_eq_u32 s{S_BLK}, 0")
    a("s_cbranch_scc1 norm1")
    a("s_branch norm2")
```

```python
from asmgen import *
from gsched import *
import struct, math

MB = 1 << 20
WS_KV = 0
WS_CTX = 32 * MB
WS_H = 48 * MB
WS_WT = 56 * MB
WS_G = 64 * MB
WS_PART = 65 * MB
WS_FC = 80 * MB
WS_FP = 80 * MB + 65536
WS_FK = 80 * MB + 131072
WS_FQ = 80 * MB + 196608
WS_EP = 80 * MB + 262144
WS_STAMP = 250 * MB
WS_BYTES = 268435456
SZ_X = 2048*640*2; SZ_C = 2048*512*2; SZ_WQ = 640*4096*2; SZ_WU = 512*4096*2; SZ_WO = 4096*640*2
SZ_W1 = 640*1728*2; SZ_W2 = 1728*640*2; SZ_OUT = 2048*640*2; SZ_WT = 182*40*1024
OOB = 0x20000000
SC = " sc1"

S_WAVE = 3; S_X = 4; S_HH = 5; S_I = 6; S_H = 7
SRD_WS = 8; SRD_C = 12; SRD_WK = 16; SRD_WV = 20; SRD_X = 24; SRD_WQ = 28; SRD_W1 = 32; SRD_WO = 36; SRD_W2 = 40
SRD_B1 = 44; SRD_B2 = 48; SRD_OUT = 52; SRD_DBG = 56
def SR(d): return f"s[{d}:{d+3}]"
V_L16 = 1

def f2h(x): return "0x%08x" % struct.unpack("<I", struct.pack("<f", x))[0]

def mfma(d, a_, b_, c=None):
    cs = R(d, 4) if c is None else (c if isinstance(c, str) else R(c, 4))
    return f"v_mfma_f32_16x16x32_bf16 {R(d,4)}, {R(a_,4)}, {R(b_,4)}, {cs}"

def block(lines, kind="salu", tag=None):
    return Op("\n".join(lines), kind, tag=tag)

class Stamps:
    def __init__(self, enabled, areg=255):
        self.enabled = enabled; self.n = 0; self.names = []; self.areg = areg
    def stamp(self, a, name):
        if not self.enabled: return
        a("s_waitcnt lgkmcnt(0)")
        a("s_memtime s[98:99]")
        a("s_memrealtime s[100:101]")
        a("s_waitcnt lgkmcnt(0)")
        a(f"v_accvgpr_read_b32 v15, a{self.areg}")
        a(f"v_writelane_b32 v15, s98, {2*self.n}")
        a(f"v_writelane_b32 v15, s100, {2*self.n+1}")
        a(f"v_accvgpr_write_b32 a{self.areg}, v15")
        self.names.append(name); self.n += 1
    def early(self, a):
        if self.enabled: a("s_memtime s[98:99]"); a("s_memrealtime s[100:101]")
    def early_save(self, a):
        if not self.enabled: return
        a(f"v_writelane_b32 v15, s98, 0"); a(f"v_writelane_b32 v15, s100, 1"); a(f"v_accvgpr_write_b32 a{self.areg}, v15")
        self.names.append("entry"); self.n += 1
    def put(self, G, gap, name):
        if not self.enabled: return
        t = Asm(); self.stamp(t, name)
        G.put(gap, Op("\n".join(x.strip() for x in t.lines), "valu"))
    def dump(self, a, kidx=0):
        if not self.enabled: return
        a(f"v_accvgpr_read_b32 v15, a{self.areg}")
        a("v_mbcnt_lo_u32_b32 v14, -1, 0")
        a("v_mbcnt_hi_u32_b32 v14, -1, v14")
        a("v_lshlrev_b32 v14, 2, v14")
        a(f"s_lshl_b32 s98, s2, 2")
        a(f"s_add_u32 s98, s98, s{S_WAVE}")
        a("s_lshl_b32 s98, s98, 8")
        a(f"s_add_u32 s98, s98, {WS_STAMP + kidx*(1<<18)}")
        a(f"buffer_store_dword v15, v14, {SR(SRD_WS)}, s98 offen")
        a("s_waitcnt vmcnt(0)")

class Spins:
    def __init__(self): self.blocks = []; self.n = 0
    def check(self, load, test, cnt=94):
        k = self.n; self.n += 1
        self.blocks.append([f"spin{k}:", f"s_mov_b32 s{cnt}, 0", f"spin{k}_l:", "s_sleep 1", load, "s_waitcnt vmcnt(0)"] + test +
                           [f"s_cbranch_scc1 spin{k}_ok", f"s_add_u32 s{cnt}, s{cnt}, 1", f"s_cmp_lt_u32 s{cnt}, 0x20000",
                            f"s_cbranch_scc1 spin{k}_l", f"s_branch spin{k}_ok"])
        return test + [f"s_cbranch_scc0 spin{k}", f"spin{k}_ok:"]
    def emit(self, a):
        for b in self.blocks: a(b)

def place_scalars(G, ops, lo, hi):
    g = lo
    for o in ops:
        while g <= hi and G.has_scalar(g): g += 1
        if g > hi: G.put(hi, o)
        else: G.put(g, o); g += 1
    return g

def place_vm(G, lo, ld, m0=None, so=None, prev=-1):
    g = max(lo, prev + (2 if m0 else 1))
    while G.g[g] or (m0 and G.has_scalar(g - 1)): g += 1
    if m0: G.put(g - 1, m0)
    if so: G.put(g, so)
    G.put(g, ld)
    return g
```

```python
from gen_common import *

W_BASE = 65536
V_AC = 2
V_AX = 4
V_W = 6; V_W1 = 7
V_AR = 8
V_T = 10
V_JD = 14
V_JT = 253
V_TMP = 16
A_ACT = 256 + 32
A_WF = 256 + 96
A_PARK = 256 + 128
S_ACTB = 60; S_WB = 61; S_ROWC = 62; S_ROWX = 66; S_COL = 70; S_W1OFF = 71; S_INC4 = 72; S_INC60 = 73; S_KV = 74; S_ST = 75
S_T0 = 76
S_RT = 80; S_FB = 84; S_AUX = 85; S_JS = 86; S_JD = 88; S_JL = 90; S_FC = 91; S_FP = 93
S_FQ = 95
S_EP = 97
S_FK = 96
SRD_W1P = 56
QSCALE = math.log2(math.e) / math.sqrt(128.0)
GK0 = 2.0 * math.sqrt(2.0 / math.pi) * math.log2(math.e)
GK1 = GK0 * 0.044715

def acc_qf(G, u):
    if G < 4: return 96 + (G*4 + u)*4
    dt = G - 4
    return (176 if dt % 2 == 0 else 32) + (u*4 + dt//2)*4
def acc_kv(G, u):
    if G < 12: return acc_qf(G, u)
    if G == 12: return 160 + u*4
    if G == 13: return 240 + u*4
    return 256 + (G - 14)*16 + u*4

def srd_tail(d, nbytes): return [f"s_mov_b32 s{d+2}, {nbytes}", f"s_mov_b32 s{d+3}, 0x20000"]

def entry(a, name, code_warm=True, stamps=None):
    kernel_begin(a, name)
    stamps.early(a)
    a("s_cmp_lt_u32 s2, 256")
    a(f"s_cbranch_scc1 L_go")
    a("s_endpgm")
    a.label("L_go")
    for d, off in ((SRD_C, 8), (SRD_WK, 24), (SRD_WV, 32), (SRD_WS, 112), (SRD_X, 0), (SRD_WQ, 16), (SRD_W1, 56), (SRD_WO, 40),
                   (SRD_W2, 72), (SRD_B1, 64), (SRD_B2, 80), (SRD_OUT, 96), (S_JS, 88)):
        a(f"s_load_dwordx2 s[{d}:{d+1}], s[0:1], {off}")
    if code_warm:
        a("s_getpc_b64 s[60:61]")
        a.label("L_pc")
        a("s_mov_b32 s62, L_code_end - L_pc")
        a("s_mov_b32 s63, 0x20000")
        a("s_lshr_b32 s64, s2, 3")
        a("s_lshl_b32 s64, s64, 12")
        a("v_lshlrev_b32 v1, 4, v0")
        a("buffer_load_dwordx4 a[248:251], v1, s[60:63], s64 offen")
    a("v_lshrrev_b32 v1, 6, v0")
    a("v_and_b32 v0, 63, v0")
    a(f"v_readfirstlane_b32 s{S_WAVE}, v1")
    a(f"s_and_b32 s{S_X}, s2, 7")
    a(f"s_bfe_u32 s{S_HH}, s2, 0x20003")
    a(f"s_lshr_b32 s{S_I}, s2, 5")
    a(f"s_lshl_b32 s{S_H}, s{S_X}, 2")
    a(f"s_add_u32 s{S_H}, s{S_H}, s{S_HH}")

def setup_first(a):
    a("v_lshrrev_b32 v16, 3, v0")
    a("v_and_b32 v17, 7, v0")
    a("v_lshrrev_b32 v18, 4, v0")
    a("v_xor_b32 v19, v17, v18")
    a("v_xor_b32 v20, 4, v19")
    a("v_lshlrev_b32 v19, 4, v19")
    a("v_lshlrev_b32 v20, 4, v20")
    a(f"v_lshl_add_u32 v{V_AC}, v16, 10, v19")
    a(f"v_lshl_add_u32 v{V_AC+1}, v16, 10, v20")
    a(f"v_add_u32 v{V_AC+1}, {8*1024}, v{V_AC+1}")
    a("v_and_b32 v21, 3, v16")
    a("v_lshrrev_b32 v22, 2, v16")
    a("v_lshl_add_u32 v21, v22, 3, v21")
    a(f"s_lshl_b32 s{S_T0}, s{S_WAVE}, 4")
    a(f"v_add_u32 v21, s{S_T0}, v21")
    a("v_lshlrev_b32 v22, 1, v18")
    a("v_xor_b32 v24, v17, v22")
    a("v_lshlrev_b32 v22, 4, v24")
    a(f"v_lshl_add_u32 v{V_W}, v21, 13, v22")
    a(f"s_lshl_b32 s{S_ACTB}, s{S_WAVE}, 13")
    a(f"s_lshr_b32 s{S_T0}, s{S_WAVE}, 1")
    a(f"s_lshl_b32 s{S_T0}, s{S_T0}, 12")
    a(f"s_and_b32 s{S_T0+1}, s{S_WAVE}, 1")
    a(f"s_lshl_b32 s{S_T0+1}, s{S_T0+1}, 10")
    a(f"s_add_u32 s{S_WB}, s{S_T0}, s{S_T0+1}")
    a(f"s_add_u32 s{S_WB}, s{S_WB}, {W_BASE}")
    a(f"s_lshl_b32 s{S_COL}, s{S_H}, 8")
    a(f"s_lshl_b32 s{S_T0}, s{S_I}, 2")
    a(f"s_add_u32 s{S_T0}, s{S_T0}, s{S_WAVE}")
    a(f"s_lshl_b32 s{S_ROWC}, s{S_T0}, 16")
    for u in range(1, 4): a(f"s_add_u32 s{S_ROWC+u}, s{S_ROWC}, {u*16*1024}")
    a(f"s_lshl_b32 s{S_T0+1}, s{S_H}, 5")
    a(f"s_add_u32 s{S_T0}, s{S_T0}, s{S_T0+1}")
    a(f"s_lshl_b32 s{S_KV}, s{S_T0}, 15")
    a(srd_tail(SRD_C, SZ_C) + srd_tail(SRD_WK, SZ_WU) + srd_tail(SRD_WV, SZ_WU) + srd_tail(SRD_WS, WS_BYTES))
    a("s_waitcnt lgkmcnt(0)")

def setup_rest(a):
    t = S_T0
    a(f"s_add_u32 s0, s{SRD_WS}, {WS_EP}")
    a(f"s_addc_u32 s1, s{SRD_WS+1}, 0")
    a(f"s_load_dword s{S_EP}, s[0:1], 0")
    a(f"v_lshlrev_b32 v{V_L16}, 4, v0")
    a("v_mul_u32_u24 v23, 1280, v16")
    a(f"v_add_u32 v{V_AX}, v23, v19")
    a(f"v_add_u32 v{V_AX+1}, v23, v20")
    a(f"v_add_u32 v{V_AX+1}, {8*1280}, v{V_AX+1}")
    a("v_and_b32 v25, 1, v18")
    a("v_lshlrev_b32 v25, 2, v25")
    a("v_xor_b32 v25, v25, v17")
    a(f"v_lshl_add_u32 v{V_JD}, v25, 4, v23")
    a(f"s_lshl_b32 s{t}, s{S_I}, 3")
    a(f"s_add_u32 s{S_RT}, s{t}, s{S_WAVE}")
    a(f"s_sub_u32 s{S_RT+1}, s{t}, s{S_WAVE}")
    a(f"s_add_u32 s{S_RT+1}, s{S_RT+1}, 7")
    a(f"s_sub_u32 s{t}, 120, s{t}")
    a(f"s_add_u32 s{S_RT+2}, s{t}, s{S_WAVE}")
    a(f"s_sub_u32 s{S_RT+3}, s{t}, s{S_WAVE}")
    a(f"s_add_u32 s{S_RT+3}, s{S_RT+3}, 7")
    for u in range(4): a(f"s_mul_i32 s{S_ROWX+u}, s{S_RT+u}, {16*1280}")
    a(f"s_mul_i32 s{t}, s{S_I}, 5")
    a(f"s_sub_u32 s{t+1}, s{S_X}, s{t}")
    a(f"s_and_b32 s{t+1}, s{t+1}, 7")
    a(f"s_lshl_b32 s{S_FB}, s{S_HH}, 3")
    a(f"s_add_u32 s{S_FB}, s{S_FB}, s{S_X}")
    a(f"s_add_u32 s{t+2}, s{t+1}, 19")
    a(f"s_cmp_lt_u32 s{t+1}, 5")
    a(f"s_cselect_b32 s{S_AUX}, 1, 0")
    a(f"s_cmp_eq_u32 s{S_HH}, 3")
    a(f"s_cselect_b32 s{S_FB}, s{t+2}, s{S_FB}")
    a(f"s_cselect_b32 s{S_AUX}, s{S_AUX}, 0")
    a(f"s_lshl_b32 s{S_W1OFF}, s{S_FB}, 7")
    a("v_mul_u32_u24 v23, 3456, v21")
    a(f"v_add_u32 v{V_W1}, v23, v22")
    a("v_and_b32 v23, 1, v21")
    a("v_cmp_eq_u32 vcc, v23, v24")
    a("v_and_b32 v23, 0xfe, v21")
    a("v_lshlrev_b32 v23, 1, v23")
    a(f"v_mov_b32 v25, {OOB}")
    a("v_cndmask_b32 v23, v25, v23, vcc")
    a(f"s_mov_b64 s[{SRD_W1P}:{SRD_W1P+1}], s[{SRD_W1}:{SRD_W1+1}]")
    a(srd_tail(SRD_W1P, SZ_W1))
    a(f"s_mov_b32 s{SRD_W1+2}, {SZ_W1}")
    a(f"s_mov_b32 s{S_INC4}, {4*3456}")
    a(f"s_mov_b32 s{S_INC60}, {60*3456}")
    a(f"s_cmp_lg_u32 s{S_AUX}, 0")
    a("s_cselect_b64 vcc, -1, 0")
    a(f"s_cselect_b64 s[{SRD_W1}:{SRD_W1+1}], s[{S_JS}:{S_JS+1}], s[{SRD_W1}:{SRD_W1+1}]")
    a(f"s_cmov_b32 s{SRD_W1+2}, 1280")
    a(f"s_cmov_b32 s{S_INC4}, 8")
    a(f"s_cmov_b32 s{S_INC60}, 120")
    a(f"s_cmov_b32 s{S_W1OFF}, 0")
    a(f"s_mov_b32 s{SRD_W1+3}, 0x20000")
    a(f"v_cndmask_b32 v{V_W1}, v{V_W1}, v23, vcc")
    a(f"s_sub_u32 s{S_W1OFF}, s{S_W1OFF}, s{S_INC60}")
    a("v_and_b32 v21, 15, v0")
    a("v_lshrrev_b32 v22, 1, v21")
    a("v_xor_b32 v22, v22, v18")
    a("v_lshlrev_b32 v22, 4, v22")
    a("v_lshl_add_u32 v21, v21, 7, v22")
    a(f"v_add_u32 v{V_AR}, s{S_ACTB}, v21")
    a(f"v_xor_b32 v{V_AR+1}, 64, v{V_AR}")
    a("v_bfe_u32 v21, v0, 2, 3")
    a("v_lshrrev_b32 v22, 5, v0")
    a("v_lshlrev_b32 v22, 10, v22")
    a("v_lshl_add_u32 v22, v21, 7, v22")
    a("v_and_b32 v23, 1, v0")
    a("v_lshl_add_u32 v22, v23, 3, v22")
    a(f"v_add_u32 v22, {W_BASE}, v22")
    a("v_and_b32 v21, 6, v21")
    a("v_bfe_u32 v23, v0, 1, 1")
    a("v_or_b32 v21, v21, v23")
    for n in range(4):
        a(f"v_xor_b32 v23, {2*n}, v21")
        a(f"v_lshl_add_u32 v{V_T+n}, v23, 4, v22")
    a(srd_tail(SRD_X, SZ_X) + srd_tail(SRD_WQ, SZ_WQ) + srd_tail(SRD_WO, SZ_WO) + srd_tail(SRD_W2, SZ_W2) + srd_tail(SRD_B1, 3456)
      + srd_tail(SRD_B2, 1280) + srd_tail(SRD_OUT, SZ_OUT))
    a(f"s_lshl_b32 s{t}, s2, 2")
    a(f"s_add_u32 s{t}, s{t}, s{S_WAVE}")
    for jb in range(2):
        if jb: a(f"s_add_u32 s{t}, s{t}, 1024")
        a(f"s_mul_i32 s{t+1}, s{t}, 52429")
        a(f"s_lshr_b32 s{t+1}, s{t+1}, 19")
        a(f"s_mul_i32 s{t+2}, s{t+1}, {40960 - 1280}")
        a(f"s_lshl_b32 s{t+3}, s{t}, 7")
        a(f"s_add_u32 s{S_JS+jb}, s{t+2}, s{t+3}")
        a(f"s_lshl_b32 s{S_JD+jb}, s{t}, 12")
        a(f"s_add_u32 s{S_JD+jb}, s{S_JD+jb}, {WS_WT}")
    a(f"s_sub_u32 s{t+1}, s{S_JS+1}, {SZ_WO}")
    a(f"s_cmp_lt_u32 s{t}, 1280")
    a(f"s_cselect_b64 s[{SRD_W2}:{SRD_W2+1}], s[{SRD_WO}:{SRD_WO+1}], s[{SRD_W2}:{SRD_W2+1}]")
    a(f"s_cmov_b32 s{SRD_W2+2}, {SZ_WO}")
    a(f"s_cselect_b32 s{S_JS+1}, s{S_JS+1}, s{t+1}")
    a(f"s_cmp_ge_u32 s{t}, 1820")
    a(f"s_cmov_b32 s{S_JD+1}, {OOB}")
    a(f"s_lshl_b32 s{S_JL}, s{S_WAVE}, 13")
    a(f"s_add_u32 s{S_JL}, s{S_JL}, 131072")
    a(f"s_lshl_b32 s{t}, s{S_WAVE}, 5")
    a(f"s_add_u32 s{t}, s{t}, s{S_H}")
    a(f"s_lshl_b32 s{t}, s{t}, 2")
    a(f"s_add_u32 s{t}, s{t}, {WS_FC}")
    a(f"s_lshl_b32 s{t+1}, s{S_I}, 9")
    a(f"s_add_u32 s{S_FC}, s{t}, s{t+1}")
    a(f"s_sub_u32 s{S_FC+1}, s{t}, s{t+1}")
    a(f"s_add_u32 s{S_FC+1}, s{S_FC+1}, {15*512}")
    a(f"s_sub_u32 s{t}, 15, s{S_I}")
    a(f"s_bitcmp1_b32 s{S_X}, 0")
    a(f"s_cselect_b32 s{t}, s{t}, s{S_I}")
    a(f"s_lshl_b32 s{t}, s{t}, 2")
    a(f"s_add_u32 s{t}, s{t}, s{S_HH}")
    a(f"s_lshl_b32 s{t}, s{t}, 2")
    a(f"s_add_u32 s{t}, s{t}, s{S_WAVE}")
    a(f"s_lshl_b32 s{t}, s{t}, 7")
    a(f"s_lshr_b32 s{t+1}, s{S_X}, 1")
    a(f"s_lshl_b32 s{t+1}, s{t+1}, 2")
    a(f"s_add_u32 s{t}, s{t}, s{t+1}")
    a(f"s_add_u32 s{S_FP}, s{t}, {WS_FP}")
    a(f"s_lshr_b32 s{S_FK}, s{S_KV}, 13")
    a(f"s_add_u32 s{S_FK}, s{S_FK}, {WS_FK}")
    a(f"s_lshl_b32 s{S_FQ}, s2, 2")
    a(f"s_add_u32 s{S_FQ}, s{S_FQ}, {WS_FQ}")
    a(f"s_cmp_eq_u32 s{S_WAVE}, 0")
    a(f"s_cselect_b32 s{S_FQ}, s{S_FQ}, {OOB}")
    a(f"s_lshl_b32 s{t}, s2, 2")
    a(f"s_add_u32 s{t}, s{t}, s{S_WAVE}")
    a("v_lshlrev_b32 v23, 7, v0")
    a(f"v_mov_b32 v25, {OOB}")
    a(f"s_mul_i32 s{t+1}, s{t}, {20*128}")
    a(f"s_mul_i32 s{t+2}, s{t}, {18*128}")
    a(f"v_add_u32 v26, s{t+1}, v23")
    a(f"v_add_u32 v27, s{t+2}, v23")
    a(f"s_lshr_b32 s{t}, s2, 3")
    a(f"s_lshl_b32 s{t}, s{t}, 2")
    a(f"s_add_u32 s{t}, s{t}, s{S_WAVE}")
    a(f"s_mul_i32 s{t}, s{t}, {5*8192}")
    a(f"s_lshl_b32 s{t+1}, s{S_X}, 10")
    a(f"s_add_u32 s{t}, s{t}, s{t+1}")
    a(f"v_add_u32 v28, s{t}, v23")
    a("v_mul_u32_u24 v29, 1280, v0")
    for v, n in ((26, 10), (27, 9), (28, 8), (29, 16)):
        a(f"v_cmp_gt_u32 vcc, {n}, v0")
        a("s_nop 1")
        a(f"v_cndmask_b32 v{v}, v25, v{v}, vcc")
    a("s_waitcnt lgkmcnt(0)")
    a(f"s_mul_i32 s{S_EP}, s{S_EP}, 0x9e3779b5")
    a(f"s_add_u32 s{S_EP}, s{S_EP}, 0x7f4a7c15")
def warm_ops(nt=""):
    t = S_ST
    l = [(26, SRD_X, 0), (28, SRD_WQ, 0), (28, SRD_WQ, 8192), (27, SRD_W1P, 0), (28, SRD_WQ, 16384), (26, SRD_X, 1280), (28, SRD_WQ, 24576), (27, SRD_W1P, 1152), (28, SRD_WQ, 32768)]
    return [(f"s_mov_b32 s{t}, {so}", Op(f"buffer_load_dword a252, v{v}, {SR(d)}, s{t} offen{nt if v == 28 else ''}", tag="warm")) for v, d, so in l]
def warm2_ops():
    return [(f"s_add_u32 s{S_ST}, s{S_JS+jb}, {hf*16*1280}", Op(f"buffer_load_dword a252, v30, {SR((SRD_WO, SRD_W2)[jb])}, s{S_ST} offen", tag="warm"))
            for jb in range(2) for hf in range(2)]
def flag_set(v, s): return f"buffer_store_dword v{v}, off, {SR(SRD_WS)}, s{s}{SC}"
def flag_test(v, n=1):
    o = []
    for i in range(1, n): o += [f"v_xor_b32 v{v+i}, s{S_EP}, v{v+i}"]
    o += [f"v_xor_b32 v{v}, s{S_EP}, v{v}"]
    if n == 4: o += [f"v_or3_b32 v{v}, v{v}, v{v+1}, v{v+2}", f"v_or_b32 v{v}, v{v}, v{v+3}"]
    return o + [f"v_cmp_eq_u32 vcc, 0, v{v}", "s_cmp_eq_u64 vcc, -1"]

NKV = 8; NQF = 10; NS = NKV + NQF
class Proj:
    def __init__(self, nt_kv=" nt", nt_q="", nt_c=""):
        self.G = Gaps(); self.tmp = 0; self.gap0 = []; self.nt_kv = nt_kv; self.nt_q = nt_q; self.nt_c = nt_c
    def NT(self, s): return 16 if s < NKV else 12
    def stmp(self):
        self.tmp = (self.tmp + 1) % 4
        return S_T0 + self.tmp
    def w_dma(self, s):
        out = []
        kv = s < NKV; k = s if kv else s - NKV
        for cg in range(4 if kv else 3):
            for e in range(2):
                m0 = f"s_add_u32 m0, s{S_WB}, {(s%3)*32768 + cg*8192 + e*2048}"
                if not kv and cg == 0:
                    t, vreg, srd_ = S_W1OFF, V_W1, SRD_W1
                    so = f"s_add_u32 s{t}, s{t}, s{S_INC4 if e else S_INC60}"
                else:
                    t = self.stmp(); vreg = V_W
                    srd_, half = ((SRD_WK, SRD_WV)[cg >> 1], cg & 1) if kv else (SRD_WQ, cg - 1)
                    so = f"s_add_u32 s{t}, s{S_COL}, {half*128 + (64*k + 4*e)*8192}"
                out.append((m0, so, Op(f"buffer_load_dwordx4 v{vreg}, {SR(srd_)}, s{t} offen{self.nt_kv if kv else (self.nt_q if cg else '')} lds", tag=f"W{s}")))
        return out
    def a_dma(self, s):
        out = []
        srd_, vreg, srow, k = (SRD_C, V_AC, S_ROWC, s) if s < NKV else (SRD_X, V_AX, S_ROWX, s - NKV)
        for t8 in range(8):
            t = self.stmp()
            out.append((f"s_add_u32 m0, s{S_ACTB}, {(s%2)*32768 + t8*1024}",
                        f"s_add_u32 s{t}, s{srow + (t8>>1)}, {128*k}",
                        Op(f"buffer_load_dwordx4 v{vreg + (t8&1)}, {SR(srd_)}, s{t} offen{self.nt_c if s < NKV else ''} lds", tag=f"A{s}")))
        return out
    def act_reg(self, s, u, ks): return A_ACT + (s % 2)*32 + (u*2 + ks)*4
    def a_read(self, s, u, ks):
        return Op(f"ds_read_b128 {R(self.act_reg(s,u,ks),4)}, v{V_AR+ks} offset:{(s%2)*32768 + 2048*u}", tag=f"ar{s}_{u}")
    def wf_reg(self, gi, ks): return A_WF + (gi % 4)*8 + ks*4
    def t_reads(self, Gi, gi):
        return [Op(f"ds_read_b64_tr_b16 {R(self.wf_reg(gi,ks)+2*e,2)}, v{V_T+(Gi&3)} offset:{(Gi>>2)*8192 + ks*4096 + e*2048}", tag=f"t{gi}")
                for ks in range(2) for e in range(2)]
    def gap(self, s, Gi=0, j=0): return self.gap0[self.gstart[(s, Gi)]] + j
    def bar_gap(self, s): return self.gap(s, self.NT(s) - 2) - 1
    def build(self, mid_ops):
        G = self.G; n = NS
        groups = []
        for s in range(n):
            kv = s < NKV
            for Gi in range(self.NT(s)):
                gi = len(groups); groups.append((s, Gi)); self.gap0.append(len(G.m))
                for u in range(4):
                    for ks in range(2):
                        d = (acc_kv if kv else acc_qf)(Gi, u); w = self.wf_reg(gi, ks); x = self.act_reg(s, u, ks)
                        c = "0" if (s in (0, NKV) and ks == 0) else None
                        G.mfma(mfma(d, x, w, c) if (kv and Gi >= 8) else mfma(d, w, x, c))
        self.gstart = {g: i for i, g in enumerate(groups)}
        ng = len(groups); g0 = lambda gi: self.gap0[gi]
        def emit_pre(trip):
            for m0, so, ld in trip:
                G.put(-1, m0); G.put(-1, so); G.put(-1, ld)
        emit_pre(self.w_dma(0)); emit_pre(self.a_dma(0)); emit_pre(self.w_dma(1)); emit_pre(self.a_dma(1))
        for o in mid_ops: G.put(-1, o)
        G.put(-1, W(v=["W0", "A0"])); G.put(-1, "s_barrier")
        for u in range(4):
            for ks in range(2): G.put(-1, self.a_read(0, u, ks))
        for o in self.t_reads(0, 0) + self.t_reads(1, 1): G.put(-1, o)
        G.put(-1, W(l=["t0"]))
        self.bar_wait = {}
        for gi, (s, Gi) in enumerate(groups):
            if gi + 2 < ng:
                for j, o in enumerate(self.t_reads(groups[gi + 2][1], gi + 2)): G.put(g0(gi) + (j & 2), o)
            last_gap = g0(gi) + 7
            if gi + 3 < ng and groups[gi + 3][1] == 0:
                sn = groups[gi + 3][0]
                delta = 32768 if sn % 3 else -65536
                for n_ in range(4):
                    G.put(g0(gi) + (4, 4, 6, 6)[n_], f"v_add_u32 v{V_T+n_}, {delta & 0xffffffff}, v{V_T+n_}")
                self.bar_wait[s] = W(v=[f"W{sn}"], l="*")
                G.put(last_gap, self.bar_wait[s]); G.put(last_gap, "s_barrier")
            elif gi + 1 < ng:
                G.put(last_gap, W(l=[f"t{gi+1}"]))
        jobs = []
        for s in range(n):
            NT = self.NT(s); base = self.gstart[(s, 0)]
            ga = 2 if NT >= 16 else 0
            if s + 1 < n:
                G.put(g0(base + ga) + 4, W(v=[f"A{s+1}"]))
                for u in range(4):
                    for ks in range(2): G.put(g0(base + ga + u) + 4, self.a_read(s + 1, u, ks))
            lo = base - 2 if s > 0 else base
            ngap = NT*8 - (0 if s > 0 else 16)
            jl = []
            if s == 0: jl += [(0, x) for x in self.a_dma(2)]
            if s + 2 < n: jl += [(g0(lo), x) for x in self.w_dma(s + 2)]
            if s + 3 < n: jl += [(g0(base + ga + (t >> 1) + 3), x) for t, x in enumerate(self.a_dma(s + 3))]
            for k_, (e, x) in enumerate(jl): jobs.append((e, g0(lo) + (k_ * ngap) // max(14, len(jl)), x))
        prev = -1
        for e, sp, (m0, so, ld) in jobs:
            prev = place_vm(G, max(e + 1, sp), ld, m0, so, prev)
        return self
    def last_mfma(self, s, Gi, u): return self.gap(s, Gi, u*2 + 1)

class Tail:
    def __init__(self, gaps):
        self.G = gaps; self.cur = 0; self.post = []
    def add(self, x, earliest=0):
        x = mk(x)
        if self.post: self.post.append(x); return None
        lo = max(self.cur, earliest)
        g = self.G.fit(lo, x) if lo < len(self.G.m) else None
        if g is None: self.post.append(x); return None
        self.cur = g
        return g

def cvt4(d, ra, rb):
    return [f"v_cvt_pk_bf16_f32 v{d}, v{ra}, v{ra+1}", f"v_cvt_pk_bf16_f32 v{d+1}, v{ra+2}, v{ra+3}",
            f"v_cvt_pk_bf16_f32 v{d+2}, v{rb}, v{rb+1}", f"v_cvt_pk_bf16_f32 v{d+3}, v{rb+2}, v{rb+3}"]

def kv_epilogue(P, first=26, step=24, ndirect=4, sc=SC):
    G = P.G; s = NKV - 1
    frags = []
    for kp in range(4):
        for u in range(4): frags.append((acc_kv(2*kp, u), acc_kv(2*kp + 1, u), P.last_mfma(s, 2*kp + 1, u), ((2*kp, u), (2*kp + 1, u)), (u*4 + kp)*1024))
    for dt in range(8):
        for kb in range(2): frags.append((acc_kv(8 + dt, 2*kb), acc_kv(8 + dt, 2*kb + 1), P.last_mfma(s, 8 + dt, 2*kb + 1), ((8 + dt, 2*kb), (8 + dt, 2*kb + 1)), 16384 + (kb*8 + dt)*1024))
    home = []; npark = 0
    for n, (ra, rb, rdy, grp, off) in enumerate(frags):
        Gi = grp[0][0]
        if n < ndirect or Gi in (12, 13): home.append(ra)
        elif Gi >= 14: home.append(acc_kv(Gi - 2, grp[1][1]))
        else: home.append(A_PARK + 4*npark); npark += 1
    sg = []; prev = -1
    for n, f in enumerate(frags):
        ld = Op(f"buffer_store_dwordx4 {R(home[n],4)}, v{V_L16}, {SR(SRD_WS)}, s{S_ST} offen{sc}", tag="KVst")
        prev = place_vm(G, P.gap(s) + first + step*n, ld, None, f"s_add_u32 s{S_ST}, s{S_KV}, {WS_KV + f[4]}", prev)
        sg.append(prev)
    T = Tail(G)
    for n, (ra, rb, rdy, grp, off) in enumerate(frags):
        e = rdy + 8
        if ra >= 256:
            tmp = V_TMP + 8*(n % 2)
            for j in range(4): T.add(f"v_accvgpr_read_b32 v{tmp+j}, {R(ra+j)}", e)
            for j in range(4): T.add(f"v_accvgpr_read_b32 v{tmp+4+j}, {R(rb+j)}")
            for o in cvt4(home[n], tmp, tmp + 4): g = T.add(o)
        elif home[n] >= 256:
            for o in cvt4(ra, ra, rb): T.add(o, e)
            for j in range(4): g = T.add(f"v_accvgpr_write_b32 {R(home[n]+j)}, v{ra+j}")
        else:
            for o in cvt4(ra, ra, rb): g = T.add(o, e)
        assert g < sg[n], ("store before pack", n, g, sg[n])
        for (Gi, u) in grp:
            if Gi < 12:
                need = P.gap(NKV, Gi, 2*u) - 1
                assert g <= need - 1, ("acc reuse", n, g, need)
                if home[n] == acc_kv(Gi, u): assert sg[n] <= need - 1, ("acc reuse by store", n, sg[n], need)
    assert not T.post
    P.kv_pack_end = T.cur
    return sg[-1]

def wt_addr(P, e):
    T = Tail(P.G)
    for o in ["v_bfe_u32 v16, v0, 2, 3", "v_lshrrev_b32 v17, 5, v0", "v_lshlrev_b32 v17, 10, v17", "v_lshl_add_u32 v17, v16, 7, v17",
              f"v_add_u32 v17, s{S_JL}, v17", "v_bfe_u32 v16, v0, 3, 1", "v_lshlrev_b32 v16, 2, v16", "v_and_b32 v18, 3, v0",
              "v_or_b32 v16, v16, v18", f"v_lshl_add_u32 v{V_JT}, v16, 4, v17", f"v_xor_b32 v{V_JT+1}, 64, v{V_JT}"]: T.add(o, e)
WT_NT = [' nt']
def wt_dma():
    return [(f"s_add_u32 m0, s{S_JL}, {jb*4096 + q*1024}", f"s_add_u32 s{S_W1OFF}, s{S_JS+jb}, {q*8*1280}",
             Op(f"buffer_load_dwordx4 v{V_JD}, {SR((SRD_WO, SRD_W2)[jb])}, s{S_W1OFF} offen{WT_NT[0]} lds", tag="wt")) for jb in range(2) for q in range(4)]
A_WT = 128
def wt_reads():
    return [f"ds_read_b64_tr_b16 a[{A_WT+16*jb+4*n+2*e}:{A_WT+16*jb+4*n+2*e+1}], v{V_JT+(n>>1)} offset:{jb*4096 + e*2048 + 8*(n&1)}"
            for jb in range(2) for n in range(4) for e in range(2)]
def wt_stores():
    return [f"buffer_store_dwordx4 a[{A_WT+16*jb+4*n}:{A_WT+16*jb+4*n+3}], v{V_L16}, {SR(SRD_WS)}, s{S_JD+jb} offen offset:{n*1024}{SC}"
            for jb in range(2) for n in range(4)]

V_BIAS = 160
def bias_ops(P, s):
    G = P.G; T = Tail(G)
    T.add(f"v_lshrrev_b32 v23, 4, v0", P.gap(s)); g = T.add(f"v_lshlrev_b32 v23, 3, v23")
    prev = g
    for ft in range(4):
        prev = place_vm(G, prev + 2, Op(f"buffer_load_dwordx2 v[{240+2*ft}:{241+2*ft}], v23, {SR(SRD_B1)}, s{S_ST} offen offset:{32*ft}", tag="bias"),
                        None, f"s_lshl_b32 s{S_ST}, s{S_FB}, 7", prev)
    return prev

def q_epilogue(a):
    a(f"v_mov_b32 v16, {f2h(QSCALE)}"); a("v_mov_b32 v17, v16")
    for u in range(4):
        for kp in range(4):
            ra, rb = acc_qf(4 + 2*kp, u), acc_qf(5 + 2*kp, u)
            for r in (ra, ra + 2, rb, rb + 2): a(f"v_pk_mul_f32 v[{r}:{r+1}], v[{r}:{r+1}], v[16:17]")
            a(cvt4(ra, ra, rb))

def h_epilogue(a):
    sc = [f"s_lshl_b32 s{S_ST}, s{S_FB}, 11", f"s_add_u32 s{S_ST}, s{S_ST}, {WS_H}"]
    for u in range(4): sc += [f"s_mul_i32 s{S_T0+u}, s{S_RT+u}, {54*1024}", f"s_add_u32 s{S_T0+u}, s{S_T0+u}, s{S_ST}"]
    for ft in range(4):
        for hf in range(2):
            a(f"v_lshlrev_b32 v{V_BIAS+4*ft+2*hf}, 16, v{240+2*ft+hf}")
            a(f"v_and_b32 v{V_BIAS+4*ft+2*hf+1}, 0xffff0000, v{240+2*ft+hf}")
            a(sc.pop(0))
    a(f"v_mov_b32 v16, {f2h(-GK1)}"); a("v_mov_b32 v17, v16"); a(sc.pop(0))
    a(f"v_mov_b32 v18, {f2h(-GK0)}"); a("v_mov_b32 v19, v18"); a(sc.pop(0))
    a("v_mov_b32 v20, 1.0"); a("v_mov_b32 v21, 1.0")
    for u in range(4):
        for kb in range(2):
            regs = [acc_qf(2*kb + t, u) + 2*hf for t in range(2) for hf in range(2)]
            bias = [V_BIAS + 4*(2*kb + t) + 2*hf for t in range(2) for hf in range(2)]
            T = [24 + 2*i for i in range(4)]
            p = lambda r: f"v[{r}:{r+1}]"
            for r, b_ in zip(regs, bias): a(f"v_pk_add_f32 {p(r)}, {p(r)}, {p(b_)}")
            for r, t in zip(regs, T): a(f"v_pk_mul_f32 {p(t)}, {p(r)}, {p(r)}")
            for r, t in zip(regs, T): a(f"v_pk_fma_f32 {p(t)}, {p(t)}, v[16:17], v[18:19]")
            for r, t in zip(regs, T): a(f"v_pk_mul_f32 {p(t)}, {p(t)}, {p(r)}")
            for t in T: a(f"v_exp_f32 v{t}, v{t}"); a(f"v_exp_f32 v{t+1}, v{t+1}")
            for t in T: a(f"v_pk_add_f32 {p(t)}, {p(t)}, v[20:21]")
            for t in T: a(f"v_rcp_f32 v{t}, v{t}"); a(f"v_rcp_f32 v{t+1}, v{t+1}")
            for r, t in zip(regs, T): a(f"v_pk_mul_f32 {p(t)}, {p(t)}, {p(r)}")
            d = regs[0]
            for i, t in enumerate(T): a(f"v_cvt_pk_bf16_f32 v{d+i}, v{t}, v{t+1}")
            a(f"buffer_store_dwordx4 v[{d}:{d+3}], v{V_L16}, {SR(SRD_WS)}, s{S_T0+u} offen offset:{kb*1024}{SC}")


def gate_epilogue(a):
    a("v_lshlrev_b32 v16, 2, v0")
    a(f"v_mov_b32 v17, {OOB}")
    a("v_cmp_gt_u32 vcc, 16, v0")
    for u in range(4):
        a(f"s_lshl_b32 s{S_T0+u}, s{S_RT+u}, 6")
        a(f"s_add_u32 s{S_T0+u}, s{S_T0+u}, {WS_G}")
    a("v_cndmask_b32 v16, v17, v16, vcc")
    r = [acc_qf(0, u) for u in range(4)]
    for x in r: a(f"v_permlane32_swap_b32 v{x+1}, v{x+2}")
    a("s_nop 1")
    for x in r: a(f"v_add_f32 v{x}, v{x}, v{x+2}")
    for x in r: a(f"v_mul_f32 v{x}, {f2h(-math.log2(math.e))}, v{x}")
    for x in r: a(f"v_exp_f32 v{x}, v{x}")
    for x in r: a(f"v_add_f32 v{x}, 1.0, v{x}")
    for x in r: a(f"v_rcp_f32 v{x}, v{x}")
    a("s_nop 0")
    for u, x in enumerate(r): a(f"buffer_store_dword v{x}, v16, {SR(SRD_WS)}, s{S_T0+u} offen{SC}")
```

```python
import sys, json
from gen_fin import *

def flat(ops): return resolve(ops)[0]

def gen(name, stamps, opt):
    a = Asm(); spins = Spins()
    entry(a, name, not opt.get('nocode'), stamps)
    setup_first(a)
    stamps.early_save(a)
    stamps.stamp(a, "start")
    m = Asm(); setup_rest(m)
    P = Proj(**opt.get('proj', {})).build([Op(x.strip()) for x in m.lines])
    G = P.G
    if not opt.get('nowarm'):
        for k, (so, o) in enumerate(warm_ops(opt.get('warmnt', ''))): place_vm(G, opt.get('warm0', 60) + opt.get('warmstep', 80)*k, o, None, so)
    last_st = kv_epilogue(P, **opt.get('kv', {}))
    wt_addr(P, last_st + 4)
    if opt.get('warm2'):
        T = Tail(G); T.add("v_mul_u32_u24 v30, 1280, v0", P.gap(10)); T.add(f"v_mov_b32 v29, {OOB}"); T.add("v_cmp_gt_u32 vcc, 16, v0"); T.cur += 2; T.add("v_cndmask_b32 v30, v29, v30, vcc")
        for k, (so, o) in enumerate(warm2_ops()): place_vm(G, P.gap(opt['warm2']) + 40*k, o, None, so)
    bias_ops(P, 16)
    T = Tail(G)
    T.add(f"v_mov_b32 v20, s{S_EP}", P.gap(12)); T.add("v_and_b32 v21, 31, v0"); T.add("v_lshlrev_b32 v21, 2, v21")
    def free_gap(g):
        while G.g[g]: g += 1
        return g
    g = free_gap(last_st + opt.get('kvflag', 80)); G.put(g, W(v=["KVst"])); G.put(g, Op(flag_set(20, S_FK), tag="fl"))
    place_scalars(G, [f"s_and_b32 s{S_FK}, s{S_FK}, 0xffffff80"] + att_setup_s(), max(g + 1, P.gap(15)), P.gap(16) - 1)
    pl = f"buffer_load_dword v22, v21, {SR(SRD_WS)}, s{S_FK} offen{SC}"
    place_vm(G, P.gap(16), Op(pl, tag="p1"))
    g = free_gap(P.bar_gap(16) + 1); G.put(g, W(v=["p1"])); G.put(g, block(spins.check(pl, flag_test(22)), "valu"))
    ge = att_prefetch0(G, g + 1)
    print("att prefetch ends at gap", ge, "of", len(G.m), "overflow", G.overflow())
    stamps.put(G, -1, "mfma0")
    for s_ in (4, 7, 8, 10, 12, 14, 16): stamps.put(G, P.gap(s_) - 1, f"stage{s_}")
    lines, vm, _ = resolve(G.ops() + [W(v=["bias"])])
    a(lines)
    stamps.stamp(a, "qf_mm")
    pre = list(a.lines)
    n0 = len(a.lines)
    a(f"s_cmp_lg_u32 s{S_AUX}, 0")
    a("s_cbranch_scc1 L_gate")
    h_epilogue(a)
    hpath = a.lines[n0:]
    a.label("L_qepi")
    n0 = len(a.lines)
    q_epilogue(a)
    att_setup_v(a)
    stamps.stamp(a, "att0")
    a("s_waitcnt vmcnt(20)"); a("s_barrier")
    for i in range(8): a(kread(0, i).text)
    a(k_pre()); a("s_nop 0")
    for j in range(4): a(dma("K", j).text)
    a(k_post())
    first = a.lines[n0:]
    head = flat(head_ops())
    st = [full_step(p, poll=(p == 1), fq=(p == 3)) for p in range(4)]
    place_scalars(st[3], [f"s_sub_u32 s{S_PER}, s{S_PER}, 1", f"s_cmp_lg_u32 s{S_PER}, 0"], 16 + 12, 16 + 16)
    for p in range(4): assert st[p].overflow() == 0, (p, st[p].overflow())
    ops = [g.ops() for g in st]
    tr = flat(ops[1] + ops[2] + ops[3] + ops[0])
    n1, n2, n3 = len(ops[1]), len(ops[2]), len(ops[3])
    s1, s2, s3, s0 = tr[:n1], tr[n1:n1+n2], tr[n1+n2:n1+n2+n3], tr[n1+n2+n3:]
    c0 = lambda j, kt: CM(0, kt) if j == 0 else NM(1)
    c1 = lambda j, kt: CM(0, 2 + kt) if j == 0 else NM(1)
    d0l = flat(ops[3] + full_step(0, c0).ops())[n3:]
    d1g = full_step(1, c1, extra=wt_dma()); dtg = diag_tail(bar16=24)
    print("d1 overflow", d1g.overflow(), dtg.overflow())
    d1l = flat(d1g.ops() + dtg.ops() + [W(v=["wt"])] + [Op(x) for x in wt_reads()])
    a.label("L_head")
    a(head)
    a(f"s_cmp_eq_u32 s{S_QB}, 0")
    a("s_cbranch_scc1 L_B")
    a("s_branch L_A")
    a(".p2align 6")
    a.label("L_loop")
    a(s0)
    a.label("L_A")
    a(s1); a(s2); a(s3)
    a("s_cbranch_scc1 L_loop")
    a(f"s_cmp_lg_u32 s{S_BLK}, 0")
    a("s_cbranch_scc1 L_last")
    a(d0l)
    a.label("L_B")
    a(d1l)
    n0 = len(a.lines)
    a(flat(epilogue("1", [(None, None, None), (None, "s_waitcnt lgkmcnt(0)", None)] + [(None, None, Op(x)) for x in wt_stores()])))
    fs, fv = fin_setup()
    mv = [f"v_mov_b64 v[{176+r}:{177+r}], v[{QNEXT+r}:{QNEXT+r+1}]" for r in range(0, 32, 2)] + fv
    fs += [f"s_mov_b32 s{S_BLK}, 1", f"s_sub_u32 s{S_QB}, 15, s{S_I}", f"s_sub_u32 s{S_FQP}, 14, s{S_I}"]
    while fs or mv:
        if mv: a(mv.pop(0))
        for _ in range(3):
            if fs: a(fs.pop(0))
    epi1 = a.lines[n0:]
    stamps.stamp(a, "blk1")
    a("s_branch L_head")
    n0 = len(a.lines); slow_path(a); slow = a.lines[n0:]
    a.label("L_gate")
    n0 = len(a.lines); gate_epilogue(a); gpath = a.lines[n0:]
    a("s_branch L_qepi")
    F = Fin()
    fl1 = (None, None, Op(flag_set(V_EP, S_FC), tag="fl"))
    chk = [W(v=["poll"]), block(spins.check(fq_poll(S_TA + 3), flag_test(V_POLL, 4)), "valu")]
    slots9 = (2, 6, 10, 15, 19, 23, 27, 31, 32)
    d0L = full_step(0, c0, last=(F.a_loads(0) + F.a_loads(1) + [fl1], slots9, W(v=["K35"], l="*")))
    d1L = full_step(1, c1, last=(F.w_dma(0) + F.a_loads(2), (2, 6, 10, 15, 19, 23, 27, 31, 33), None))
    dtL = diag_tail(last=(F.w_dma(1) + F.g_loads(), W(l="*"), F.w_dma(2) + F.a_loads(3)))
    epi2 = epilogue("2", F.w_dma(3) + F.a_loads(4))
    F.build(spins, **opt.get("fin", {}))
    print("last: overflow", d0L.overflow(), d1L.overflow(), dtL.overflow(), F.G.overflow())
    sb = Asm(); stamps.stamp(sb, "blk2")
    stamps.put(F.G, -1, "fmfma0"); stamps.put(F.G, F_ST*40 - 1, "ffn2")
    _, _, ds3 = resolve(ops[3])
    lastl, _, _ = resolve(chk + d0L.ops() + d1L.ops() + dtL.ops() + epi2 + [Op(x.strip()) for x in sb.lines] + F.G.ops() + [W(v=["g"])],
                          vm0=["poll"] + ["V33"]*4 + ["K35"]*4 + ["fq"], ds0=ds3)
    a.label("L_last")
    n0 = len(a.lines)
    a(lastl)
    stamps.stamp(a, "fmm")
    fin_tail(a, spins)
    last = a.lines[n0:]
    stamps.stamp(a, "issued")
    if stamps.enabled: a("s_waitcnt vmcnt(0)")
    stamps.stamp(a, "end")
    stamps.dump(a, 0)
    a("s_endpgm")
    spins.emit(a)
    a.label('L_code_end')
    lint(pre + hpath + first + head + s1 + s2 + s3 + s0 + s1 + s2 + s3 + d0l + d1l + epi1 + head + s1 + s2 + s3 + last, "main")
    lint(pre[-200:] + hpath[:2] + gpath + first + head + d1l + epi1, "gate")
    k = [i for i, x in enumerate(epi1) if x.startswith("store1")][0]
    lint(d1l + epi1[:k] + slow + slow[90:] + epi1[1:], "slow")
    return a

if __name__ == "__main__":
    out = sys.argv[1]
    st = Stamps("stamp" in sys.argv)
    opt = eval(sys.argv[2])
    name = KNAME + "_kernel"
    a = gen(name, st, opt)
    txt = file_text([(name, 256, 256, 163840)], a.text(), [kernel_desc(name, 256, 256)], single=True)
    open(out, "w").write(txt)
    json.dump({"stamps": [st.names]}, open(out + ".json", "w"))
```

```python
import sys, re
from gen_common import *
src = open(sys.argv[1]).read()
K = KNAME + "_kernel"
def variant(out, order, extra_body="", extra_desc=""):
    hdr = "".join(f"; @launch kernel={k} grid=(256,1,1) block=(256,1,1) lds={163840 if k == K else 0}\n" for k in order)
    t = re.sub(r"; @launch grid[^\n]*\n", hdr, src, count=1)
    t = t.replace('.section .rodata,"a"', "code_end:\n" + extra_body + '.section .rodata,"a"\n' + extra_desc)
    open(out, "w").write(t)
def kern(name, body):
    a = Asm(); kernel_begin(a, name)
    a("s_cmp_lt_u32 s2, 256"); a(f"s_cbranch_scc1 {name}_go"); a("s_endpgm"); a.label(name + "_go")
    body(a); a("s_waitcnt vmcnt(0)"); a("s_endpgm")
    return a.text(), ".p2align 6\n" + kernel_desc(name, 32, 0, 64)
variant("build/e1.s", [K])
variant("build/e2.s", [K, K])
def spin(a):
    a("s_memrealtime s[4:5]"); a("s_waitcnt lgkmcnt(0)"); a("s_add_u32 s6, s4, 1000")
    a.label("spl"); a("s_sleep 2"); a("s_memrealtime s[4:5]"); a("s_waitcnt lgkmcnt(0)"); a("s_sub_u32 s7, s6, s4"); a("s_cmp_gt_i32 s7, 0"); a("s_cbranch_scc1 spl")
b, d = kern("spin_kernel", spin)
variant("build/e3.s", ["spin_kernel", K], b, d)
variant("build/e4.s", [K, "spin_kernel"], b, d)
def pages(shift):
    def f(a):
        a("s_load_dwordx2 s[4:5], s[0:1], 112")
        a("s_load_dwordx16 s[16:31], s[0:1], 0")
        a("s_load_dwordx8 s[32:39], s[0:1], 64")
        a("s_load_dwordx2 s[40:41], s[0:1], 96")
        a("s_lshr_b32 s8, s2, 3"); a("s_lshl_b32 s8, s8, 6")
        a("v_and_b32 v0, 63, v0")
        a("v_add_u32 v1, s8, v0"); a("v_min_u32 v1, 0x7ff, v1"); a(f"v_lshlrev_b32 v1, {shift}, v1")
        a("s_waitcnt lgkmcnt(0)")
        a(f"s_mov_b32 s6, {84*MB}"); a("s_mov_b32 s7, 0x20000")
        a("buffer_load_dword v4, v1, s[4:7], 0 offen")
        for p, sz in ((16, SZ_X), (18, SZ_C), (20, SZ_WQ), (22, SZ_WU), (24, SZ_WU), (26, SZ_WO), (30, SZ_W1), (32, 3456), (34, SZ_W2), (36, 1280), (38, 1280), (40, SZ_OUT)):
            a(f"s_mov_b32 s12, s{p}"); a(f"s_mov_b32 s13, s{p+1}"); a(f"s_mov_b32 s14, {sz}"); a("s_mov_b32 s15, 0x20000")
            a("buffer_load_dword v4, v1, s[12:15], 0 offen")
    return f
b, d = kern("page_kernel", pages(20))
variant("build/e5.s", ["page_kernel", K], b, d)
b, d = kern("page_kernel", pages(16))
variant("build/e6.s", ["page_kernel", K], b, d)
```

```python
import sys, re
from gen_common import *
src = open(sys.argv[1]).read()
K = KNAME + "_kernel"
def variant(out, order, extra_body="", extra_desc=""):
    hdr = "".join(f"; @launch kernel={k} grid=(256,1,1) block=(256,1,1) lds={163840 if k == K else 0}\n" for k in order)
    t = re.sub(r"; @launch grid[^\n]*\n", hdr, src, count=1)
    t = t.replace('.section .rodata,"a"', "code_end:\n" + extra_body + '.section .rodata,"a"\n' + extra_desc)
    open(out, "w").write(t)
def kern(name, body):
    a = Asm(); kernel_begin(a, name)
    a("s_cmp_lt_u32 s2, 256"); a(f"s_cbranch_scc1 {name}_go"); a("s_endpgm"); a.label(name + "_go")
    body(a); a("s_waitcnt vmcnt(0)"); a("s_endpgm")
    return a.text(), ".p2align 6\n" + kernel_desc(name, 32, 0, 64)
variant("build/e1.s", [K])
OFF = 200*MB
def mark(a):
    a("s_memrealtime s[8:9]")
    a("s_load_dwordx2 s[4:5], s[0:1], 112"); a("s_waitcnt lgkmcnt(0)")
    a(f"s_mov_b32 s6, {WS_BYTES}"); a("s_mov_b32 s7, 0x20000")
    a(f"s_mov_b32 s10, {OFF}"); a("s_cmp_eq_u32 s2, 0"); a(f"s_cselect_b32 s10, s10, {OOB}")
    a("v_mov_b32 v1, s8")
    a("buffer_store_dword v1, off, s[4:7], s10")
def until(ticks):
    def f(a):
        a("s_load_dwordx2 s[4:5], s[0:1], 112"); a("s_waitcnt lgkmcnt(0)")
        a(f"s_add_u32 s4, s4, {OFF}"); a("s_addc_u32 s5, s5, 0")
        a("s_load_dword s6, s[4:5], 0"); a("s_waitcnt lgkmcnt(0)"); a(f"s_add_u32 s6, s6, {ticks}")
        a("s_mov_b32 s11, 0")
        a.label("spl"); a("s_memrealtime s[8:9]"); a("s_waitcnt lgkmcnt(0)"); a("s_add_u32 s11, s11, 1"); a("s_cmp_gt_u32 s11, 20000"); a("s_cbranch_scc1 spe"); a("s_sub_u32 s7, s6, s8"); a("s_cmp_gt_i32 s7, 0"); a("s_cbranch_scc1 spl")
        a.label("spe")
    return f
b1, d1 = kern("mark_kernel", mark)
b2, d2 = kern("until_kernel", until(12000))
variant("build/e2.s", ["mark_kernel", K, "until_kernel"], b1 + b2, d1 + d2)
b2, d2 = kern("until_kernel", until(0))
variant("build/e3.s", ["mark_kernel", K, "until_kernel"], b1 + b2, d1 + d2)
```

```python
from gen_proj import *

V_KA = 2; V_VA = 3; V_TB = 4
V_M2 = 240
V_POLL = 244
V_EP = 252
def O_(dt, j): return 16 + (dt*2 + j)*4
def L_(j): return 80 + 4*j
def S_(b, kt, j): return 88 + b*16 + (j*2 + kt)*4
def P_(b, j): return 120 + b*8 + 4*j
def NM(j): return 136 + 4*j
def CM(j, k4): return 144 + (j*4 + k4)*4
def Q_(blk, j, ks): return 176 + blk*32 + (j*4 + ks)*4
KF0 = 256; VF0 = 256 + 32; ONES = 256 + 64; XB = 256 + 68
BIG = 2.0**100

S_OFFK = 12; S_OFFV = 13; S_CNT = 14; S_N1 = 15; S_BASE = 16; S_RK = 17; S_RV = 18; S_PER = 19; S_QB = 20; S_BLK = 21
S_CTX = 22
S_TA = 62
S_SL = 66
S_FQP = 69

def fq_poll(so): return f"buffer_load_dwordx4 v[{V_POLL}:{V_POLL+3}], v{V_L16}, {SR(SRD_WS)}, s{so} offen{SC}"
def kreads(unit, base=KF0, tag="k"):
    return [Op(f"ds_read_b128 {R(base+4*i,4)}, v{V_KA} offset:{unit*8192 + i*1024}", tag=f"{tag}{i>>2}") for i in range(8)]
def vreads(unit, base=VF0, tag="v"):
    return [Op(f"ds_read_b128 {R(base+4*i,4)}, v{V_VA} offset:{unit*8192 + i*1024}", tag=f"{tag}{i>>2}") for i in range(8)]
def dma(which, j, tag="dma"):
    s = S_OFFK if which == "K" else S_OFFV
    return Op(f"buffer_load_dwordx4 v{V_L16}, {SR(SRD_WS)}, s{s} offen offset:{j*1024}{SC} lds", tag=tag)
def exps(b, j): return [f"v_exp_f32 v{S_(b,kt,j)+r}, v{S_(b,kt,j)+r}" for kt in range(2) for r in range(4)]
def cvts(b, j): return [f"v_cvt_pk_bf16_f32 v{P_(b,j)+i}, v{S_(b,i>>1,j)+2*(i&1)}, v{S_(b,i>>1,j)+2*(i&1)+1}" for i in range(4)]
KFLIP = f"v_xor_b32 v{V_KA}, 0x8000, v{V_KA}"; VFLIP = f"v_xor_b32 v{V_VA}, 0x8000, v{V_VA}"
K_PRE = f"s_mov_b32 m0, s{S_RK}"; V_PRE = f"s_add_u32 m0, s{S_RV}, 65536"
def k_post(): return [f"s_add_u32 s{S_RK}, s{S_RK}, 16384", f"s_and_b32 s{S_RK}, s{S_RK}, 0xffff"]
def v_ring(): return [f"s_add_u32 s{S_RV}, s{S_RV}, 16384", f"s_and_b32 s{S_RV}, s{S_RV}, 0xffff"]
def k_adv():
    return [f"s_add_u32 s{S_TA}, s{S_OFFK}, 16384", f"s_add_u32 s{S_OFFK}, s{S_OFFK}, 32768", f"s_add_u32 s{S_CNT}, s{S_CNT}, 1",
            f"s_cmp_eq_u32 s{S_CNT}, s{S_N1}", f"s_cselect_b32 s{S_OFFK}, s{S_BASE}, s{S_OFFK}",
            f"s_cmp_ge_u32 s{S_CNT}, 34", f"s_cselect_b32 s{S_OFFK}, {OOB}, s{S_OFFK}"]
V_SET = f"s_mov_b32 s{S_OFFV}, s{S_TA}"
def glue(ops):
    out = []
    for x in ops:
        if x.startswith(("s_cselect", "s_addc", "s_cmov")): out[-1] = out[-1] + "\n" + x
        else: out.append(x)
    return [Op(x, "salu") for x in out]
def put_dma(G, which, slots, tag="dma"):
    G.put(slots[0] - 1, K_PRE if which == "K" else V_PRE)
    for j in range(4): G.put(slots[j], dma(which, j, tag))
    n = len(G.m) - 1
    if which == "K": place_scalars(G, k_post(), slots[0], n)
    else:
        g = place_scalars(G, v_ring() + k_adv(), slots[0], n)
        place_scalars(G, [V_SET], max(g, slots[3] + 1), n)
def put_loads(G, loads, slots):
    assert len(loads) <= len(slots)
    for (m0, so, op), g in zip(loads, slots):
        if m0: G.put(g - 1, m0)
        if so: G.put(g, so)
        G.put(g, op)
def bar(G, g, w):
    G.put(g, w if isinstance(w, Op) else Op(f"s_waitcnt vmcnt({w}) lgkmcnt(0)")); G.put(g, "s_barrier")

def qk(b, blk, cfun, spec=((0, 0, KF0), (1, 1, KF0))):
    return [mfma(S_(b, kt, sl), kb + (kt*4 + ks)*4, Q_(blk, j, ks), cfun(sl, kt) if ks == 0 else None)
            for sl, j, kb in spec for kt in range(2) for ks in range(4)]
def pv(b, zero=False):
    c = "0" if zero else None
    return [mfma(L_(0), ONES, P_(b, 0), c)] + [mfma(O_(dt, j), VF0 + 4*dt, P_(b, j), c) for dt in range(8) for j in range(2)] + [mfma(L_(1), ONES, P_(b, 1), c)]
def pv2(b, v0, v1):
    return [mfma(L_(1), ONES, P_(b, 0))] + [mfma(O_(dt, 1), v0 + 4*dt, P_(b, 0)) for dt in range(8)] + \
           [mfma(O_(dt, 1), v1 + 4*dt, P_(b, 1)) for dt in range(8)] + [mfma(L_(1), ONES, P_(b, 1))]
def q_part(G, m, d, e, c, early=False):
    g0 = len(G.m)
    for x in m: G.mfma(x)
    if early:
        pat = [[d[0], d[1]], [e[0]], [d[2], d[3]], [e[1]], [d[4], c[0]], [e[2]], [], [e[3]], [d[5], c[1]], [e[4]], [d[6], d[7]], [e[5]], [e[6]], [e[7]], [c[2], c[3]], []]
    else:
        pat = [[e[0]], [e[1]], [d[0], c[0]], [e[2]], [e[3]], [d[1], c[1]], [], [e[4]], [e[5]], [d[2], c[2]], [e[6]], [e[7]], [d[3], c[3]], [d[4], d[5]], [d[6], d[7]], []]
    for i, l in enumerate(pat):
        for o in l: G.put(g0 + i, o)
    return g0
def p_part(G, m, d, e, c):
    g0 = len(G.m)
    for x in m: G.mfma(x)
    pat = [[d[0], d[1]], [e[0]], [d[2], d[3]], [e[1]], [d[4], c[0]], [e[2]], [e[3]], [d[5], c[1]], [e[4]], [d[6], d[7]],
           [e[5]], [], [e[6]], [c[2]], [e[7]], [], [c[3]], []]
    for i, l in enumerate(pat):
        for o in l: G.put(g0 + i, o)
    return g0
DSLOT = (6, 15, 16 + 11, 16 + 15)

def step(blk, p, cfun=None, zero=False, stream=True, k2=False, dslot=DSLOT, tag="dma", barw=16):
    G = Gaps(); b = (p + blk) & 1; pb = b ^ 1
    if cfun is None: cfun = lambda j, kt: NM(j)
    q_part(G, qk(b, blk, cfun), vreads((p - 1) & 3), exps(pb, 1), cvts(pb, 1))
    p_part(G, pv(pb, zero), kreads((p + 1) & 3), exps(b, 0), cvts(b, 0))
    G.put(15, W(l=["v0"])); G.put(16 + 7, W(l=["v1"]))
    if p == 0: G.put(16 + 13, VFLIP)
    if p == 2: G.put(16 + 13, KFLIP)
    if k2:
        for o, g in zip(kreads(3, XB, "x"), (26, 27, 28, 29, 30, 31, 32, 33)): G.put(g, o)
    if p & 1:
        G.put(33, W(l=["k0"]))
    else:
        G.put(3, W(l=["k1"])); bar(G, 33, barw)
    if stream: put_dma(G, "K" if p & 1 else "V", dslot, tag)
    return G

C_D0 = lambda j, kt: CM(0, kt) if j == 0 else NM(1)
C_D1 = lambda j, kt: CM(0, 2 + kt) if j == 0 else NM(1)
def x1(G, blk, barw):
    b = blk & 1
    g = q_part(G, qk(b, blk, lambda sl, kt: CM(1, 2*sl + kt), ((0, 1, KF0), (1, 1, XB))), vreads(1), exps(b ^ 1, 1), cvts(b ^ 1, 1), early=True)
    G.put(g + 3, W(l=["k1"])); G.put(g + 7, W(l=["x1"]))
    bar(G, g + 15, barw)
    return g
def end_block1(scal):
    G = Gaps()
    x1(G, 0, W(v=["prev"], l="*"))
    G.put(15, KFLIP)
    G.put(12, f"v_mov_b32 v{NM(0)}, v{V_M2}")
    p_part(G, pv(1), kreads(0), exps(0, 0), cvts(0, 0))
    mv = [f"v_mov_b32 v{NM(j)+r}, v{V_M2+j}" for j in range(2) for r in range(4)][1:]
    for o, g in zip(mv, (13, 29, 32, 19, 21, 24, 26)): G.put(g, o)
    G.put(33, W(l=["k0"]))
    q_part(G, qk(1, 1, lambda j, kt: NM(j)), vreads(2), exps(0, 1), cvts(0, 1))
    G.put(34 + 3, W(l=["k1"])); G.put(34 + 15, W(l=["v0"]))
    for x in pv2(0, VF0, XB): G.mfma(x)
    d, k, e, c = vreads(3, XB, "x"), kreads(1), exps(1, 0), cvts(1, 0)
    pat = [d[0:2], d[2:4], d[4:6], d[6:8], [e[0]], [e[1]], [k[0], c[0]], [e[2]], [e[3]], [k[1], c[1]], [e[4]], [e[5]], [k[2], c[2]],
           [e[6]], [e[7]], [k[3], c[3]], k[4:6], k[6:8]]
    for i, l in enumerate(pat):
        for o in l: G.put(50 + i, o)
    G.put(50 + 4, W(l=["v1"])); G.put(50 + 8, W(l=["x0"])); G.put(50 + 12, W(l=["x1"]))
    G.put(67, VFLIP)
    put_dma(G, "V", (6, 11, 17, 22), "w1")
    put_dma(G, "K", (27, 31, 33, 40), "w2")
    put_dma(G, "V", (45, 49, 56, 62), "w2")
    place_scalars(G, scal, 0, 66)
    return G
def end_block2(loads1, loads2, loads4, barw):
    G = Gaps()
    x1(G, 1, barw)
    put_loads(G, loads1, (3, 6, 9, 12))
    p_part(G, pv(0), vreads(2, XB, "x"), exps(1, 0), cvts(1, 0))
    e, c = exps(1, 1), cvts(1, 1)
    G.put(16 + 11, e[0]); G.put(16 + 15, e[1]); G.put(16 + 16, c[0]); G.put(16 + 17, e[2])
    put_loads(G, loads2, (18, 22, 26, 30))
    G.put(33, W(l=["x1"]))
    for x in pv2(1, XB, VF0): G.mfma(x)
    d = vreads(3)
    pat = [[d[0], d[1], e[3]], [d[2], d[3], c[1]], [e[4]], [d[4], d[5], e[5]], [d[6], d[7], c[2]], [e[6]], [e[7]], [c[3]], []]
    for i, l in enumerate(pat):
        for o in l: G.put(34 + i, o)
    G.put(34 + 8, W(l=["v0"])); G.put(34 + 12, W(l=["v1"]))
    put_loads(G, loads4, (42, 44, 46, 48, 50))
    return G

def att_setup_v(a):
    a(f"v_mov_b32 v{V_KA}, v{V_L16}")
    a(f"v_add_u32 v{V_VA}, 65536, v{V_L16}")
    a("v_and_b32 v6, 15, v0")
    a(f"s_lshl_b32 s{S_TA}, s{S_WAVE}, 4")
    a("v_lshrrev_b32 v7, 4, v0")
    a(f"s_sub_u32 s{S_TA+1}, 112, s{S_TA}")
    a("v_lshlrev_b32 v7, 2, v7")
    a("v_sub_u32 v6, v6, v7")
    a(f"v_add_u32 v7, s{S_TA}, v6")
    a(f"v_add_u32 v8, s{S_TA+1}, v6")
    a("v_cvt_f32_i32 v7, v7"); a("v_cvt_f32_i32 v8, v8")
    a("v_add_f32 v7, 0.5, v7"); a("v_add_f32 v8, 0.5, v8")
    a(f"v_mul_f32 v{V_TB}, {f2h(BIG)}, v7"); a(f"v_mul_f32 v{V_TB+1}, {f2h(BIG)}, v8")
    a(f"v_mov_b32 v{V_EP}, s{S_EP}")
    a("v_mov_b32 v6, 0x3f803f80")
    for i in range(4): a(f"v_accvgpr_write_b32 {R(ONES+i)}, v6")

def att_setup_s():
    return [f"s_lshl_b32 s{S_BASE}, s{S_H}, 20", f"s_lshl_b32 s{S_RK}, s{S_WAVE}, 12", f"s_add_u32 s{S_BASE}, s{S_BASE}, s{S_RK}",
            f"s_mov_b32 s{S_RV}, s{S_RK}", f"s_mov_b32 s{S_OFFK}, s{S_BASE}", f"s_mov_b32 s{S_CNT}, 0",
            f"s_lshl_b32 s{S_N1}, s{S_I}, 1", f"s_add_u32 s{S_N1}, s{S_N1}, 2", f"s_mov_b32 s{S_QB}, s{S_I}", f"s_mov_b32 s{S_BLK}, 0",
            f"s_mov_b32 s{S_TA+3}, {WS_FQ}", f"s_mov_b32 s{S_PER}, s{S_I}", f"s_sub_u32 s{S_FQP}, 13, s{S_I}"]

def att_prefetch0(G, lo, spacing=2):
    g = lo
    def grp(which, post):
        nonlocal g
        for j in range(4):
            g = place_vm(G, g + spacing, dma(which, j), (K_PRE if which == "K" else V_PRE) if j == 0 else None, None, g)
        g = place_scalars(G, glue(post), g + 1, len(G.m) - 1) - 1
    grp("K", k_post() + k_adv() + [V_SET])
    for w in range(2):
        grp("K", k_post())
        grp("V", v_ring() + k_adv() + [V_SET])
    return g

def cross_max(a, pairs):
    for op in ("v_permlane32_swap_b32", "v_permlane16_swap_b32"):
        for d, t in pairs: a(f"v_mov_b32 v{t}, v{d}")
        if len(pairs) < 3: a("s_nop 1")
        for d, t in pairs: a(f"{op} v{t}, v{d}")
        if len(pairs) < 3: a("s_nop 1")
        for d, t in pairs: a(f"v_max_f32 v{d}, v{d}, v{t}")

def att_start(b1):
    o = kreads(0)
    lm = [f"v_subrev_f32 v{CM(j,k4)+r}, {f2h((16*(k4+4*j)+r)*BIG)}, v{V_TB+j}" for j in range(2) for k4 in range(4) for r in range(4)]
    o += [Op(x) for x in [f"v_mov_b64 v[{r}:{r+1}], 0" for r in range(16, 88, 2)] + lm[:8]]
    o += [W(l=["k0"])]
    G = Gaps()
    T = lambda u: S_(1, u & 1, u >> 1)
    for u in range(4):
        for ks in range(4): G.mfma(mfma(T(u), KF0 + 4*ks, Q_(u >> 1, u & 1, ks), "0" if ks == 0 else None))
    put_dma(G, "K", (1, 5, 9, 13))
    tl = Tail(G)
    for x in lm[8:]: tl.add(x)
    o += G.ops() + tl.post
    a = Asm()
    for u in range(4):
        a(f"v_max3_f32 v{6+u}, v{T(u)}, v{T(u)+1}, v{T(u)+2}")
        if u == 2: a("s_nop 1")
        a(f"v_max_f32 v{6+u}, v{6+u}, v{T(u)+3}")
    cross_max(a, [(6 + u, 10 + u) for u in range(4)])
    for j in range(2):
        for r in range(4): a(f"v_sub_f32 v{NM(j)+r}, 0, v{6+j}")
        a(f"v_sub_f32 v{V_M2+j}, 0, v{8+j}")
    cm = [f"v_min_f32 v{CM(j,k4)+r}, v{NM(j)}, v{CM(j,k4)+r}" for j in range(2) for k4 in range(4) for r in range(4)]
    a(cm[:8])
    o += [Op(x.strip()) for x in a.lines] + [W(l="*")]
    res = []
    for cf in (lambda j, kt: NM(j), C_D0):
        G = Gaps()
        for x in qk(0, 0, cf): G.mfma(x)
        put_dma(G, "V", (1, 4, 7, 10))
        e, c = exps(0, 0), cvts(0, 0)
        for x, g in zip(e[:5], (9, 11, 12, 13, 14)): G.put(g, x)
        tl = Tail(G)
        rest = list(cm[8:])
        for g in (0, 2, 3, 5, 6, 8):
            G.put(g, rest.pop(0)); G.put(g, rest.pop(0))
        kr = kreads(1)
        res.append(G.ops() + kr + [Op(x) for x in e[5:] + rest + c] + [Op(f"s_waitcnt vmcnt({b1}) lgkmcnt(0)"), Op("s_barrier")])
    return o, res[0], res[1]

def ctx_addr_ops():
    t = S_TA + 1
    o = [f"s_lshl_b32 s{t}, s{S_QB}, 3", f"s_add_u32 s{S_CTX}, s{t}, s{S_WAVE}", f"s_sub_u32 s{S_CTX+1}, s{t}, s{S_WAVE}",
         f"s_add_u32 s{S_CTX+1}, s{S_CTX+1}, 7", f"s_lshl_b32 s{t}, s{S_H}, 12", f"s_add_u32 s{t}, s{t}, {WS_CTX}"]
    for j in range(2): o += [f"s_lshl_b32 s{S_CTX+j}, s{S_CTX+j}, 17", f"s_add_u32 s{S_CTX+j}, s{S_CTX+j}, s{t}"]
    return o + [f"s_mov_b32 s{S_SL}, 0"]

def cm_update():
    return [f"v_mov_b32 v6, {f2h(2.0**-60)}", "v_mov_b32 v7, v6"] + \
           [f"v_pk_fma_f32 v[{r}:{r+1}], v[{r}:{r+1}], v[6:7], v[{NM(j)}:{NM(j)+1}]" for j in range(2) for r in range(CM(j, 0), CM(j, 0) + 16, 2)]

def epilogue(sfx):
    o = [Op(f"norm{sfx}:")]
    a = lambda x: o.append(mk(x))
    a(f"v_rcp_f32 v6, v{L_(0)}"); a("v_mov_b32 v10, 0"); a("v_mov_b32 v7, v6")
    for j in range(2):
        for kp in range(4):
            ra, rb = O_(2*kp, j), O_(2*kp + 1, j)
            for r in (ra, ra + 2, rb, rb + 2): a(f"v_pk_mul_f32 v[{r}:{r+1}], v[{r}:{r+1}], v[{6+2*j}:{7+2*j}]")
            for x in cvt4(ra, ra, rb): a(x)
            o.append(Op(f"buffer_store_dwordx4 v[{ra}:{ra+3}], v{V_L16}, {SR(SRD_WS)}, s{S_CTX+j} offen offset:{kp*1024}{SC}", tag="ctxst"))
            a(f"v_pk_maximum3_f16 v10, v10, v{ra}, v{ra+1}")
            a(f"v_pk_maximum3_f16 v10, v10, v{ra+2}, v{ra+3}")
            if j == 0 and kp == 2: a(f"v_rcp_f32 v8, v{L_(1)}"); a(f"v_min_f32 v12, v{L_(0)}, v{L_(1)}")
            if j == 0 and kp == 3: a("v_mov_b32 v9, v8"); a(f"v_maximum3_f32 v13, v{L_(0)}, v{L_(1)}, v{L_(1)}")
            if j == 1 and kp == 0: a(f"v_cmp_gt_f32 vcc, {f2h(2.0**-64)}, v12")
            if j == 1 and kp == 1: a(f"s_mov_b64 s[{S_TA}:{S_TA+1}], vcc"); a(f"v_cmp_nge_f32 vcc, {f2h(2.0**24)}, v13")
            if j == 1 and kp == 2: a(f"s_or_b64 s[{S_TA}:{S_TA+1}], s[{S_TA}:{S_TA+1}], vcc")
    a("v_lshrrev_b32 v11, 16, v10")
    a("v_cmp_u_f16 vcc, v10, v11")
    a(f"s_or_b64 s[{S_TA}:{S_TA+1}], s[{S_TA}:{S_TA+1}], vcc")
    a(f"s_cbranch_scc1 redo{sfx}")
    a(f"done{sfx}:")
    return o

def slow_path(a):
    SO, SN = S_SL + 1, S_SL + 2
    a.label("redo2")
    a(f"s_cmp_lg_u32 s{S_SL}, 0")
    a("s_cbranch_scc1 done2")
    for r in range(0, 32, 2): a(f"v_mov_b64 v[{176+r}:{177+r}], v[{208+r}:{209+r}]")
    a("s_branch slow")
    a.label("redo1")
    a(f"s_cmp_lg_u32 s{S_SL}, 0")
    a("s_cbranch_scc1 done1")
    a.label("slow")
    a(f"s_mov_b32 s{S_SL}, 1")
    a(f"s_lshl_b32 s{SO}, s{S_H}, 20")
    a(f"s_lshl_b32 s{SN}, s{S_QB}, 2")
    a(f"s_add_u32 s{SN}, s{SN}, 4")
    a(f"s_lshl_b32 s{S_TA}, s{S_QB}, 7")
    a(f"v_cvt_f32_u32 v6, s{S_TA}")
    a(f"v_mul_f32 v6, {f2h(BIG)}, v6")
    for j in range(2):
        a(f"v_add_f32 v{10+j}, v{V_TB+j}, v6")
        a(f"v_mov_b32 v{12+j}, {f2h(-2.0**126)}")
    for r in range(16, 88): a(f"v_mov_b32 v{r}, 0")
    a.label("slow_loop")
    def loads(off):
        a(f"s_add_u32 s{S_TA}, s{SO}, {off}")
        a(f"s_add_u32 s{S_TA+1}, s{SO}, {off + 4096}")
        for i in range(8):
            a(f"buffer_load_dwordx4 {R(XB+4*i,4)}, v{V_L16}, {SR(SRD_WS)}, s{S_TA + (i >> 2)} offen offset:{(i&3)*1024}{SC}")
    loads(WS_KV)
    a("s_waitcnt vmcnt(0)")
    a(qk(0, 0, lambda j, kt: "0", ((0, 0, XB), (1, 1, XB))))
    a("s_nop 7")
    loads(WS_KV + 16384)
    for j in range(2):
        for kt in range(2):
            for r in range(4):
                a(f"v_subrev_f32 v6, {f2h((16*kt+r)*BIG)}, v{10+j}")
                a(f"v_min_f32 v6, 0, v6")
                a(f"v_add_f32 v{S_(0,kt,j)+r}, v{S_(0,kt,j)+r}, v6")
        a(f"v_subrev_f32 v{10+j}, {f2h(32*BIG)}, v{10+j}")
    for j in range(2):
        s0, s1 = S_(0, 0, j), S_(0, 1, j)
        a(f"v_max3_f32 v{6+j}, v{s0}, v{s0+1}, v{s0+2}")
        a(f"v_max3_f32 v{6+j}, v{6+j}, v{s0+3}, v{s1}")
        a(f"v_max3_f32 v{6+j}, v{6+j}, v{s1+1}, v{s1+2}")
        a(f"v_max3_f32 v{6+j}, v{6+j}, v{s1+3}, v{12+j}")
    cross_max(a, [(6, 8), (7, 9)])
    for j in range(2):
        a(f"v_sub_f32 v{8+j}, v{12+j}, v{6+j}")
        a(f"v_mov_b32 v{12+j}, v{6+j}")
        a(f"v_exp_f32 v{8+j}, v{8+j}")
        for kt in range(2):
            for r in range(4): a(f"v_sub_f32 v{S_(0,kt,j)+r}, v{S_(0,kt,j)+r}, v{6+j}")
        a(exps(0, j)); a("s_nop 0"); a(cvts(0, j))
        for dt in range(8):
            for r in range(4): a(f"v_mul_f32 v{O_(dt,j)+r}, v{O_(dt,j)+r}, v{8+j}")
        for r in range(4): a(f"v_mul_f32 v{L_(j)+r}, v{L_(j)+r}, v{8+j}")
    a("s_waitcnt vmcnt(0)")
    a("s_nop 0")
    for j in range(2):
        a(mfma(L_(j), ONES, P_(0, j)))
        for dt in range(8): a(mfma(O_(dt, j), XB + 4*dt, P_(0, j)))
    a(f"s_bitcmp1_b32 s{SO}, 13")
    a(f"s_mov_b32 s{S_TA}, 8192")
    a(f"s_cmov_b32 s{S_TA}, 24576")
    a(f"s_add_u32 s{SO}, s{SO}, s{S_TA}")
    a(f"s_sub_u32 s{SN}, s{SN}, 1")
    a(f"s_cmp_lg_u32 s{SN}, 0")
    a("s_nop 7")
    a("s_cbranch_scc1 slow_loop")
    a(f"s_cmp_eq_u32 s{S_BLK}, 0")
    a("s_cbranch_scc1 norm1")
    a("s_branch norm2")
```

```python
from asmgen import *
from gsched import *
import struct, math

MB = 1 << 20
WS_KV = 0
WS_CTX = 32 * MB
WS_H = 48 * MB
WS_WT = 56 * MB
WS_G = 64 * MB
WS_PART = 65 * MB
WS_FC = 80 * MB
WS_FP = 80 * MB + 65536
WS_FK = 80 * MB + 131072
WS_FQ = 80 * MB + 196608
WS_EP = 80 * MB + 262144
WS_STAMP = 250 * MB
WS_BYTES = 268435456
SZ_X = 2048*640*2; SZ_C = 2048*512*2; SZ_WQ = 640*4096*2; SZ_WU = 512*4096*2; SZ_WO = 4096*640*2
SZ_W1 = 640*1728*2; SZ_W2 = 1728*640*2; SZ_OUT = 2048*640*2; SZ_WT = 182*40*1024
OOB = 0x20000000
SC = " sc1"

S_WAVE = 3; S_X = 4; S_HH = 5; S_I = 6; S_H = 7
SRD_WS = 8; SRD_C = 12; SRD_WK = 16; SRD_WV = 20; SRD_X = 24; SRD_WQ = 28; SRD_W1 = 32; SRD_WO = 36; SRD_W2 = 40
SRD_B1 = 44; SRD_B2 = 48; SRD_OUT = 52; SRD_DBG = 56
def SR(d): return f"s[{d}:{d+3}]"
V_L16 = 1

def f2h(x): return "0x%08x" % struct.unpack("<I", struct.pack("<f", x))[0]

def mfma(d, a_, b_, c=None):
    cs = R(d, 4) if c is None else (c if isinstance(c, str) else R(c, 4))
    return f"v_mfma_f32_16x16x32_bf16 {R(d,4)}, {R(a_,4)}, {R(b_,4)}, {cs}"

def block(lines, kind="salu", tag=None):
    return Op("\n".join(lines), kind, tag=tag)

class Stamps:
    def __init__(self, enabled, areg=255):
        self.enabled = enabled; self.n = 0; self.names = []; self.areg = areg; self.only = None
    def stamp(self, a, name):
        if not self.enabled or (self.only and name not in self.only): return
        a("s_waitcnt lgkmcnt(0)")
        a("s_memtime s[98:99]")
        a("s_memrealtime s[100:101]")
        a("s_waitcnt lgkmcnt(0)")
        a(f"v_accvgpr_read_b32 v15, a{self.areg}")
        a(f"v_writelane_b32 v15, s98, {2*self.n}")
        a(f"v_writelane_b32 v15, s100, {2*self.n+1}")
        a(f"v_accvgpr_write_b32 a{self.areg}, v15")
        self.names.append(name); self.n += 1
    def early(self, a):
        if self.enabled: a("s_memtime s[98:99]"); a("s_memrealtime s[100:101]")
    def early_save(self, a):
        if not self.enabled: return
        a(f"v_writelane_b32 v15, s98, 0"); a(f"v_writelane_b32 v15, s100, 1"); a(f"v_accvgpr_write_b32 a{self.areg}, v15")
        self.names.append("entry"); self.n += 1
    def put(self, G, gap, name):
        if not self.enabled: return
        t = Asm(); self.stamp(t, name)
        if t.lines: G.put(gap, Op("\n".join(x.strip() for x in t.lines), "valu"))
    def dump(self, a, kidx=0):
        if not self.enabled: return
        a(f"v_accvgpr_read_b32 v15, a{self.areg}")
        a("v_mbcnt_lo_u32_b32 v14, -1, 0")
        a("v_mbcnt_hi_u32_b32 v14, -1, v14")
        a("v_lshlrev_b32 v14, 2, v14")
        a(f"s_lshl_b32 s98, s2, 2")
        a(f"s_add_u32 s98, s98, s{S_WAVE}")
        a("s_lshl_b32 s98, s98, 8")
        a(f"s_add_u32 s98, s98, {WS_STAMP + kidx*(1<<18)}")
        a(f"buffer_store_dword v15, v14, {SR(SRD_WS)}, s98 offen")
        a("s_waitcnt vmcnt(0)")

class Spins:
    def __init__(self, dbg=False): self.blocks = []; self.n = 0; self.dbg = dbg
    def diag(self, k):
        if not self.dbg: return []
        o = ["s_lshl_b32 s98, s2, 2", "s_add_u32 s98, s98, s3", "s_lshl_b32 s98, s98, 4", f"s_add_u32 s98, s98, {WS_STAMP}"]
        for i, src in enumerate(("s97", str(k), "vcc_lo", "vcc_hi")):
            o += [f"v_mov_b32 v15, {src}", f"buffer_store_dword v15, off, s[8:11], s98 offset:{4*i}", "s_waitcnt vmcnt(0)"]
        return o
    def check(self, load, test, cnt=94):
        k = self.n; self.n += 1
        self.blocks.append([f"spin{k}:", f"s_mov_b32 s{cnt}, 0", f"spin{k}_l:", "s_sleep 1", load, "s_waitcnt vmcnt(0)"] + test +
                           [f"s_cbranch_scc1 spin{k}_ok", f"s_add_u32 s{cnt}, s{cnt}, 1", f"s_cmp_lt_u32 s{cnt}, 0x20000",
                            f"s_cbranch_scc1 spin{k}_l"] + self.diag(k) + [f"s_branch spin{k}_ok"])
        return test + [f"s_cbranch_scc0 spin{k}", f"spin{k}_ok:"]
    def emit(self, a):
        for b in self.blocks: a(b)

def place_scalars(G, ops, lo, hi):
    g = lo
    for o in ops:
        while g <= hi and G.has_scalar(g): g += 1
        if g > hi: G.put(hi, o)
        else: G.put(g, o); g += 1
    return g

def place_vm(G, lo, ld, m0=None, so=None, prev=-1):
    g = max(lo, prev + (2 if m0 else 1))
    while G.g[g] or (m0 and G.has_scalar(g - 1)): g += 1
    if m0: G.put(g - 1, m0)
    if so: G.put(g, so)
    G.put(g, ld)
    return g
```

```python
from gen_att import *

NST = 23
F_ST = 7
V_RA = (1, 253, 254)
V_G = 248
V_GA = 250
V_FA = 251
V_FPOLL = 14
def facc(part, nt, j): return 88 + part*80 + (nt*2 + j)*4
AF_DEPTH = 6
def AF(s, j, ks): return 256 + 100 + (s % AF_DEPTH)*16 + (j*2 + ks)*4
def WF(gi, ks): return 256 + 196 + (gi % 5)*8 + ks*4
def slot(s): return (s + 5) % 8
SRD_WT = 24
S_KQ = 28; S_FQB = 29; S_WM = 30; S_WO_ = 31; S_WF_ = 32; S_PART = 33; S_AH = 34; S_AC = 44; S_AH6 = 46; S_FG = 56; S_FRT = 58; S_FCP = 0
S_FT = 76

def fin_setup():
    a = Asm(); t = S_FT
    a(f"s_add_u32 s{SRD_WT}, s{SRD_WS}, {WS_WT}")
    a(f"s_addc_u32 s{SRD_WT+1}, s{SRD_WS+1}, 0")
    a(srd_tail(SRD_WT, SZ_WT))
    a(f"s_lshr_b32 s{S_KQ}, s{S_X}, 1")
    a(f"s_sub_u32 s{t}, 15, s{S_I}")
    a(f"s_bitcmp{LATE_PAR[0]}_b32 s{S_X}, 0")
    a(f"s_cselect_b32 s{S_FQB}, s{t}, s{S_I}")
    a(f"s_cselect_b32 s{S_FRT}, s{S_RT+2}, s{S_RT}")
    a(f"s_cselect_b32 s{S_FRT+1}, s{S_RT+3}, s{S_RT+1}")
    a(f"s_mul_i32 s{S_WM}, s{S_WAVE}, 5120")
    a(f"s_lshr_b32 s{t}, s{S_WAVE}, 1")
    a(f"s_mul_i32 s{t}, s{t}, {40960 - 10240}")
    a(f"s_add_u32 s{t}, s{t}, s{S_WM}")
    a(f"s_mul_i32 s{t+1}, s{S_HH}, 10240")
    a(f"s_add_u32 s{t}, s{t}, s{t+1}")
    a(f"s_mul_i32 s{t+1}, s{S_KQ}, {32*40960}")
    a(f"s_add_u32 s{S_WO_}, s{t}, s{t+1}")
    a(f"s_mul_i32 s{t+1}, s{S_KQ}, {14*40960}")
    a(f"s_add_u32 s{S_WF_}, s{t}, s{t+1}")
    a(f"s_add_u32 s{S_WF_}, s{S_WF_}, {128*40960}")
    a(f"s_mul_i32 s{t}, s{S_KQ}, {14*1024}")
    a(f"s_add_u32 s{t}, s{t}, {WS_H}")
    a(f"s_lshl_b32 s{t+1}, s{S_KQ}, 15")
    a(f"s_add_u32 s{t+1}, s{t+1}, {WS_CTX}")
    for j in range(2):
        a(f"s_mul_i32 s{S_AH+j}, s{S_FRT+j}, {54*1024}")
        a(f"s_add_u32 s{S_AH+j}, s{S_AH+j}, s{t}")
        a(f"s_lshl_b32 s{S_AC+j}, s{S_FRT+j}, 17")
        a(f"s_add_u32 s{S_AC+j}, s{S_AC+j}, s{t+1}")
        a(f"s_lshl_b32 s{S_FG+j}, s{S_FRT+j}, 6")
        a(f"s_add_u32 s{S_FG+j}, s{S_FG+j}, {WS_G}")
    a(f"s_cmp_eq_u32 s{S_KQ}, 3")
    a(f"s_cselect_b32 s{S_AH6}, {OOB}, s{S_AH}")
    a(f"s_cselect_b32 s{S_AH6+1}, {OOB}, s{S_AH+1}")
    a(f"s_lshl_b32 s{t}, s{S_FQB}, 2")
    a(f"s_add_u32 s{t+1}, s{t}, s{S_WAVE}")
    a(f"s_lshl_b32 s{t+1}, s{t+1}, 2")
    a(f"s_add_u32 s{t+1}, s{t+1}, s{S_KQ}")
    a(f"s_lshl_b32 s{t+1}, s{t+1}, 5")
    a(f"s_add_u32 s{S_FCP}, s{t+1}, {WS_FC}")
    a(f"s_add_u32 s{t}, s{t}, s{S_HH}")
    a(f"s_lshl_b32 s{t}, s{t}, 2")
    a(f"s_add_u32 s{t}, s{t}, s{S_WAVE}")
    a(f"s_mul_i32 s{t}, s{t}, 40960")
    a(f"s_add_u32 s{S_PART}, s{t}, {WS_PART}")
    v = [f"v_and_b32 v{V_GA}, 15, v0", f"v_lshlrev_b32 v{V_GA}, 2, v{V_GA}", f"v_and_b32 v{V_FA}, 28, v{V_GA}",
         f"v_add_u32 v{V_RA[1]}, 61440, v{V_L16}", f"v_add_u32 v{V_RA[2]}, 122880, v{V_L16}"]
    return [x.strip() for x in a.lines], v

class Fin:
    def __init__(self):
        self.G = Gaps()
    def w_dma(self, s):
        base, k = (S_WF_, s) if s < F_ST else (S_WO_, s - F_ST)
        out = []
        for f in range(5):
            m0 = so = None
            if f in (0, 4):
                m0 = f"s_add_u32 m0, s{S_WM}, {slot(s)*20480 + f*1024}"; so = f"s_add_u32 s{S_FT}, s{base}, {k*81920 + f*1024}"
            out.append((m0, so, Op(f"buffer_load_dwordx4 v{V_L16}, {SR(SRD_WT)}, s{S_FT} offen offset:{(f & 3)*1024}{SC} lds", tag=f"fW{s}")))
        return out
    def a_loads(self, s):
        base, k = ((S_AH6 if s == F_ST - 1 else S_AH), s) if s < F_ST else (S_AC, s - F_ST)
        out = []
        for j in range(2):
            for ks in range(2):
                so = f"s_add_u32 s{S_FT+1}, s{base+j}, {k*2048}" if ks == 0 else None
                out.append((None, so, Op(f"buffer_load_dwordx4 {R(AF(s,j,ks),4)}, v{V_L16}, {SR(SRD_WS)}, s{S_FT+1} offen offset:{ks*1024}{SC}", tag=f"fA{s}")))
        return out
    def g_loads(self):
        return [(None, None, Op(f"buffer_load_dword v{V_G+j}, v{V_GA}, {SR(SRD_WS)}, s{S_FG+j} offen{SC}", tag="g")) for j in range(2)]
    def w_reads(self, gi):
        s, nt = divmod(gi, 10)
        sl = slot(s)
        return [Op(f"ds_read_b128 {R(WF(gi,ks),4)}, v{V_RA[sl//3]} offset:{(sl % 3)*20480 + ks*10240 + nt*1024}", tag=f"t{gi}") for ks in range(2)]
    def pre_ops(self):
        return [W(v=["fW0"]), Op("s_barrier")] + [o for gi in range(4) for o in self.w_reads(gi)]
    def build(self, spins, flag_gap=70, poll_stage=4, spacing=4):
        G = self.G
        for s in range(NST):
            part = 0 if s < F_ST else 1
            first = s in (0, F_ST)
            for nt in range(10):
                for j in range(2):
                    for ks in range(2):
                        G.mfma(mfma(facc(part, nt, j), WF(s*10 + nt, ks), AF(s, j, ks), "0" if (first and ks == 0) else None))
        G.put(-1, W(v=["fA0"], l=["t0"]))
        ng = NST*10
        for gi in range(ng):
            if gi + 4 < ng:
                for o in self.w_reads(gi + 4): G.put(gi*4, o)
            if gi + 1 < ng:
                v = None
                if (gi + 1) % 10 == 0: v = [f"fA{(gi+1)//10}"]
                nb = gi + 5
                if nb < ng and nb % 20 == 10:
                    v = (v or []) + [f"fW{nb // 10 + 1}"]
                    G.put(gi*4 + 3, W(v=v, l=[f"t{gi+1}"])); G.put(gi*4 + 3, "s_barrier")
                else:
                    G.put(gi*4 + 3, W(v=v, l=[f"t{gi+1}"]))
        G.put(flag_gap, W(v=["ctxst"]))
        G.put(flag_gap, Op(flag_set(V_EP, S_FC + 1), tag="fl"))
        pl = f"buffer_load_dword v{V_FPOLL}, v{V_FA}, {SR(SRD_WS)}, s{S_FCP} offen{SC}"
        pg = poll_stage*40 + 2
        G.put(pg - 40, Op(pl, tag="cpoll"))
        G.put(pg, W(v=["cpoll"])); G.put(pg, block(spins.check(pl, flag_test(V_FPOLL)), "valu"))
        grp = []
        for s in range(3, NST):
            need = ((s - 1) // 2 * 2) * 40 + 23 - (1 if s % 2 else 0)
            prevs = s - 8
            early = 0 if prevs < 0 else ((prevs + 2) // 2 * 2) * 40 + 24
            grp.append([need, early, self.w_dma(s)])
            early = max(0, (s - AF_DEPTH + 1)*40, pg + 1 if s >= F_ST else 0)
            grp.append([s*40 - 1, early, self.a_loads(s)])
        prev = -spacing + 1
        while grp:
            t = prev + spacing
            ready = [x for x in grp if x[1] <= t]
            x = min(ready, key=lambda z: z[0]) if ready else min(grp, key=lambda z: z[1])
            grp.remove(x)
            for m0, so, ld in x[2]:
                prev = place_vm(G, max(prev + spacing, x[1], 1), ld, m0, so, prev)
            if x[0] - prev < 40: print("   late load", ld.tag, "issued", prev, "needed", x[0])
        return self

def fin_tail(a, spins):
    t = S_FT
    sc = [f"s_mul_i32 s{t}, s{S_KQ}, 10240", f"s_add_u32 s60, s{S_PART}, s{t}", "s_add_u32 s61, s60, 4096", "s_add_u32 s62, s60, 8192",
          f"s_mul_i32 s63, s{S_HH}, 320", f"s_lshl_b32 s{t}, s{S_KQ}, 10", f"s_add_u32 s64, s{S_PART}, s{t}"]
    for it in range(3):
        b = 65 + it*3
        sc += [f"s_add_u32 s{t}, s{S_KQ}, {4*it}", f"s_cmp_ge_u32 s{t}, 5\ns_cselect_b32 s{t+1}, s{S_FRT+1}, s{S_FRT}\ns_cselect_b32 s{b}, s{S_FG+1}, s{S_FG}\ns_cselect_b32 s{t+2}, 5, 0",
               f"s_sub_u32 s{t+2}, s{t}, s{t+2}", f"s_lshl_b32 s{t+2}, s{t+2}, 6", f"s_add_u32 s{b+1}, s{t+2}, s63",
               f"s_mul_i32 s{t+1}, s{t+1}, {16*1280}", f"s_add_u32 s{b+2}, s{t+1}, s{b+1}",
               f"s_cmp_ge_u32 s{t}, 10\ns_cselect_b32 s{b+2}, {OOB}, s{b+2}"]
    sc += [f"s_cselect_b32 s75, {OOB}, s64", f"s_and_b32 s74, s{S_FP}, 0xffffff80"]
    for j in range(2):
        a(f"v_mov_b32 v{16+2*j}, v{V_G+j}"); a(f"v_mov_b32 v{17+2*j}, v{V_G+j}")
        a(f"v_sub_f32 v{20+2*j}, 1.0, v{V_G+j}"); a(f"v_sub_f32 v{21+2*j}, 1.0, v{V_G+j}")
    a("v_lshrrev_b32 v3, 4, v0")
    a("v_lshlrev_b32 v3, 4, v3")
    a(f"v_mul_u32_u24 v4, 320, v{V_GA}")
    a("v_add_u32 v4, v4, v3")
    a(f"v_and_b32 v5, 12, v{V_GA}")
    for nt in range(10):
        for j in range(2):
            for hf in (0, 2):
                rb = facc(0, nt, j) + hf
                a(f"v_pk_mul_f32 v[{rb}:{rb+1}], v[{rb}:{rb+1}], v[{20+2*j}:{21+2*j}]")
                if sc: a(sc.pop(0))
    assert not sc
    for it in range(3):
        b = 65 + it*3; r = 24 + it*8
        a(f"buffer_load_dwordx4 v[{r}:{r+3}], v3, {SR(SRD_B2)}, s{b+1} offen")
        a(f"buffer_load_dword v{r+4}, v{V_GA}, {SR(SRD_WS)}, s{b} offen{SC}")
    for j in range(2):
        for p in range(5):
            for nt in (2*p, 2*p + 1):
                for hf in (0, 2):
                    rb, ra = facc(0, nt, j) + hf, facc(1, nt, j) + hf
                    a(f"v_pk_fma_f32 v[{ra}:{ra+1}], v[{ra}:{ra+1}], v[{16+2*j}:{17+2*j}], v[{rb}:{rb+1}]")
            ra, rb = facc(1, 2*p, j), facc(1, 2*p + 1, j)
            a(cvt4(ra, ra, rb))
            f = j*5 + p
            a(f"buffer_store_dwordx4 v[{ra}:{ra+3}], v{V_L16}, {SR(SRD_WS)}, s{60 + (f >> 2)} offen offset:{(f & 3)*1024}{SC}")
    a("s_waitcnt vmcnt(10)")
    for it in range(3):
        r = 24 + it*8; d = 48 + it*8
        a(f"v_sub_f32 v{r+4}, 1.0, v{r+4}")
        for q in range(4):
            a(f"v_lshlrev_b32 v{d+2*q}, 16, v{r+q}"); a(f"v_and_b32 v{d+2*q+1}, 0xffff0000, v{r+q}")
        for q in range(8): a(f"v_mul_f32 v{d+q}, v{d+q}, v{r+4}")
    a("s_waitcnt vmcnt(0)")
    a(flag_set(V_EP, S_FP))
    pl = f"buffer_load_dword v{V_FPOLL}, v5, {SR(SRD_WS)}, s74 offen{SC}"
    a(pl); a("s_waitcnt vmcnt(0)")
    a(spins.check(pl, flag_test(V_FPOLL)))
    for it in range(3):
        for src in range(4):
            r = 88 + it*16 + src*4
            a(f"s_add_u32 s{t}, s{75 if it == 2 else 64}, {it*4096 + src*10240}")
            a(f"buffer_load_dwordx4 v[{r}:{r+3}], v{V_L16}, {SR(SRD_WS)}, s{t} offen{SC}")
    for it in range(3):
        d = 48 + it*8
        a(f"s_waitcnt vmcnt({(2-it)*4 + it})")
        for src in range(4):
            r = 88 + it*16 + src*4
            for q in range(4):
                a(f"v_lshlrev_b32 v{16+2*q}, 16, v{r+q}"); a(f"v_and_b32 v{17+2*q}, 0xffff0000, v{r+q}")
            for q in range(4): a(f"v_pk_add_f32 v[{d+2*q}:{d+2*q+1}], v[{d+2*q}:{d+2*q+1}], v[{16+2*q}:{17+2*q}]")
        a(cvt4(d, d, d + 4))
        a(f"buffer_store_dwordx4 v[{d}:{d+3}], v4, {SR(SRD_OUT)}, s{65 + it*3 + 2} offen")
    a(f"s_add_u32 s{t}, s2, s{S_WAVE}")
    a(f"s_mov_b32 s{t+1}, {WS_EP}")
    a(f"s_cmp_eq_u32 s{t}, 0")
    a(f"s_cselect_b32 s{t}, s{t+1}, {OOB}")
    a(flag_set(V_EP, t))
```

```python
from gen_common import *

W_BASE = 65536
V_AC = 2
V_AX = 4
V_W = 6; V_W1 = 7
V_AR = 8
V_T = 10
V_JD = 14
V_JT = 253
V_TMP = 16
A_ACT = 256 + 32
A_WF = 256 + 96
A_PARK = 256 + 128
S_ACTB = 60; S_WB = 61; S_ROWC = 62; S_ROWX = 66; S_COL = 70; S_W1OFF = 71; S_INC4 = 72; S_INC60 = 73; S_KV = 74; S_ST = 75
S_T0 = 76
S_RT = 80; S_FB = 84; S_AUX = 85; S_JS = 86; S_JD = 88; S_JL = 90; S_FC = 91; S_FP = 93
S_FQ = 95
S_EP = 97
S_FK = 96
SRD_W1P = 56
LATE_PAR = [1]
QSCALE = math.log2(math.e) / math.sqrt(128.0)
GK0 = 2.0 * math.sqrt(2.0 / math.pi) * math.log2(math.e)
GK1 = GK0 * 0.044715

def acc_qf(G, u):
    if G < 4: return 96 + (G*4 + u)*4
    dt = G - 4
    return (176 if dt % 2 == 0 else 32) + (u*4 + dt//2)*4
def acc_kv(G, u):
    if G < 12: return acc_qf(G, u)
    if G == 12: return 160 + u*4
    if G == 13: return 240 + u*4
    return 256 + (G - 14)*16 + u*4

def srd_tail(d, nbytes): return [f"s_mov_b32 s{d+2}, {nbytes}", f"s_mov_b32 s{d+3}, 0x20000"]

def entry(a, name, code_warm=True, stamps=None):
    kernel_begin(a, name)
    stamps.early(a)
    a("s_cmp_lt_u32 s2, 256")
    a(f"s_cbranch_scc1 L_go")
    a("s_endpgm")
    a.label("L_go")
    for d, off in ((SRD_C, 8), (SRD_WK, 24), (SRD_WV, 32), (SRD_WS, 112), (SRD_X, 0), (SRD_WQ, 16), (SRD_W1, 56), (SRD_WO, 40),
                   (SRD_W2, 72), (SRD_B1, 64), (SRD_B2, 80), (SRD_OUT, 96), (S_JS, 88)):
        a(f"s_load_dwordx2 s[{d}:{d+1}], s[0:1], {off}")
    if code_warm:
        a("s_getpc_b64 s[60:61]")
        a.label("L_pc")
        a("s_mov_b32 s62, L_code_end - L_pc")
        a("s_mov_b32 s63, 0x20000")
        a("s_lshr_b32 s64, s2, 3")
        a("s_lshl_b32 s64, s64, 12")
        a("v_lshlrev_b32 v1, 4, v0")
        a("buffer_load_dwordx4 a[248:251], v1, s[60:63], s64 offen")
    a("v_lshrrev_b32 v1, 6, v0")
    a("v_and_b32 v0, 63, v0")
    a(f"v_readfirstlane_b32 s{S_WAVE}, v1")
    a(f"s_and_b32 s{S_X}, s2, 7")
    a(f"s_bfe_u32 s{S_HH}, s2, 0x20003")
    a(f"s_lshr_b32 s{S_I}, s2, 5")
    a(f"s_lshl_b32 s{S_H}, s{S_X}, 2")
    a(f"s_add_u32 s{S_H}, s{S_H}, s{S_HH}")

def setup_first(a, ws_shift=0):
    a("v_lshrrev_b32 v16, 3, v0")
    a("v_and_b32 v17, 7, v0")
    a("v_lshrrev_b32 v18, 4, v0")
    a("v_xor_b32 v19, v17, v18")
    a("v_xor_b32 v20, 4, v19")
    a("v_lshlrev_b32 v19, 4, v19")
    a("v_lshlrev_b32 v20, 4, v20")
    a(f"v_lshl_add_u32 v{V_AC}, v16, 10, v19")
    a(f"v_lshl_add_u32 v{V_AC+1}, v16, 10, v20")
    a(f"v_add_u32 v{V_AC+1}, {8*1024}, v{V_AC+1}")
    a("v_and_b32 v21, 3, v16")
    a("v_lshrrev_b32 v22, 2, v16")
    a("v_lshl_add_u32 v21, v22, 3, v21")
    a(f"s_lshl_b32 s{S_T0}, s{S_WAVE}, 4")
    a(f"v_add_u32 v21, s{S_T0}, v21")
    a("v_lshlrev_b32 v22, 1, v18")
    a("v_xor_b32 v24, v17, v22")
    a("v_lshlrev_b32 v22, 4, v24")
    a(f"v_lshl_add_u32 v{V_W}, v21, 13, v22")
    a(f"s_lshl_b32 s{S_ACTB}, s{S_WAVE}, 13")
    a(f"s_lshr_b32 s{S_T0}, s{S_WAVE}, 1")
    a(f"s_lshl_b32 s{S_T0}, s{S_T0}, 12")
    a(f"s_and_b32 s{S_T0+1}, s{S_WAVE}, 1")
    a(f"s_lshl_b32 s{S_T0+1}, s{S_T0+1}, 10")
    a(f"s_add_u32 s{S_WB}, s{S_T0}, s{S_T0+1}")
    a(f"s_add_u32 s{S_WB}, s{S_WB}, {W_BASE}")
    a(f"s_lshl_b32 s{S_COL}, s{S_H}, 8")
    a(f"s_lshl_b32 s{S_T0}, s{S_I}, 2")
    a(f"s_add_u32 s{S_T0}, s{S_T0}, s{S_WAVE}")
    a(f"s_lshl_b32 s{S_ROWC}, s{S_T0}, 16")
    for u in range(1, 4): a(f"s_add_u32 s{S_ROWC+u}, s{S_ROWC}, {u*16*1024}")
    a(f"s_lshl_b32 s{S_T0+1}, s{S_H}, 5")
    a(f"s_add_u32 s{S_T0}, s{S_T0}, s{S_T0+1}")
    a(f"s_lshl_b32 s{S_KV}, s{S_T0}, 15")
    a(srd_tail(SRD_C, SZ_C) + srd_tail(SRD_WK, SZ_WU) + srd_tail(SRD_WV, SZ_WU) + srd_tail(SRD_WS, WS_BYTES - ws_shift))
    a("s_waitcnt lgkmcnt(0)")
    if ws_shift:
        a(f"s_add_u32 s{SRD_WS}, s{SRD_WS}, {ws_shift}")
        a(f"s_addc_u32 s{SRD_WS+1}, s{SRD_WS+1}, 0")

def setup_rest(a):
    t = S_T0
    a(f"s_add_u32 s0, s{SRD_WS}, {WS_EP}")
    a(f"s_addc_u32 s1, s{SRD_WS+1}, 0")
    a(f"s_load_dword s{S_EP}, s[0:1], 0")
    a(f"v_lshlrev_b32 v{V_L16}, 4, v0")
    a("v_mul_u32_u24 v23, 1280, v16")
    a(f"v_add_u32 v{V_AX}, v23, v19")
    a(f"v_add_u32 v{V_AX+1}, v23, v20")
    a(f"v_add_u32 v{V_AX+1}, {8*1280}, v{V_AX+1}")
    a("v_and_b32 v25, 1, v18")
    a("v_lshlrev_b32 v25, 2, v25")
    a("v_xor_b32 v25, v25, v17")
    a(f"v_lshl_add_u32 v{V_JD}, v25, 4, v23")
    a(f"s_lshl_b32 s{t}, s{S_I}, 3")
    a(f"s_add_u32 s{S_RT}, s{t}, s{S_WAVE}")
    a(f"s_sub_u32 s{S_RT+1}, s{t}, s{S_WAVE}")
    a(f"s_add_u32 s{S_RT+1}, s{S_RT+1}, 7")
    a(f"s_sub_u32 s{t}, 120, s{t}")
    a(f"s_add_u32 s{S_RT+2}, s{t}, s{S_WAVE}")
    a(f"s_sub_u32 s{S_RT+3}, s{t}, s{S_WAVE}")
    a(f"s_add_u32 s{S_RT+3}, s{S_RT+3}, 7")
    for u in range(4): a(f"s_mul_i32 s{S_ROWX+u}, s{S_RT+u}, {16*1280}")
    a(f"s_mul_i32 s{t}, s{S_I}, 5")
    a(f"s_sub_u32 s{t+1}, s{S_X}, s{t}")
    a(f"s_and_b32 s{t+1}, s{t+1}, 7")
    a(f"s_lshl_b32 s{S_FB}, s{S_HH}, 3")
    a(f"s_add_u32 s{S_FB}, s{S_FB}, s{S_X}")
    a(f"s_add_u32 s{t+2}, s{t+1}, 19")
    a(f"s_cmp_lt_u32 s{t+1}, 5")
    a(f"s_cselect_b32 s{S_AUX}, 1, 0")
    a(f"s_cmp_eq_u32 s{S_HH}, 3")
    a(f"s_cselect_b32 s{S_FB}, s{t+2}, s{S_FB}")
    a(f"s_cselect_b32 s{S_AUX}, s{S_AUX}, 0")
    a(f"s_lshl_b32 s{S_W1OFF}, s{S_FB}, 7")
    a("v_mul_u32_u24 v23, 3456, v21")
    a(f"v_add_u32 v{V_W1}, v23, v22")
    a("v_and_b32 v23, 1, v21")
    a("v_cmp_eq_u32 vcc, v23, v24")
    a("v_and_b32 v23, 0xfe, v21")
    a("v_lshlrev_b32 v23, 1, v23")
    a(f"v_mov_b32 v25, {OOB}")
    a("v_cndmask_b32 v23, v25, v23, vcc")
    a(f"s_mov_b64 s[{SRD_W1P}:{SRD_W1P+1}], s[{SRD_W1}:{SRD_W1+1}]")
    a(srd_tail(SRD_W1P, SZ_W1))
    a(f"s_mov_b32 s{SRD_W1+2}, {SZ_W1}")
    a(f"s_mov_b32 s{S_INC4}, {4*3456}")
    a(f"s_mov_b32 s{S_INC60}, {60*3456}")
    a(f"s_cmp_lg_u32 s{S_AUX}, 0")
    a("s_cselect_b64 vcc, -1, 0")
    a(f"s_cselect_b64 s[{SRD_W1}:{SRD_W1+1}], s[{S_JS}:{S_JS+1}], s[{SRD_W1}:{SRD_W1+1}]")
    a(f"s_cmov_b32 s{SRD_W1+2}, 1280")
    a(f"s_cmov_b32 s{S_INC4}, 8")
    a(f"s_cmov_b32 s{S_INC60}, 120")
    a(f"s_cmov_b32 s{S_W1OFF}, 0")
    a(f"s_mov_b32 s{SRD_W1+3}, 0x20000")
    a(f"v_cndmask_b32 v{V_W1}, v{V_W1}, v23, vcc")
    a(f"s_sub_u32 s{S_W1OFF}, s{S_W1OFF}, s{S_INC60}")
    a("v_and_b32 v21, 15, v0")
    a("v_lshrrev_b32 v22, 1, v21")
    a("v_xor_b32 v22, v22, v18")
    a("v_lshlrev_b32 v22, 4, v22")
    a("v_lshl_add_u32 v21, v21, 7, v22")
    a(f"v_add_u32 v{V_AR}, s{S_ACTB}, v21")
    a(f"v_xor_b32 v{V_AR+1}, 64, v{V_AR}")
    a("v_bfe_u32 v21, v0, 2, 3")
    a("v_lshrrev_b32 v22, 5, v0")
    a("v_lshlrev_b32 v22, 10, v22")
    a("v_lshl_add_u32 v22, v21, 7, v22")
    a("v_and_b32 v23, 1, v0")
    a("v_lshl_add_u32 v22, v23, 3, v22")
    a(f"v_add_u32 v22, {W_BASE}, v22")
    a("v_and_b32 v21, 6, v21")
    a("v_bfe_u32 v23, v0, 1, 1")
    a("v_or_b32 v21, v21, v23")
    for n in range(4):
        a(f"v_xor_b32 v23, {2*n}, v21")
        a(f"v_lshl_add_u32 v{V_T+n}, v23, 4, v22")
    a(srd_tail(SRD_X, SZ_X) + srd_tail(SRD_WQ, SZ_WQ) + srd_tail(SRD_WO, SZ_WO) + srd_tail(SRD_W2, SZ_W2) + srd_tail(SRD_B1, 3456)
      + srd_tail(SRD_B2, 1280) + srd_tail(SRD_OUT, SZ_OUT))
    a(f"s_lshl_b32 s{t}, s2, 2")
    a(f"s_add_u32 s{t}, s{t}, s{S_WAVE}")
    for jb in range(2):
        if jb: a(f"s_add_u32 s{t}, s{t}, 1024")
        a(f"s_mul_i32 s{t+1}, s{t}, 52429")
        a(f"s_lshr_b32 s{t+1}, s{t+1}, 19")
        a(f"s_mul_i32 s{t+2}, s{t+1}, {40960 - 1280}")
        a(f"s_lshl_b32 s{t+3}, s{t}, 7")
        a(f"s_add_u32 s{S_JS+jb}, s{t+2}, s{t+3}")
        a(f"s_lshl_b32 s{S_JD+jb}, s{t}, 12")
        a(f"s_add_u32 s{S_JD+jb}, s{S_JD+jb}, {WS_WT}")
    a(f"s_sub_u32 s{t+1}, s{S_JS+1}, {SZ_WO}")
    a(f"s_cmp_lt_u32 s{t}, 1280")
    a(f"s_cselect_b64 s[{SRD_W2}:{SRD_W2+1}], s[{SRD_WO}:{SRD_WO+1}], s[{SRD_W2}:{SRD_W2+1}]")
    a(f"s_cmov_b32 s{SRD_W2+2}, {SZ_WO}")
    a(f"s_cselect_b32 s{S_JS+1}, s{S_JS+1}, s{t+1}")
    a(f"s_cmp_ge_u32 s{t}, 1820")
    a(f"s_cmov_b32 s{S_JD+1}, {OOB}")
    a(f"s_lshl_b32 s{S_JL}, s{S_WAVE}, 13")
    a(f"s_add_u32 s{S_JL}, s{S_JL}, 131072")
    a(f"s_lshl_b32 s{t}, s{S_WAVE}, 5")
    a(f"s_add_u32 s{t}, s{t}, s{S_H}")
    a(f"s_lshl_b32 s{t}, s{t}, 2")
    a(f"s_add_u32 s{t}, s{t}, {WS_FC}")
    a(f"s_lshl_b32 s{t+1}, s{S_I}, 9")
    a(f"s_add_u32 s{S_FC}, s{t}, s{t+1}")
    a(f"s_sub_u32 s{S_FC+1}, s{t}, s{t+1}")
    a(f"s_add_u32 s{S_FC+1}, s{S_FC+1}, {15*512}")
    a(f"s_sub_u32 s{t}, 15, s{S_I}")
    a(f"s_bitcmp{LATE_PAR[0]}_b32 s{S_X}, 0")
    a(f"s_cselect_b32 s{t}, s{t}, s{S_I}")
    a(f"s_lshl_b32 s{t}, s{t}, 2")
    a(f"s_add_u32 s{t}, s{t}, s{S_HH}")
    a(f"s_lshl_b32 s{t}, s{t}, 2")
    a(f"s_add_u32 s{t}, s{t}, s{S_WAVE}")
    a(f"s_lshl_b32 s{t}, s{t}, 7")
    a(f"s_lshr_b32 s{t+1}, s{S_X}, 1")
    a(f"s_lshl_b32 s{t+1}, s{t+1}, 2")
    a(f"s_add_u32 s{t}, s{t}, s{t+1}")
    a(f"s_add_u32 s{S_FP}, s{t}, {WS_FP}")
    a(f"s_lshr_b32 s{S_FK}, s{S_KV}, 13")
    a(f"s_add_u32 s{S_FK}, s{S_FK}, {WS_FK}")
    a(f"s_lshl_b32 s{S_FQ}, s2, 2")
    a(f"s_add_u32 s{S_FQ}, s{S_FQ}, {WS_FQ}")
    a(f"s_cmp_eq_u32 s{S_WAVE}, 0")
    a(f"s_cselect_b32 s{S_FQ}, s{S_FQ}, {OOB}")
    a(f"s_lshl_b32 s{t}, s2, 2")
    a(f"s_add_u32 s{t}, s{t}, s{S_WAVE}")
    a("v_lshlrev_b32 v23, 7, v0")
    a(f"v_mov_b32 v25, {OOB}")
    a(f"s_mul_i32 s{t+1}, s{t}, {20*128}")
    a(f"s_mul_i32 s{t+2}, s{t}, {18*128}")
    a(f"s_lshl_b32 s{t+3}, s{t}, 11")
    a(f"v_add_u32 v29, s{t+3}, v23")
    a(f"v_add_u32 v26, s{t+1}, v23")
    a(f"v_add_u32 v27, s{t+2}, v23")
    a(f"s_lshr_b32 s{t}, s2, 3")
    a(f"s_lshl_b32 s{t}, s{t}, 2")
    a(f"s_add_u32 s{t}, s{t}, s{S_WAVE}")
    a(f"s_lshl_b32 s{t+2}, s{t}, 13")
    a(f"s_mul_i32 s{t}, s{t}, {5*8192}")
    a(f"s_lshl_b32 s{t+1}, s{S_X}, 10")
    a(f"s_add_u32 s{t+2}, s{t+2}, s{t+1}")
    a(f"v_add_u32 v30, s{t+2}, v23")
    a(f"s_add_u32 s{t}, s{t}, s{t+1}")
    a(f"v_add_u32 v28, s{t}, v23")
    for v, n in ((26, 10), (27, 9), (28, 8), (29, 16), (30, 8)):
        a(f"v_cmp_gt_u32 vcc, {n}, v0")
        a("s_nop 1")
        a(f"v_cndmask_b32 v{v}, v25, v{v}, vcc")
    a("s_waitcnt lgkmcnt(0)")
    a(f"s_mul_i32 s{S_EP}, s{S_EP}, 0x9e3779b5")
    a(f"s_add_u32 s{S_EP}, s{S_EP}, 0x7f4a7c15")
def warm_ops(nt=""):
    t = S_ST
    l = [(26, SRD_X, 0), (28, SRD_WQ, 0), (28, SRD_WQ, 8192), (27, SRD_W1P, 0), (28, SRD_WQ, 16384), (26, SRD_X, 1280), (28, SRD_WQ, 24576), (27, SRD_W1P, 1152), (28, SRD_WQ, 32768)]
    return [(f"s_mov_b32 s{t}, {so}", Op(f"buffer_load_dword a252, v{v}, {SR(d)}, s{t} offen{nt if v == 28 else ''}", tag="warm")) for v, d, so in l]
def warm_c(): return Op(f"buffer_load_dword a252, v29, {SR(SRD_C)}, 0 offen", tag="warm")
def warm_w(nt=""):
    return [(f"s_mov_b32 s{S_ST}, {q*128*8192}", Op(f"buffer_load_dword a252, v30, {SR(d)}, s{S_ST} offen{nt}", tag="warm")) for q in (1, 2, 3) for d in (SRD_WK, SRD_WV)]
def flag_set(v, s): return f"buffer_store_dword v{v}, off, {SR(SRD_WS)}, s{s}{SC}"
def flag_test(v, n=1):
    o = []
    for i in range(1, n): o += [f"v_xor_b32 v{v+i}, s{S_EP}, v{v+i}"]
    o += [f"v_xor_b32 v{v}, s{S_EP}, v{v}"]
    if n == 4: o += [f"v_or3_b32 v{v}, v{v}, v{v+1}, v{v+2}", f"v_or_b32 v{v}, v{v}, v{v+3}"]
    return o + [f"v_cmp_eq_u32 vcc, 0, v{v}", "s_cmp_eq_u64 vcc, -1"]

NKV = 8; NQF = 10; NS = NKV + NQF
class Proj:
    def __init__(self, nt_kv=" nt", nt_q="", nt_c=""):
        self.G = Gaps(); self.tmp = 0; self.gap0 = []; self.nt_kv = nt_kv; self.nt_q = nt_q; self.nt_c = nt_c
    def NT(self, s): return 16 if s < NKV else 12
    def stmp(self):
        self.tmp = (self.tmp + 1) % 4
        return S_T0 + self.tmp
    def w_dma(self, s):
        out = []
        kv = s < NKV; k = s if kv else s - NKV
        for cg in range(4 if kv else 3):
            for e in range(2):
                m0 = f"s_add_u32 m0, s{S_WB}, {(s%3)*32768 + cg*8192 + e*2048}"
                if not kv and cg == 0:
                    t, vreg, srd_ = S_W1OFF, V_W1, SRD_W1
                    so = f"s_add_u32 s{t}, s{t}, s{S_INC4 if e else S_INC60}"
                else:
                    t = self.stmp(); vreg = V_W
                    srd_, half = ((SRD_WK, SRD_WV)[cg >> 1], cg & 1) if kv else (SRD_WQ, cg - 1)
                    so = f"s_add_u32 s{t}, s{S_COL}, {half*128 + (64*k + 4*e)*8192}"
                out.append((m0, so, Op(f"buffer_load_dwordx4 v{vreg}, {SR(srd_)}, s{t} offen{self.nt_kv if kv else (self.nt_q if cg else '')} lds", tag=f"W{s}")))
        return out
    def a_dma(self, s):
        out = []
        srd_, vreg, srow, k = (SRD_C, V_AC, S_ROWC, s) if s < NKV else (SRD_X, V_AX, S_ROWX, s - NKV)
        for t8 in range(8):
            t = self.stmp()
            out.append((f"s_add_u32 m0, s{S_ACTB}, {(s%2)*32768 + t8*1024}",
                        f"s_add_u32 s{t}, s{srow + (t8>>1)}, {128*k}",
                        Op(f"buffer_load_dwordx4 v{vreg + (t8&1)}, {SR(srd_)}, s{t} offen{self.nt_c if s < NKV else ''} lds", tag=f"A{s}")))
        return out
    def act_reg(self, s, u, ks): return A_ACT + (s % 2)*32 + (u*2 + ks)*4
    def a_read(self, s, u, ks):
        return Op(f"ds_read_b128 {R(self.act_reg(s,u,ks),4)}, v{V_AR+ks} offset:{(s%2)*32768 + 2048*u}", tag=f"ar{s}_{u}")
    def wf_reg(self, gi, ks): return A_WF + (gi % 4)*8 + ks*4
    def t_reads(self, Gi, gi):
        return [Op(f"ds_read_b64_tr_b16 {R(self.wf_reg(gi,ks)+2*e,2)}, v{V_T+(Gi&3)} offset:{(Gi>>2)*8192 + ks*4096 + e*2048}", tag=f"t{gi}")
                for ks in range(2) for e in range(2)]
    def gap(self, s, Gi=0, j=0): return self.gap0[self.gstart[(s, Gi)]] + j
    def bar_gap(self, s): return self.gap(s, self.NT(s) - 2) - 1
    def build(self, mid_ops):
        G = self.G; n = NS
        groups = []
        for s in range(n):
            kv = s < NKV
            for Gi in range(self.NT(s)):
                gi = len(groups); groups.append((s, Gi)); self.gap0.append(len(G.m))
                for u in range(4):
                    for ks in range(2):
                        d = (acc_kv if kv else acc_qf)(Gi, u); w = self.wf_reg(gi, ks); x = self.act_reg(s, u, ks)
                        c = "0" if (s in (0, NKV) and ks == 0) else None
                        G.mfma(mfma(d, x, w, c) if (kv and Gi >= 8) else mfma(d, w, x, c))
        self.gstart = {g: i for i, g in enumerate(groups)}
        ng = len(groups); g0 = lambda gi: self.gap0[gi]
        def emit_pre(trip):
            for m0, so, ld in trip:
                G.put(-1, m0); G.put(-1, so); G.put(-1, ld)
        emit_pre(self.w_dma(0)); emit_pre(self.a_dma(0)); emit_pre(self.w_dma(1)); emit_pre(self.a_dma(1))
        for o in mid_ops: G.put(-1, o)
        G.put(-1, W(v=["W0", "A0"])); G.put(-1, "s_barrier")
        for u in range(4):
            for ks in range(2): G.put(-1, self.a_read(0, u, ks))
        for o in self.t_reads(0, 0) + self.t_reads(1, 1): G.put(-1, o)
        G.put(-1, W(l=["t0"]))
        self.bar_wait = {}
        for gi, (s, Gi) in enumerate(groups):
            if gi + 2 < ng:
                for j, o in enumerate(self.t_reads(groups[gi + 2][1], gi + 2)): G.put(g0(gi) + (j & 2), o)
            last_gap = g0(gi) + 7
            if gi + 3 < ng and groups[gi + 3][1] == 0:
                sn = groups[gi + 3][0]
                delta = 32768 if sn % 3 else -65536
                for n_ in range(4):
                    G.put(g0(gi) + (4, 4, 6, 6)[n_], f"v_add_u32 v{V_T+n_}, {delta & 0xffffffff}, v{V_T+n_}")
                self.bar_wait[s] = W(v=[f"W{sn}"], l="*")
                G.put(last_gap, self.bar_wait[s]); G.put(last_gap, "s_barrier")
            elif gi + 1 < ng:
                G.put(last_gap, W(l=[f"t{gi+1}"]))
        jobs = []
        for s in range(n):
            NT = self.NT(s); base = self.gstart[(s, 0)]
            ga = 2 if NT >= 16 else 0
            if s + 1 < n:
                G.put(g0(base + ga) + 4, W(v=[f"A{s+1}"]))
                for u in range(4):
                    for ks in range(2): G.put(g0(base + ga + u) + 4, self.a_read(s + 1, u, ks))
            lo = base - 2 if s > 0 else base
            ngap = NT*8 - (0 if s > 0 else 16)
            jl = []
            if s == 0: jl += [(0, x) for x in self.a_dma(2)]
            if s + 2 < n: jl += [(g0(lo), x) for x in self.w_dma(s + 2)]
            if s + 3 < n: jl += [(g0(base + ga + (t >> 1) + 3), x) for t, x in enumerate(self.a_dma(s + 3))]
            for k_, (e, x) in enumerate(jl): jobs.append((e, g0(lo) + (k_ * ngap) // max(14, len(jl)), x))
        prev = -1
        for e, sp, (m0, so, ld) in jobs:
            prev = place_vm(G, max(e + 1, sp), ld, m0, so, prev)
        return self
    def last_mfma(self, s, Gi, u): return self.gap(s, Gi, u*2 + 1)

class Tail:
    def __init__(self, gaps):
        self.G = gaps; self.cur = 0; self.post = []
    def add(self, x, earliest=0):
        x = mk(x)
        if self.post: self.post.append(x); return None
        lo = max(self.cur, earliest)
        g = self.G.fit(lo, x) if lo < len(self.G.m) else None
        if g is None: self.post.append(x); return None
        self.cur = g
        return g

def cvt4(d, ra, rb):
    return [f"v_cvt_pk_bf16_f32 v{d}, v{ra}, v{ra+1}", f"v_cvt_pk_bf16_f32 v{d+1}, v{ra+2}, v{ra+3}",
            f"v_cvt_pk_bf16_f32 v{d+2}, v{rb}, v{rb+1}", f"v_cvt_pk_bf16_f32 v{d+3}, v{rb+2}, v{rb+3}"]

def kv_epilogue(P, first=26, step=24, ndirect=4, sc=SC):
    G = P.G; s = NKV - 1
    frags = []
    for kp in range(4):
        for u in range(4): frags.append((acc_kv(2*kp, u), acc_kv(2*kp + 1, u), P.last_mfma(s, 2*kp + 1, u), ((2*kp, u), (2*kp + 1, u)), (u*4 + kp)*1024))
    for dt in range(8):
        for kb in range(2): frags.append((acc_kv(8 + dt, 2*kb), acc_kv(8 + dt, 2*kb + 1), P.last_mfma(s, 8 + dt, 2*kb + 1), ((8 + dt, 2*kb), (8 + dt, 2*kb + 1)), 16384 + (kb*8 + dt)*1024))
    home = []; npark = 0
    for n, (ra, rb, rdy, grp, off) in enumerate(frags):
        Gi = grp[0][0]
        if n < ndirect or Gi in (12, 13): home.append(ra)
        elif Gi >= 14: home.append(acc_kv(Gi - 2, grp[1][1]))
        else: home.append(A_PARK + 4*npark); npark += 1
    sg = []; prev = -1
    for n, f in enumerate(frags):
        ld = Op(f"buffer_store_dwordx4 {R(home[n],4)}, v{V_L16}, {SR(SRD_WS)}, s{S_ST} offen{sc}", tag="KVst")
        prev = place_vm(G, P.gap(s) + first + step*n, ld, None, f"s_add_u32 s{S_ST}, s{S_KV}, {WS_KV + f[4]}", prev)
        sg.append(prev)
    T = Tail(G)
    for n, (ra, rb, rdy, grp, off) in enumerate(frags):
        e = rdy + 8
        if ra >= 256:
            tmp = V_TMP + 8*(n % 2)
            for j in range(4): T.add(f"v_accvgpr_read_b32 v{tmp+j}, {R(ra+j)}", e)
            for j in range(4): T.add(f"v_accvgpr_read_b32 v{tmp+4+j}, {R(rb+j)}")
            for o in cvt4(home[n], tmp, tmp + 4): g = T.add(o)
        elif home[n] >= 256:
            for o in cvt4(ra, ra, rb): T.add(o, e)
            for j in range(4): g = T.add(f"v_accvgpr_write_b32 {R(home[n]+j)}, v{ra+j}")
        else:
            for o in cvt4(ra, ra, rb): g = T.add(o, e)
        assert g < sg[n], ("store before pack", n, g, sg[n])
        for (Gi, u) in grp:
            if Gi < 12:
                need = P.gap(NKV, Gi, 2*u) - 1
                assert g <= need - 1, ("acc reuse", n, g, need)
                if home[n] == acc_kv(Gi, u): assert sg[n] <= need - 1, ("acc reuse by store", n, sg[n], need)
    assert not T.post and A_PARK + 4*npark <= 256 + A_RAW
    P.kv_pack_end = T.cur
    return sg[-1]

def wt_addr(P, e):
    T = Tail(P.G)
    for o in ["v_bfe_u32 v16, v0, 2, 3", "v_lshrrev_b32 v17, 5, v0", "v_lshlrev_b32 v17, 10, v17", "v_lshl_add_u32 v17, v16, 7, v17",
              f"v_add_u32 v17, s{S_JL}, v17", "v_bfe_u32 v16, v0, 3, 1", "v_lshlrev_b32 v16, 2, v16", "v_and_b32 v18, 3, v0",
              "v_or_b32 v16, v16, v18", f"v_lshl_add_u32 v{V_JT}, v16, 4, v17", f"v_xor_b32 v{V_JT+1}, 64, v{V_JT}", f"v_add_u32 v{V_JD}, s{S_JL}, v{V_L16}"]: T.add(o, e)
A_RAW = 208
def wt_loads():
    return [(f"s_add_u32 s{S_ST}, s{S_JS+jb}, {q*8*1280}",
             Op(f"buffer_load_dwordx4 a[{A_RAW+16*jb+4*q}:{A_RAW+16*jb+4*q+3}], v{V_JD}, {SR((SRD_WO, SRD_W2)[jb])}, s{S_ST} offen nt", tag="wt"))
            for jb in range(2) for q in range(4)]
def wt_writes():
    return [Op(f"ds_write_b128 v{V_JD}, a[{A_RAW+4*n}:{A_RAW+4*n+3}] offset:{n*1024}", tag="wtw") for n in range(8)]
A_WT = 100
def wt_reads():
    return [f"ds_read_b64_tr_b16 a[{A_WT+16*jb+4*n+2*e}:{A_WT+16*jb+4*n+2*e+1}], v{V_JT+(n>>1)} offset:{jb*4096 + e*2048 + 8*(n&1)}"
            for jb in range(2) for n in range(4) for e in range(2)]
def wt_stores():
    return [f"buffer_store_dwordx4 a[{A_WT+16*jb+4*n}:{A_WT+16*jb+4*n+3}], v{V_L16}, {SR(SRD_WS)}, s{S_JD+jb} offen offset:{n*1024}{SC}"
            for jb in range(2) for n in range(4)]

V_BIAS = 160
def bias_ops(P, s):
    G = P.G; T = Tail(G)
    T.add(f"v_lshrrev_b32 v23, 4, v0", P.gap(s)); g = T.add(f"v_lshlrev_b32 v23, 3, v23")
    prev = g
    for ft in range(4):
        prev = place_vm(G, prev + 2, Op(f"buffer_load_dwordx2 v[{240+2*ft}:{241+2*ft}], v23, {SR(SRD_B1)}, s{S_ST} offen offset:{32*ft}", tag="bias"),
                        None, f"s_lshl_b32 s{S_ST}, s{S_FB}, 7", prev)
    return prev

def q_epilogue(a):
    a(f"v_mov_b32 v16, {f2h(QSCALE)}"); a("v_mov_b32 v17, v16")
    for u in range(4):
        for kp in range(4):
            ra, rb = acc_qf(4 + 2*kp, u), acc_qf(5 + 2*kp, u)
            for r in (ra, ra + 2, rb, rb + 2): a(f"v_pk_mul_f32 v[{r}:{r+1}], v[{r}:{r+1}], v[16:17]")
            a(cvt4(ra, ra, rb))

def h_epilogue(a):
    sc = [f"s_lshl_b32 s{S_ST}, s{S_FB}, 11", f"s_add_u32 s{S_ST}, s{S_ST}, {WS_H}"]
    for u in range(4): sc += [f"s_mul_i32 s{S_T0+u}, s{S_RT+u}, {54*1024}", f"s_add_u32 s{S_T0+u}, s{S_T0+u}, s{S_ST}"]
    for ft in range(4):
        for hf in range(2):
            a(f"v_lshlrev_b32 v{V_BIAS+4*ft+2*hf}, 16, v{240+2*ft+hf}")
            a(f"v_and_b32 v{V_BIAS+4*ft+2*hf+1}, 0xffff0000, v{240+2*ft+hf}")
            a(sc.pop(0))
    a(f"v_mov_b32 v16, {f2h(-GK1)}"); a("v_mov_b32 v17, v16"); a(sc.pop(0))
    a(f"v_mov_b32 v18, {f2h(-GK0)}"); a("v_mov_b32 v19, v18"); a(sc.pop(0))
    a("v_mov_b32 v20, 1.0"); a("v_mov_b32 v21, 1.0")
    for u in range(4):
        for kb in range(2):
            regs = [acc_qf(2*kb + t, u) + 2*hf for t in range(2) for hf in range(2)]
            bias = [V_BIAS + 4*(2*kb + t) + 2*hf for t in range(2) for hf in range(2)]
            T = [24 + 2*i for i in range(4)]
            p = lambda r: f"v[{r}:{r+1}]"
            for r, b_ in zip(regs, bias): a(f"v_pk_add_f32 {p(r)}, {p(r)}, {p(b_)}")
            for r, t in zip(regs, T): a(f"v_pk_mul_f32 {p(t)}, {p(r)}, {p(r)}")
            for r, t in zip(regs, T): a(f"v_pk_fma_f32 {p(t)}, {p(t)}, v[16:17], v[18:19]")
            for r, t in zip(regs, T): a(f"v_pk_mul_f32 {p(t)}, {p(t)}, {p(r)}")
            for t in T: a(f"v_exp_f32 v{t}, v{t}"); a(f"v_exp_f32 v{t+1}, v{t+1}")
            for t in T: a(f"v_pk_add_f32 {p(t)}, {p(t)}, v[20:21]")
            for t in T: a(f"v_rcp_f32 v{t}, v{t}"); a(f"v_rcp_f32 v{t+1}, v{t+1}")
            for r, t in zip(regs, T): a(f"v_pk_mul_f32 {p(t)}, {p(t)}, {p(r)}")
            d = regs[0]
            for i, t in enumerate(T): a(f"v_cvt_pk_bf16_f32 v{d+i}, v{t}, v{t+1}")
            a(f"buffer_store_dwordx4 v[{d}:{d+3}], v{V_L16}, {SR(SRD_WS)}, s{S_T0+u} offen offset:{kb*1024}{SC}")


def gate_epilogue(a):
    a("v_lshlrev_b32 v16, 2, v0")
    a(f"v_mov_b32 v17, {OOB}")
    a("v_cmp_gt_u32 vcc, 16, v0")
    for u in range(4):
        a(f"s_lshl_b32 s{S_T0+u}, s{S_RT+u}, 6")
        a(f"s_add_u32 s{S_T0+u}, s{S_T0+u}, {WS_G}")
    a("v_cndmask_b32 v16, v17, v16, vcc")
    r = [acc_qf(0, u) for u in range(4)]
    for x in r: a(f"v_permlane32_swap_b32 v{x+1}, v{x+2}")
    a("s_nop 1")
    for x in r: a(f"v_add_f32 v{x}, v{x}, v{x+2}")
    for x in r: a(f"v_mul_f32 v{x}, {f2h(-math.log2(math.e))}, v{x}")
    for x in r: a(f"v_exp_f32 v{x}, v{x}")
    for x in r: a(f"v_add_f32 v{x}, 1.0, v{x}")
    for x in r: a(f"v_rcp_f32 v{x}, v{x}")
    a("s_nop 0")
    for u, x in enumerate(r): a(f"buffer_store_dword v{x}, v16, {SR(SRD_WS)}, s{S_T0+u} offen{SC}")
```

```python
import re

class Op:
    __slots__ = ("text", "kind", "tag", "vtags", "ltags", "note")
    def __init__(self, text, kind=None, tag=None, vtags=None, ltags=None):
        self.text = text
        self.kind = kind or classify(text)
        self.tag = tag
        self.vtags = vtags
        self.ltags = ltags

def classify(t):
    m = t.split()[0]
    if t.endswith(":") or m.startswith("."): return "label"
    if m.startswith("v_mfma"): return "mfma"
    if m.startswith("ds_"): return "ds"
    if m.startswith("buffer_") or m.startswith("global_"): return "vm"
    if m == "s_waitcnt": return "wait"
    if m == "s_barrier": return "bar"
    if m.startswith("s_load") or m.startswith("s_mem"): return "smem"
    if m.startswith("s_"): return "salu"
    if re.match(r"v_(exp|log|rcp|rsq|sqrt|sin|cos)_", m): return "trans"
    if m.startswith("v_"): return "valu"
    raise ValueError(t)

def W(v=None, l=None):
    if isinstance(v, str): v = [v]
    if isinstance(l, str): l = [l]
    return Op("s_waitcnt ?", "wait", vtags=v, ltags=l)

def mk(x):
    return x if isinstance(x, Op) else Op(x)

def resolve(ops, vm0=None, ds0=None):
    vm = list(vm0 or []); ds = list(ds0 or [])
    out = []
    waited = set()
    for o in ops:
        if o.kind == "vm" and o.tag in waited: raise AssertionError(f"op with tag {o.tag} issued after it was waited for")
        if o.kind == "wait" and o.text == "s_waitcnt ?":
            waited.update(t for t in (o.vtags or []) if t != "*")
            parts = []
            for tags, hist, name, mx in ((o.vtags, vm, "vmcnt", 63), (o.ltags, ds, "lgkmcnt", 15)):
                if tags is None: continue
                if "*" in tags:
                    n = 0
                else:
                    idx = -1
                    for t in tags:
                        found = [i for i, x in enumerate(hist) if x == t]
                        assert found, f"wait on unknown tag {t}"
                        idx = max(idx, found[-1])
                    n = len(hist) - 1 - idx
                n = min(n, mx)
                parts.append(f"{name}({n})")
            out.append("s_waitcnt " + " ".join(parts))
            continue
        if o.kind == "vm" and not o.text.startswith("buffer_inv") and not o.text.startswith("buffer_wbl2"): vm.append(o.tag)
        elif o.kind == "vm": vm.append(o.tag)
        if o.kind == "ds": ds.append(o.tag)
        out.extend(o.text.split("\n"))
    return out, vm, ds

COST = {"valu": 4, "trans": 8, "ds": 4, "vm": 8, "salu": 4, "wait": 4, "bar": 4, "smem": 4}
ORDER = {"wait": 0, "bar": 0, "salu": 0, "smem": 0, "ds": 1, "vm": 1, "valu": 2, "trans": 2}

class Gaps:
    def __init__(self):
        self.m = []
        self.g = []
        self.pre = []
    def mfma(self, text):
        self.m.append(Op(text)); self.g.append([])
        return len(self.m) - 1
    def put(self, gap, x):
        if gap < 0: self.pre.append(mk(x))
        else: self.g[gap].append(mk(x))
    def cost(self, gap):
        c = 0; first = True
        for o in self.ordered(gap):
            if first and ORDER[o.kind] == 0: first = False; continue
            first = False
            c += COST[o.kind]
        return c
    def ordered(self, gap):
        return sorted(self.g[gap], key=lambda o: ORDER[o.kind])
    def has_scalar(self, gap):
        return any(ORDER[o.kind] == 0 for o in self.g[gap])
    def fit(self, lo, x, hi=None, budget=8):
        x = mk(x)
        hi = len(self.m) - 1 if hi is None else hi
        for g in range(lo, hi + 1):
            self.g[g].append(x)
            ok = self.cost(g) <= budget
            kinds = [o.kind for o in self.g[g]]
            if ok and kinds.count("vm") and (kinds.count("vm") + kinds.count("ds") + kinds.count("valu") + kinds.count("trans") > 1): ok = False
            if ok: return g
            self.g[g].pop()
        return None
    def ops(self):
        out = list(self.pre)
        for i, m in enumerate(self.m):
            out.append(m)
            out.extend(self.ordered(i))
        return out
    def overflow(self):
        return sum(max(0, self.cost(i) - 8) for i in range(len(self.m)))

def regs_of(tok):
    tok = tok.strip()
    neg = tok.lstrip("-|").rstrip("|")
    if neg.startswith("abs("): neg = neg[4:-1]
    m = re.fullmatch(r"([vas])(\d+)", neg)
    if m: return [(m.group(1), int(m.group(2)))]
    m = re.fullmatch(r"([vas])\[(\d+):(\d+)\]", neg)
    if m: return [(m.group(1), i) for i in range(int(m.group(2)), int(m.group(3)) + 1)]
    if neg == "vcc": return [("s", 106), ("s", 107)]
    if neg == "m0": return [("s", 124)]
    if neg == "exec": return [("s", 126), ("s", 127)]
    return []

def parse(line):
    t = line.split(";")[0].strip()
    if not t: return None
    k = classify(t)
    if k == "label": return None
    sp = t.split(None, 1)
    mn = sp[0]
    args = []
    if len(sp) > 1:
        body = sp[1]
        body = re.sub(r"\s+op_sel(_hi)?:\[[0-9,]*\]", "", body)
        args = [x.strip() for x in body.split(",")]
        last = args[-1].split()
        mods = last[1:]
        args[-1] = last[0]
    else:
        mods = []
    R = [regs_of(x) for x in args]
    w, r, ex = [], [], {}
    if k == "mfma":
        w = R[0]; ex["a"] = R[1]; ex["b"] = R[2]; ex["c"] = R[3]; r = R[1] + R[2] + R[3]
    elif k == "ds":
        if mn.startswith("ds_read") or mn.startswith("ds_bpermute") or mn.startswith("ds_swizzle"):
            w = R[0]; r = sum(R[1:], [])
        else:
            r = sum(R, [])
    elif k == "vm":
        if mn.startswith("buffer_inv") or mn.startswith("buffer_wbl2"):
            pass
        elif "lds" in mods:
            r = sum(R, []) + [("s", 124)]; ex["dma"] = True
        elif mn.startswith("buffer_load") or mn.startswith("global_load"):
            w = R[0]; r = sum(R[1:], [])
        elif mn.startswith("buffer_store"):
            r = sum(R, []); ex["sdata"] = R[0] if len(R[0]) >= 3 else []
        elif mn.startswith("buffer_atomic"):
            r = sum(R, [])
            if "sc0" in mods: w = R[0]
        else:
            raise ValueError(line)
    elif k in ("valu", "trans"):
        if mn.startswith("v_cmp"):
            w = R[0]; r = sum(R[1:], [])
        elif mn.startswith("v_permlane") and "swap" in mn:
            w = R[0] + R[1]; r = R[0] + R[1]; ex["perm"] = True
        elif mn.startswith("v_nop"):
            pass
        else:
            w = R[0]; r = sum(R[1:], [])
            if mn.startswith("v_fmac") or mn.startswith("v_writelane") or mn.startswith("v_pk_fmac") or "dpp" in mn: r = r + R[0]
            if "dpp" in mn: ex["perm"] = True
            if mn.startswith("v_readfirstlane") or mn.startswith("v_readlane"): ex["rl"] = True
            if mn.startswith("v_add_co") or mn.startswith("v_sub_co"): w = R[0] + R[1]; r = sum(R[2:], [])
    elif k == "salu":
        if mn.startswith("s_cmp") or mn.startswith("s_cbranch") or mn in ("s_branch", "s_nop", "s_endpgm", "s_sleep", "s_setprio", "s_bitcmp1_b32", "s_bitcmp0_b32"):
            r = sum(R, [])
            if "vcc" in mn: r = r + [("s", 106), ("s", 107)]
        else:
            w = R[0]; r = sum(R[1:], [])
            if mn.startswith("s_addk") or mn.startswith("s_mulk") or mn.startswith("s_cmov"): r = r + R[0]
            if "saveexec" in mn: w = w + [("s", 126), ("s", 127)]
    elif k == "smem":
        w = R[0]; r = sum(R[1:], [])
    return mn, k, w, r, ex, t

def lint(lines, name="", verbose=True):
    errs = []
    pos = 0
    last_valu_w = {}
    last_trans_w = {}
    last_mfma_w = {}
    last_mfma_c = {}
    last_salu_w = {}
    last_store = {}
    scc = ['', True]
    vm = []; lg = []
    def err(msg, t): errs.append(f"{name}: {msg}: {t}")
    for line in lines:
        p = parse(line)
        if p is None: continue
        mn, k, w, r, ex, t = p
        if k == "wait":
            m = re.search(r"vmcnt\((\d+)\)", t)
            if m:
                n = int(m.group(1)); vm = vm[len(vm) - n:] if n < len(vm) else vm
                if n == 0: vm = []
            m = re.search(r"lgkmcnt\((\d+)\)", t)
            if m:
                n = int(m.group(1))
                if n == 0: lg = []
                elif any(x[0] == "smem" for x in lg): pass
                else: lg = lg[len(lg) - n:] if n < len(lg) else lg
            pos += 1
            continue
        pend = set()
        for d in vm: pend.update(d)
        for d in lg: pend.update(d[1])
        for x in r:
            if x in pend: err(f"read of pending load dest {x}", t)
        for x in w:
            if x in pend and not (k in ("ds", "vm")): err(f"write of pending load dest {x}", t)
        def dist(tbl, x):
            v = tbl.get(x)
            if v is None: return 999
            if isinstance(v, tuple): v = v[0]
            return pos - v - 1
        if k == "mfma":
            for x in r:
                if dist(last_valu_w, x) < 2: err(f"VALU->MFMA {x} needs 2", t)
            for x in ex["a"] + ex["b"]:
                if dist(last_mfma_w, x) < 8: err(f"MFMA D->A/B {x} needs 8", t)
            for x in ex["c"]:
                if x in last_mfma_w and dist(last_mfma_w, x) < 6 and last_mfma_w[x][1] != tuple(ex["c"]): err(f"MFMA D->C overlap {x}", t)
            for x in w:
                if x in last_mfma_w and dist(last_mfma_w, x) < 6 and x not in ex["c"]: err(f"MFMA WAW {x} (conservative)", t)
        if k in ("valu", "trans"):
            for x in r + w:
                if dist(last_mfma_w, x) < 8: err(f"MFMA D->VALU {x} needs 8 (has {dist(last_mfma_w, x)})", t)
            for x in w:
                if dist(last_mfma_c, x) < 3: err(f"MFMA C WAR {x} needs 3", t)
                if dist(last_store, x) < 2: err(f"store data WAR {x} needs 2", t)
            for x in r:
                if k == "valu" and dist(last_trans_w, x) < 1: err(f"trans->VALU {x} needs 1", t)
                if x[0] == "s" and dist(last_valu_w, x) < 2: err(f"VALU sgpr write->VALU read {x} needs 2", t)
                if ex.get("perm") and x[0] == "v" and dist(last_valu_w, x) < 2: err(f"VALU->perm/dpp {x} needs 2", t)
                if ex.get("rl") and x[0] == "v" and dist(last_valu_w, x) < 1: err(f"VALU->readlane {x} needs 1", t)
        if k in ("ds", "vm"):
            for x in r + w:
                if dist(last_mfma_w, x) < 8: err(f"MFMA D->mem {x} needs 8", t)
            for x in r:
                if k == "vm" and x[0] == "s" and dist(last_valu_w, x) < 5: err(f"VALU sgpr->VMEM {x} needs 5", t)
                if dist(last_trans_w, x) < 1: err(f"trans->mem {x} (conservative)", t)
            if ex.get("dma") and dist(last_salu_w, ("s", 124)) < 1: err("M0->DMA needs 1", t)
            for x in w:
                if dist(last_store, x) < 1: err(f"store data WAR {x} needs 1", t)
        if k == "salu":
            cons = mn.startswith(("s_cselect", "s_cmov", "s_cbranch_scc", "s_addc"))
            if cons:
                if mn.startswith(("s_cselect", "s_cmov")) and not scc[0].startswith(("s_cmp", "s_bitcmp")): err(f"SCC comes from {scc[0]}", t)
                if mn.startswith("s_cbranch") and not scc[0].startswith(("s_cmp", "s_bitcmp", "s_or_b64")): err(f"SCC comes from {scc[0]}", t)
                scc[1] = True
            if mn.startswith(("s_cmp", "s_bitcmp", "s_add", "s_sub", "s_and", "s_or", "s_xor", "s_lsh", "s_bfe", "s_ashr", "s_min", "s_max")):
                if scc[0].startswith(("s_cmp", "s_bitcmp")) and not scc[1]: err(f"compare result unused: {scc[0]}", t)
                scc[0] = t; scc[1] = False
        if k == "mfma":
            for x in w: last_mfma_w[x] = (pos, tuple(w)); last_valu_w.pop(x, None)
            for x in ex["c"]: last_mfma_c[x] = pos
        elif k in ("valu", "trans"):
            for x in w:
                last_valu_w[x] = pos; last_mfma_w.pop(x, None)
                if k == "trans": last_trans_w[x] = pos
                else: last_trans_w.pop(x, None)
        elif k == "salu":
            for x in w: last_salu_w[x] = pos; last_valu_w.pop(x, None)
        if k == "vm":
            vm.append(list(w))
            for x in ex.get("sdata", []): last_store[x] = pos
            if len(vm) > 63 + 64: pass
        if k == "ds": lg.append(("ds", list(w)))
        if k == "smem": lg.append(("smem", list(w)))
        if mn == "s_nop": pos += int(t.split()[1]) + 1
        else: pos += 1
    if verbose:
        seen = set()
        for e in errs[:40]:
            if e not in seen: print("LINT", e); seen.add(e)
        if errs: print(f"LINT {name}: {len(errs)} errors")
    return errs
```

```python
import sys, json
from gen_fin import *

def flat(ops): return resolve(ops)[0]
def sops(stamps, name, on=True):
    t = Asm()
    if on: stamps.stamp(t, name)
    return [Op(x.strip()) for x in t.lines]

def gen(name, stamps, opt):
    a = Asm(); spins = Spins(opt.get('spindbg'))
    entry(a, name, not opt.get('nocode'), stamps)
    LATE_PAR[0] = opt.get('late', 1)
    setup_first(a, opt.get('wsshift', 0)*MB)
    stamps.early_save(a)
    stamps.stamp(a, "start")
    m = Asm(); setup_rest(m)
    P = Proj(**opt.get('proj', {})).build([Op(x.strip()) for x in m.lines] + ([warm_c()] if opt.get('warmc', 1) else []) + ([mk(y) for x in warm_w(opt.get('wwnt', ''))[:opt.get('warmw', 0)] for y in x]))
    G = P.G
    if not opt.get('nowarm'):
        for k, (so, o) in enumerate(warm_ops(opt.get('warmnt', ''))): place_vm(G, opt.get('warm0', 60) + opt.get('warmstep', 80)*k, o, None, so)
    for k, (so, o) in enumerate(warm_w(opt.get('wwnt', ''))[opt.get('warmw', 0):opt.get('warmw2', 0)]): place_vm(G, 20 + 60*k, o, None, so)
    for k, (so, o) in enumerate(wt_loads()): place_vm(G, opt.get('wt0', 100) + opt.get('wtstep', 96)*k, o, None, so)
    last_st = kv_epilogue(P, **opt.get('kv', {}))
    wt_addr(P, last_st + 4)
    bias_ops(P, 16)
    T = Tail(G)
    T.add(f"v_mov_b32 v20, s{S_EP}", P.gap(12)); T.add("v_and_b32 v21, 31, v0"); T.add("v_lshlrev_b32 v21, 2, v21")
    def free_gap(g):
        while G.g[g]: g += 1
        return g
    g = free_gap(last_st + opt.get('kvflag', 80)); G.put(g, W(v=["KVst"])); G.put(g, Op(flag_set(20, S_FK), tag="fl"))
    place_scalars(G, [f"s_and_b32 s{S_FK}, s{S_FK}, 0xffffff80"] + att_setup_s(), max(g + 1, P.gap(15)), P.gap(16) - 1)
    pl = f"buffer_load_dword v22, v21, {SR(SRD_WS)}, s{S_FK} offen{SC}"
    place_vm(G, P.gap(16), Op(pl, tag="p1"))
    g = free_gap(P.bar_gap(16) + 1); G.put(g, W(v=["p1"])); G.put(g, block(spins.check(pl, flag_test(22)), "valu"))
    ge = att_prefetch0(G, g + 1)
    print("att prefetch ends at gap", ge, "of", len(G.m), "overflow", G.overflow())
    stamps.put(G, -1, "mfma0")
    fine = opt.get('fine')
    for s_ in ((8,) if fine else (4, 7, 8, 10, 12, 14, 16)): stamps.put(G, P.gap(s_) - 1, f"stage{s_}")
    lines, vm, _ = resolve(G.ops() + [W(v=["bias"])])
    a(lines)
    stamps.stamp(a, "qf_mm")
    pre = list(a.lines)
    n0 = len(a.lines)
    a(f"s_cmp_lg_u32 s{S_AUX}, 0")
    a("s_cbranch_scc1 L_gate")
    h_epilogue(a)
    hpath = a.lines[n0:]
    a.label("L_qepi")
    n0 = len(a.lines)
    q_epilogue(a)
    att_setup_v(a)
    stamps.stamp(a, "att0")
    a(f"s_waitcnt vmcnt(20)"); a("s_barrier")
    st0, q0n, q0d = [flat(x) for x in att_start(20)]
    a(st0)
    first = a.lines[n0:]
    def period(blk):
        st = [step(blk, p) for p in range(4)]
        if blk:
            place_scalars(st[1], [f"s_cmp_eq_u32 s{S_PER}, 1", f"s_cselect_b32 s{S_TA+2}, s{S_TA+3}, {OOB}"], 16 + 12, 16 + 16)
            st[1].put(33, Op(fq_poll(S_TA + 2), tag="poll"))
            place_scalars(st[3], [f"s_cmp_eq_u32 s{S_PER}, s{S_FQP}", f"s_cselect_b32 s{S_TA+2}, s{S_FQ}, {OOB}"], 10, 14)
            st[3].put(33, Op(flag_set(V_EP, S_TA + 2), tag="fq"))
        place_scalars(st[3], [f"s_sub_u32 s{S_PER}, s{S_PER}, 1", f"s_cmp_lg_u32 s{S_PER}, 0"], 16 + 12, 16 + 16)
        for p in range(4): assert st[p].overflow() == 0, (p, st[p].overflow())
        ops = [g.ops() for g in st]
        tr = flat(ops[1] + ops[2] + ops[3] + ops[0])
        n1, n2, n3 = len(ops[1]), len(ops[2]), len(ops[3])
        return tr[n1+n2+n3:], tr[:n1+n2+n3], resolve(ops[3])[2]
    s0, s123, ds3 = period(0)
    t0, t123, dt3 = period(1)
    d0l = resolve(step(0, 0, C_D0).ops(), ds0=ds3)[0]
    fs, fv = fin_setup()
    d1 = step(0, 1, C_D1, k2=True, tag="w1")
    gl = glue(ctx_addr_ops() + fs)
    g = place_scalars(d1, gl[:24], 0, 32)
    eb1 = end_block1(gl[24:])
    z = [step(1, 1, zero=True), step(1, 2, barw=W(v=["w1"], l="*")), step(1, 3)]
    for o, g in zip(wt_writes(), (0, 3, 7, 10, 17, 19, 21, 24)): z[0].put(g, o)
    for o, g in zip(wt_reads(), (26, 26, 28, 28, 29, 30, 30, 32, 33, 33)): z[0].put(g, o)
    for o, g in zip(wt_reads()[10:], (0, 0, 1, 1, 4, 4)): z[1].put(g, o)
    ws_ = [Op(x, tag="wtst") for x in wt_stores()]
    for o, g in zip(ws_[:4], (17, 21, 24, 29)): z[1].put(g, o)
    for o, g in zip(ws_[4:], (2, 10, 20, 33)): z[2].put(g, o)
    for o, g in zip(fv, (29, 32, 29, 32, 32)): z[1 if o in fv[:2] else 2].put(g, o)
    place_scalars(z[0], [f"s_mov_b32 s{S_BLK}, 1", f"s_sub_u32 s{S_QB}, 15, s{S_I}", f"s_sub_u32 s{S_PER}, 14, s{S_I}"], 8, 14)
    print("block1 end overflow", d1.overflow(), eb1.overflow(), [x.overflow() for x in z])
    S = lambda n: sops(stamps, n, fine)
    b1l = resolve(S("B") + d1.ops() + S("d1") + eb1.ops() + S("eb1") + epilogue("1") + [Op(x) for x in cm_update()] + [W(v=["w0"], l="*"), Op("s_barrier")]
                  + sops(stamps, "blk1") + z[0].ops() + z[1].ops() + z[2].ops() + S("peel"), vm0=["prev"] + ["w0"]*8)[0]
    a(f"s_cmp_eq_u32 s{S_QB}, 0")
    a("s_cbranch_scc1 L_q0d")
    a(q0n)
    a("s_branch L_A")
    a.label("L_q0d")
    a(q0d)
    a("s_branch L_B")
    n0 = len(a.lines); slow_path(a); slow = a.lines[n0:]
    a.label("L_gate")
    n0 = len(a.lines); gate_epilogue(a); gpath = a.lines[n0:]
    a("s_branch L_qepi")
    a(".p2align 6")
    a.label("L_loop")
    a(s0)
    a.label("L_A")
    a(s123)
    a("s_cbranch_scc1 L_loop")
    a(d0l)
    a.label("L_B")
    a(b1l)
    a.label("L_loop2")
    a(t0); a(t123)
    a("s_cbranch_scc1 L_loop2")
    F = Fin()
    fl1 = (None, None, Op(flag_set(V_EP, S_FC), tag="fl"))
    d0L = step(1, 0, C_D0, stream=False, barw=W(v=["K35"], l="*"))
    d0L.put(1, W(v=["poll"])); d0L.put(1, block(spins.check(fq_poll(S_TA + 3), flag_test(V_POLL, 4)), "valu"))
    put_loads(d0L, F.a_loads(0) + F.a_loads(1) + [fl1], (4, 6, 10, 15, 19, 23, 27, 31, 32))
    place_scalars(d0L, ctx_addr_ops(), 5, 32)
    d1L = step(1, 1, C_D1, stream=False, k2=True)
    put_loads(d1L, F.w_dma(0) + F.a_loads(2), (2, 6, 10, 15, 19, 22, 25, 27, 31))
    w1 = F.w_dma(1)
    eb2 = end_block2(w1[:4], w1[4:] + F.g_loads(), F.w_dma(2), W(l="*"))
    F.build(spins, **opt.get("fin", {}))
    print("last: overflow", d0L.overflow(), d1L.overflow(), eb2.overflow(), F.G.overflow())
    z = [S(n) for n in ("last", "d0L", "d1L", "eb2")]
    sb = sops(stamps, "blk2")
    stamps.put(F.G, F_ST*40 - 1, "ffn2")
    lastl = resolve(z[0] + d0L.ops() + z[1] + d1L.ops() + z[2] + eb2.ops() + z[3] + F.pre_ops() + epilogue("2") + sb + F.G.ops() + [W(v=["g"])],
                    vm0=["poll"] + ["V33"]*4 + ["K35"]*4 + ["fq"], ds0=dt3)[0]
    n0 = len(a.lines)
    a(lastl)
    stamps.stamp(a, "fmm")
    fin_tail(a, spins)
    last = a.lines[n0:]
    stamps.stamp(a, "issued")
    if stamps.enabled: a("s_waitcnt vmcnt(0)")
    stamps.stamp(a, "end")
    stamps.dump(a, 0)
    a("s_endpgm")
    spins.emit(a)
    a.label('L_code_end')
    br = ["s_cbranch_scc1 x"]
    lint(pre + hpath + first + q0n + s123 + br + s0 + s123 + br + d0l + b1l + t0 + t123 + br + t0 + t123 + br + last, "main")
    lint(pre[-200:] + hpath[:2] + gpath + first + q0d + b1l, "gate")
    ix = lambda l, x: [i for i, y in enumerate(l) if y.strip().startswith(x)][0]
    lint(b1l[:ix(b1l, "done1")] + slow[ix(slow, "redo1"):-3] + slow[ix(slow, "slow_loop"):] + b1l[ix(b1l, "norm1"):], "slow1")
    lint(last[:ix(last, "done2")] + slow + last[ix(last, "norm2"):], "slow2")
    return a

if __name__ == "__main__":
    out = sys.argv[1]
    st = Stamps("stamp" in sys.argv or "lite" in sys.argv)
    if "lite" in sys.argv: st.only = ("entry", "mfma0", "stage8", "att0", "blk2", "fmm", "end")
    opt = eval(sys.argv[2])
    name = KNAME + "_kernel"
    a = gen(name, st, opt)
    txt = file_text([(name, 256, 256, 163840)], a.text(), [kernel_desc(name, 256, 256)], single=True)
    open(out, "w").write(txt)
    json.dump({"stamps": [st.names]}, open(out + ".json", "w"))
```

```python
from gen_proj import *

V_KA = 2; V_VA = 3; V_TB = 4
V_M2 = 240
V_POLL = 244
V_EP = 252
def O_(dt, j): return 16 + (dt*2 + j)*4
def L_(j): return 80 + 4*j
def S_(b, kt, j): return 88 + b*16 + (j*2 + kt)*4
def P_(b, j): return 120 + b*8 + 4*j
def NM(j): return 136 + 4*j
def CM(j, k4): return 144 + (j*4 + k4)*4
def Q_(blk, j, ks): return 176 + blk*32 + (j*4 + ks)*4
KF0 = 256; VF0 = 256 + 32; ONES = 256 + 64; XB = 256 + 68
BIG = 2.0**100

S_OFFK = 12; S_OFFV = 13; S_CNT = 14; S_N1 = 15; S_BASE = 16; S_RK = 17; S_RV = 18; S_PER = 19; S_QB = 20; S_BLK = 21
S_CTX = 22
S_TA = 62
S_SL = 66
S_FQP = 69

def fq_poll(so): return f"buffer_load_dwordx4 v[{V_POLL}:{V_POLL+3}], v{V_L16}, {SR(SRD_WS)}, s{so} offen{SC}"
def kreads(unit, base=KF0, tag="k"):
    return [Op(f"ds_read_b128 {R(base+4*i,4)}, v{V_KA} offset:{unit*8192 + i*1024}", tag=f"{tag}{i>>2}") for i in range(8)]
def vreads(unit, base=VF0, tag="v"):
    return [Op(f"ds_read_b128 {R(base+4*i,4)}, v{V_VA} offset:{unit*8192 + i*1024}", tag=f"{tag}{i>>2}") for i in range(8)]
def dma(which, j, tag="dma"):
    s = S_OFFK if which == "K" else S_OFFV
    return Op(f"buffer_load_dwordx4 v{V_L16}, {SR(SRD_WS)}, s{s} offen offset:{j*1024}{SC} lds", tag=tag)
def exps(b, j): return [f"v_exp_f32 v{S_(b,kt,j)+r}, v{S_(b,kt,j)+r}" for kt in range(2) for r in range(4)]
def cvts(b, j): return [f"v_cvt_pk_bf16_f32 v{P_(b,j)+i}, v{S_(b,i>>1,j)+2*(i&1)}, v{S_(b,i>>1,j)+2*(i&1)+1}" for i in range(4)]
KFLIP = f"v_xor_b32 v{V_KA}, 0x8000, v{V_KA}"; VFLIP = f"v_xor_b32 v{V_VA}, 0x8000, v{V_VA}"
K_PRE = f"s_mov_b32 m0, s{S_RK}"; V_PRE = f"s_add_u32 m0, s{S_RV}, 65536"
def k_post(): return [f"s_add_u32 s{S_RK}, s{S_RK}, 16384", f"s_and_b32 s{S_RK}, s{S_RK}, 0xffff"]
def v_ring(): return [f"s_add_u32 s{S_RV}, s{S_RV}, 16384", f"s_and_b32 s{S_RV}, s{S_RV}, 0xffff"]
def k_adv():
    return [f"s_add_u32 s{S_TA}, s{S_OFFK}, 16384", f"s_add_u32 s{S_OFFK}, s{S_OFFK}, 32768", f"s_add_u32 s{S_CNT}, s{S_CNT}, 1",
            f"s_cmp_eq_u32 s{S_CNT}, s{S_N1}", f"s_cselect_b32 s{S_OFFK}, s{S_BASE}, s{S_OFFK}"]
V_SET = f"s_mov_b32 s{S_OFFV}, s{S_TA}"
def glue(ops):
    out = []
    for x in ops:
        if x.startswith(("s_cselect", "s_addc", "s_cmov")): out[-1] = out[-1] + "\n" + x
        else: out.append(x)
    return [Op(x, "salu") for x in out]
def put_dma(G, which, slots, tag="dma"):
    G.put(slots[0] - 1, K_PRE if which == "K" else V_PRE)
    for j in range(4): G.put(slots[j], dma(which, j, tag))
    n = len(G.m) - 1
    if which == "K": place_scalars(G, k_post(), slots[0], n)
    else:
        g = place_scalars(G, v_ring() + k_adv(), slots[0], n)
        place_scalars(G, [V_SET], max(g, slots[3] + 1), n)
def put_loads(G, loads, slots):
    assert len(loads) <= len(slots)
    for (m0, so, op), g in zip(loads, slots):
        if m0: G.put(g - 1, m0)
        if so: G.put(g, so)
        G.put(g, op)
def bar(G, g, w):
    G.put(g, w if isinstance(w, Op) else Op(f"s_waitcnt vmcnt({w}) lgkmcnt(0)")); G.put(g, "s_barrier")

def qk(b, blk, cfun, spec=((0, 0, KF0), (1, 1, KF0))):
    return [mfma(S_(b, kt, sl), kb + (kt*4 + ks)*4, Q_(blk, j, ks), cfun(sl, kt) if ks == 0 else None)
            for sl, j, kb in spec for kt in range(2) for ks in range(4)]
def pv(b, zero=False):
    c = "0" if zero else None
    return [mfma(L_(0), ONES, P_(b, 0), c)] + [mfma(O_(dt, j), VF0 + 4*dt, P_(b, j), c) for dt in range(8) for j in range(2)] + [mfma(L_(1), ONES, P_(b, 1), c)]
def pv2(b, v0, v1):
    return [mfma(L_(1), ONES, P_(b, 0))] + [mfma(O_(dt, 1), v0 + 4*dt, P_(b, 0)) for dt in range(8)] + \
           [mfma(O_(dt, 1), v1 + 4*dt, P_(b, 1)) for dt in range(8)] + [mfma(L_(1), ONES, P_(b, 1))]
def q_part(G, m, d, e, c, early=False):
    g0 = len(G.m)
    for x in m: G.mfma(x)
    if early:
        pat = [[d[0], d[1]], [e[0]], [d[2], d[3]], [e[1]], [d[4], c[0]], [e[2]], [], [e[3]], [d[5], c[1]], [e[4]], [d[6], d[7]], [e[5]], [e[6]], [e[7]], [c[2], c[3]], []]
    else:
        pat = [[e[0]], [e[1]], [d[0], c[0]], [e[2]], [e[3]], [d[1], c[1]], [], [e[4]], [e[5]], [d[2], c[2]], [e[6]], [e[7]], [d[3], c[3]], [d[4], d[5]], [d[6], d[7]], []]
    for i, l in enumerate(pat):
        for o in l: G.put(g0 + i, o)
    return g0
def p_part(G, m, d, e, c):
    g0 = len(G.m)
    for x in m: G.mfma(x)
    pat = [[d[0], d[1]], [e[0]], [d[2], d[3]], [e[1]], [d[4], c[0]], [e[2]], [e[3]], [d[5], c[1]], [e[4]], [d[6], d[7]],
           [e[5]], [], [e[6]], [c[2]], [e[7]], [], [c[3]], []]
    for i, l in enumerate(pat):
        for o in l: G.put(g0 + i, o)
    return g0
DSLOT = (6, 15, 16 + 11, 16 + 15)

def step(blk, p, cfun=None, zero=False, stream=True, k2=False, dslot=DSLOT, tag="dma", barw=16):
    G = Gaps(); b = (p + blk) & 1; pb = b ^ 1
    if cfun is None: cfun = lambda j, kt: NM(j)
    q_part(G, qk(b, blk, cfun), vreads((p - 1) & 3), exps(pb, 1), cvts(pb, 1))
    p_part(G, pv(pb, zero), kreads((p + 1) & 3), exps(b, 0), cvts(b, 0))
    G.put(15, W(l=["v0"])); G.put(16 + 7, W(l=["v1"]))
    if p == 0: G.put(16 + 13, VFLIP)
    if p == 2: G.put(16 + 13, KFLIP)
    if k2:
        for o, g in zip(kreads(3, XB, "x"), (26, 27, 28, 29, 30, 31, 32, 33)): G.put(g, o)
    if p & 1:
        G.put(33, W(l=["k0"]))
    else:
        G.put(3, W(l=["k1"])); bar(G, 33, barw)
    if stream: put_dma(G, "K" if p & 1 else "V", dslot, tag)
    return G

C_D0 = lambda j, kt: CM(0, kt) if j == 0 else NM(1)
C_D1 = lambda j, kt: CM(0, 2 + kt) if j == 0 else NM(1)
def x1(G, blk, barw):
    b = blk & 1
    g = q_part(G, qk(b, blk, lambda sl, kt: CM(1, 2*sl + kt), ((0, 1, KF0), (1, 1, XB))), vreads(1), exps(b ^ 1, 1), cvts(b ^ 1, 1), early=True)
    G.put(g + 3, W(l=["k1"])); G.put(g + 7, W(l=["x1"]))
    bar(G, g + 15, barw)
    return g
def end_block1(scal):
    G = Gaps()
    x1(G, 0, W(v=["prev"], l="*"))
    G.put(15, KFLIP)
    G.put(12, f"v_mov_b32 v{NM(0)}, v{V_M2}")
    p_part(G, pv(1), kreads(0), exps(0, 0), cvts(0, 0))
    mv = [f"v_mov_b32 v{NM(j)+r}, v{V_M2+j}" for j in range(2) for r in range(4)][1:]
    for o, g in zip(mv, (13, 29, 32, 19, 21, 24, 26)): G.put(g, o)
    G.put(33, W(l=["k0"]))
    q_part(G, qk(1, 1, lambda j, kt: NM(j)), vreads(2), exps(0, 1), cvts(0, 1))
    G.put(34 + 3, W(l=["k1"])); G.put(34 + 15, W(l=["v0"]))
    for x in pv2(0, VF0, XB): G.mfma(x)
    d, k, e, c = vreads(3, XB, "x"), kreads(1), exps(1, 0), cvts(1, 0)
    pat = [d[0:2], d[2:4], d[4:6], d[6:8], [e[0]], [e[1]], [k[0], c[0]], [e[2]], [e[3]], [k[1], c[1]], [e[4]], [e[5]], [k[2], c[2]],
           [e[6]], [e[7]], [k[3], c[3]], k[4:6], k[6:8]]
    for i, l in enumerate(pat):
        for o in l: G.put(50 + i, o)
    G.put(50 + 4, W(l=["v1"])); G.put(50 + 8, W(l=["x0"])); G.put(50 + 12, W(l=["x1"]))
    G.put(67, VFLIP)
    put_dma(G, "V", (6, 11, 17, 22), "w1")
    put_dma(G, "K", (27, 31, 33, 40), "w2")
    put_dma(G, "V", (45, 49, 56, 62), "w2")
    place_scalars(G, scal, 0, 66)
    return G
def end_block2(loads1, loads2, loads4, barw):
    G = Gaps()
    x1(G, 1, barw)
    put_loads(G, loads1, (3, 6, 9, 12))
    p_part(G, pv(0), vreads(2, XB, "x"), exps(1, 0), cvts(1, 0))
    e, c = exps(1, 1), cvts(1, 1)
    G.put(16 + 11, e[0]); G.put(16 + 15, e[1]); G.put(16 + 16, c[0]); G.put(16 + 17, e[2])
    put_loads(G, loads2, (18, 21, 24, 28, 31))
    G.put(33, W(l=["x1"]))
    for x in pv2(1, XB, VF0): G.mfma(x)
    d = vreads(3)
    pat = [[d[0], d[1], e[3]], [d[2], d[3], c[1]], [e[4]], [d[4], d[5], e[5]], [d[6], d[7], c[2]], [e[6]], [e[7]], [c[3]], []]
    for i, l in enumerate(pat):
        for o in l: G.put(34 + i, o)
    G.put(34 + 8, W(l=["v0"])); G.put(34 + 12, W(l=["v1"]))
    put_loads(G, loads4, (42, 44, 46, 48, 50))
    return G

def att_setup_v(a):
    a(f"v_mov_b32 v{V_KA}, v{V_L16}")
    a(f"v_add_u32 v{V_VA}, 65536, v{V_L16}")
    a("v_and_b32 v6, 15, v0")
    a(f"s_lshl_b32 s{S_TA}, s{S_WAVE}, 4")
    a("v_lshrrev_b32 v7, 4, v0")
    a(f"s_sub_u32 s{S_TA+1}, 112, s{S_TA}")
    a("v_lshlrev_b32 v7, 2, v7")
    a("v_sub_u32 v6, v6, v7")
    a(f"v_add_u32 v7, s{S_TA}, v6")
    a(f"v_add_u32 v8, s{S_TA+1}, v6")
    a("v_cvt_f32_i32 v7, v7"); a("v_cvt_f32_i32 v8, v8")
    a("v_add_f32 v7, 0.5, v7"); a("v_add_f32 v8, 0.5, v8")
    a(f"v_mul_f32 v{V_TB}, {f2h(BIG)}, v7"); a(f"v_mul_f32 v{V_TB+1}, {f2h(BIG)}, v8")
    a(f"v_mov_b32 v{V_EP}, s{S_EP}")
    a("v_mov_b32 v6, 0x3f803f80")
    for i in range(4): a(f"v_accvgpr_write_b32 {R(ONES+i)}, v6")

def att_setup_s():
    return [f"s_lshl_b32 s{S_BASE}, s{S_H}, 20", f"s_lshl_b32 s{S_RK}, s{S_WAVE}, 12", f"s_add_u32 s{S_BASE}, s{S_BASE}, s{S_RK}",
            f"s_mov_b32 s{S_RV}, s{S_RK}", f"s_mov_b32 s{S_OFFK}, s{S_BASE}", f"s_mov_b32 s{S_CNT}, 0",
            f"s_lshl_b32 s{S_N1}, s{S_I}, 1", f"s_add_u32 s{S_N1}, s{S_N1}, 2", f"s_mov_b32 s{S_QB}, s{S_I}", f"s_mov_b32 s{S_BLK}, 0",
            f"s_mov_b32 s{S_TA+3}, {WS_FQ}", f"s_mov_b32 s{S_PER}, s{S_I}", f"s_sub_u32 s{S_FQP}, 12, s{S_I}"]

def att_prefetch0(G, lo, spacing=2):
    g = lo; rest = []
    for which, post in (("K", k_post() + k_adv() + [V_SET]), ("K", k_post()), ("V", v_ring() + k_adv() + [V_SET]), ("K", k_post()), ("V", v_ring() + k_adv() + [V_SET])):
        pre = K_PRE if which == "K" else V_PRE
        if not rest and g + 4*max(spacing, 3) + 3 < len(G.m):
            for j in range(4): g = place_vm(G, g + spacing, dma(which, j), pre if j == 0 else None, None, g)
            g = place_scalars(G, glue(post), g + 1, len(G.m) - 1) - 1
        else:
            rest += [[pre], [dma(which, 0).text], [dma(which, 1).text], [dma(which, 2).text], [dma(which, 3).text]] + [[x.text] for x in glue(post)]
    return rest

def cross_max(a, pairs):
    for op in ("v_permlane32_swap_b32", "v_permlane16_swap_b32"):
        for d, t in pairs: a(f"v_mov_b32 v{t}, v{d}")
        if len(pairs) < 3: a("s_nop 1")
        for d, t in pairs: a(f"{op} v{t}, v{d}")
        if len(pairs) < 3: a("s_nop 1")
        for d, t in pairs: a(f"v_max_f32 v{d}, v{d}, v{t}")

def att_start(b1):
    o = kreads(0)
    lm = [f"v_subrev_f32 v{CM(j,k4)+r}, {f2h((16*(k4+4*j)+r)*BIG)}, v{V_TB+j}" for j in range(2) for k4 in range(4) for r in range(4)]
    o += [Op(x) for x in [f"v_mov_b64 v[{r}:{r+1}], 0" for r in range(16, 88, 2)] + lm[:8]]
    o += [W(l=["k0"])]
    G = Gaps()
    T = lambda u: S_(1, u & 1, u >> 1)
    for u in range(4):
        for ks in range(4): G.mfma(mfma(T(u), KF0 + 4*ks, Q_(u >> 1, u & 1, ks), "0" if ks == 0 else None))
    put_dma(G, "K", (1, 5, 9, 13))
    tl = Tail(G)
    for x in lm[8:]: tl.add(x)
    o += G.ops() + tl.post
    a = Asm()
    for u in range(4):
        a(f"v_max3_f32 v{6+u}, v{T(u)}, v{T(u)+1}, v{T(u)+2}")
        if u == 2: a("s_nop 1")
        a(f"v_max_f32 v{6+u}, v{6+u}, v{T(u)+3}")
    cross_max(a, [(6 + u, 10 + u) for u in range(4)])
    for j in range(2):
        for r in range(4): a(f"v_sub_f32 v{NM(j)+r}, 0, v{6+j}")
        a(f"v_sub_f32 v{V_M2+j}, 0, v{8+j}")
    cm = [f"v_min_f32 v{CM(j,k4)+r}, v{NM(j)}, v{CM(j,k4)+r}" for j in range(2) for k4 in range(4) for r in range(4)]
    a(cm[:8])
    o += [Op(x.strip()) for x in a.lines] + [W(l="*")]
    res = []
    for cf in (lambda j, kt: NM(j), C_D0):
        G = Gaps()
        for x in qk(0, 0, cf): G.mfma(x)
        put_dma(G, "V", (1, 4, 7, 10))
        e, c = exps(0, 0), cvts(0, 0)
        for x, g in zip(e[:5], (9, 11, 12, 13, 14)): G.put(g, x)
        tl = Tail(G)
        rest = list(cm[8:])
        for g in (0, 2, 3, 5, 6, 8):
            G.put(g, rest.pop(0)); G.put(g, rest.pop(0))
        kr = kreads(1)
        res.append(G.ops() + kr + [Op(x) for x in e[5:] + rest + c] + [Op(f"s_waitcnt vmcnt({b1}) lgkmcnt(0)"), Op("s_barrier")])
    return o, res[0], res[1]

def ctx_addr_ops():
    t = S_TA + 1
    o = [f"s_lshl_b32 s{t}, s{S_QB}, 3", f"s_add_u32 s{S_CTX}, s{t}, s{S_WAVE}", f"s_sub_u32 s{S_CTX+1}, s{t}, s{S_WAVE}",
         f"s_add_u32 s{S_CTX+1}, s{S_CTX+1}, 7", f"s_lshl_b32 s{t}, s{S_H}, 12", f"s_add_u32 s{t}, s{t}, {WS_CTX}"]
    for j in range(2): o += [f"s_lshl_b32 s{S_CTX+j}, s{S_CTX+j}, 17", f"s_add_u32 s{S_CTX+j}, s{S_CTX+j}, s{t}"]
    return o + [f"s_mov_b32 s{S_SL}, 0"]

def cm_update():
    return [f"v_mov_b32 v6, {f2h(2.0**-60)}", "v_mov_b32 v7, v6"] + \
           [f"v_pk_fma_f32 v[{r}:{r+1}], v[{r}:{r+1}], v[6:7], v[{NM(j)}:{NM(j)+1}]" for j in range(2) for r in range(CM(j, 0), CM(j, 0) + 16, 2)]

def epilogue(sfx):
    o = [Op(f"norm{sfx}:")]
    a = lambda x: o.append(mk(x))
    a(f"v_rcp_f32 v6, v{L_(0)}"); a("v_mov_b32 v10, 0"); a("v_mov_b32 v7, v6")
    for j in range(2):
        for kp in range(4):
            ra, rb = O_(2*kp, j), O_(2*kp + 1, j)
            for r in (ra, ra + 2, rb, rb + 2): a(f"v_pk_mul_f32 v[{r}:{r+1}], v[{r}:{r+1}], v[{6+2*j}:{7+2*j}]")
            for x in cvt4(ra, ra, rb): a(x)
            o.append(Op(f"buffer_store_dwordx4 v[{ra}:{ra+3}], v{V_L16}, {SR(SRD_WS)}, s{S_CTX+j} offen offset:{kp*1024}{SC}", tag="ctxst"))
            a(f"v_pk_maximum3_f16 v10, v10, v{ra}, v{ra+1}")
            a(f"v_pk_maximum3_f16 v10, v10, v{ra+2}, v{ra+3}")
            if j == 0 and kp == 2: a(f"v_rcp_f32 v8, v{L_(1)}"); a(f"v_min_f32 v12, v{L_(0)}, v{L_(1)}")
            if j == 0 and kp == 3: a("v_mov_b32 v9, v8"); a(f"v_maximum3_f32 v13, v{L_(0)}, v{L_(1)}, v{L_(1)}")
            if j == 1 and kp == 0: a(f"v_cmp_gt_f32 vcc, {f2h(2.0**-64)}, v12")
            if j == 1 and kp == 1: a(f"s_mov_b64 s[{S_TA}:{S_TA+1}], vcc"); a(f"v_cmp_nge_f32 vcc, {f2h(2.0**24)}, v13")
            if j == 1 and kp == 2: a(f"s_or_b64 s[{S_TA}:{S_TA+1}], s[{S_TA}:{S_TA+1}], vcc")
    a("v_lshrrev_b32 v11, 16, v10")
    a("v_cmp_u_f16 vcc, v10, v11")
    a(f"s_or_b64 s[{S_TA}:{S_TA+1}], s[{S_TA}:{S_TA+1}], vcc")
    a(f"s_cbranch_scc1 redo{sfx}")
    a(f"done{sfx}:")
    return o

def slow_path(a):
    SO, SN = S_SL + 1, S_SL + 2
    a.label("redo2")
    a(f"s_cmp_lg_u32 s{S_SL}, 0")
    a("s_cbranch_scc1 done2")
    for r in range(0, 32, 2): a(f"v_mov_b64 v[{176+r}:{177+r}], v[{208+r}:{209+r}]")
    a("s_branch slow")
    a.label("redo1")
    a(f"s_cmp_lg_u32 s{S_SL}, 0")
    a("s_cbranch_scc1 done1")
    a.label("slow")
    a(f"s_mov_b32 s{S_SL}, 1")
    a(f"s_lshl_b32 s{SO}, s{S_H}, 20")
    a(f"s_lshl_b32 s{SN}, s{S_QB}, 2")
    a(f"s_add_u32 s{SN}, s{SN}, 4")
    a(f"s_lshl_b32 s{S_TA}, s{S_QB}, 7")
    a(f"v_cvt_f32_u32 v6, s{S_TA}")
    a(f"v_mul_f32 v6, {f2h(BIG)}, v6")
    for j in range(2):
        a(f"v_add_f32 v{10+j}, v{V_TB+j}, v6")
        a(f"v_mov_b32 v{12+j}, {f2h(-2.0**126)}")
    for r in range(16, 88): a(f"v_mov_b32 v{r}, 0")
    a.label("slow_loop")
    def loads(off):
        a(f"s_add_u32 s{S_TA}, s{SO}, {off}")
        a(f"s_add_u32 s{S_TA+1}, s{SO}, {off + 4096}")
        for i in range(8):
            a(f"buffer_load_dwordx4 {R(XB+4*i,4)}, v{V_L16}, {SR(SRD_WS)}, s{S_TA + (i >> 2)} offen offset:{(i&3)*1024}{SC}")
    loads(WS_KV)
    a("s_waitcnt vmcnt(0)")
    a(qk(0, 0, lambda j, kt: "0", ((0, 0, XB), (1, 1, XB))))
    a("s_nop 7")
    loads(WS_KV + 16384)
    for j in range(2):
        for kt in range(2):
            for r in range(4):
                a(f"v_subrev_f32 v6, {f2h((16*kt+r)*BIG)}, v{10+j}")
                a(f"v_min_f32 v6, 0, v6")
                a(f"v_add_f32 v{S_(0,kt,j)+r}, v{S_(0,kt,j)+r}, v6")
        a(f"v_subrev_f32 v{10+j}, {f2h(32*BIG)}, v{10+j}")
    for j in range(2):
        s0, s1 = S_(0, 0, j), S_(0, 1, j)
        a(f"v_max3_f32 v{6+j}, v{s0}, v{s0+1}, v{s0+2}")
        a(f"v_max3_f32 v{6+j}, v{6+j}, v{s0+3}, v{s1}")
        a(f"v_max3_f32 v{6+j}, v{6+j}, v{s1+1}, v{s1+2}")
        a(f"v_max3_f32 v{6+j}, v{6+j}, v{s1+3}, v{12+j}")
    cross_max(a, [(6, 8), (7, 9)])
    for j in range(2):
        a(f"v_sub_f32 v{8+j}, v{12+j}, v{6+j}")
        a(f"v_mov_b32 v{12+j}, v{6+j}")
        a(f"v_exp_f32 v{8+j}, v{8+j}")
        for kt in range(2):
            for r in range(4): a(f"v_sub_f32 v{S_(0,kt,j)+r}, v{S_(0,kt,j)+r}, v{6+j}")
        a(exps(0, j)); a("s_nop 0"); a(cvts(0, j))
        for dt in range(8):
            for r in range(4): a(f"v_mul_f32 v{O_(dt,j)+r}, v{O_(dt,j)+r}, v{8+j}")
        for r in range(4): a(f"v_mul_f32 v{L_(j)+r}, v{L_(j)+r}, v{8+j}")
    a("s_waitcnt vmcnt(0)")
    a("s_nop 0")
    for j in range(2):
        a(mfma(L_(j), ONES, P_(0, j)))
        for dt in range(8): a(mfma(O_(dt, j), XB + 4*dt, P_(0, j)))
    a(f"s_bitcmp1_b32 s{SO}, 13")
    a(f"s_mov_b32 s{S_TA}, 8192")
    a(f"s_cmov_b32 s{S_TA}, 24576")
    a(f"s_add_u32 s{SO}, s{SO}, s{S_TA}")
    a(f"s_sub_u32 s{SN}, s{SN}, 1")
    a(f"s_cmp_lg_u32 s{SN}, 0")
    a("s_nop 7")
    a("s_cbranch_scc1 slow_loop")
    a(f"s_cmp_eq_u32 s{S_BLK}, 0")
    a("s_cbranch_scc1 norm1")
    a("s_branch norm2")
```

```python
from asmgen import *
from gsched import *
import struct, math

MB = 1 << 20
WS_KV = 0
WS_CTX = 32 * MB
WS_H = 48 * MB
WS_WT = 56 * MB
WS_G = 64 * MB
WS_PART = 65 * MB
WS_FC = 80 * MB
WS_FP = 80 * MB + 65536
WS_FK = 80 * MB + 131072
WS_FQ = 80 * MB + 196608
WS_EP = 80 * MB + 262144
WS_STAMP = 250 * MB
WS_BYTES = 268435456
SZ_X = 2048*640*2; SZ_C = 2048*512*2; SZ_WQ = 640*4096*2; SZ_WU = 512*4096*2; SZ_WO = 4096*640*2
SZ_W1 = 640*1728*2; SZ_W2 = 1728*640*2; SZ_OUT = 2048*640*2; SZ_WT = 182*40*1024
OOB = 0x20000000
SC = " sc1"

S_WAVE = 3; S_X = 4; S_HH = 5; S_I = 6; S_H = 7
SRD_WS = 8; SRD_C = 12; SRD_WK = 16; SRD_WV = 20; SRD_X = 24; SRD_WQ = 28; SRD_W1 = 32; SRD_WO = 36; SRD_W2 = 40
SRD_B1 = 44; SRD_B2 = 48; SRD_OUT = 52; SRD_DBG = 56
def SR(d): return f"s[{d}:{d+3}]"
V_L16 = 1

def f2h(x): return "0x%08x" % struct.unpack("<I", struct.pack("<f", x))[0]

def mfma(d, a_, b_, c=None):
    cs = R(d, 4) if c is None else (c if isinstance(c, str) else R(c, 4))
    return f"v_mfma_f32_16x16x32_bf16 {R(d,4)}, {R(a_,4)}, {R(b_,4)}, {cs}"

def block(lines, kind="salu", tag=None):
    return Op("\n".join(lines), kind, tag=tag)

class Stamps:
    def __init__(self, enabled, areg=255):
        self.enabled = enabled; self.n = 0; self.names = []; self.areg = areg; self.only = None
    def stamp(self, a, name):
        if not self.enabled or (self.only and name not in self.only): return
        a("s_waitcnt lgkmcnt(0)")
        a("s_memtime s[0:1]")
        a("s_memrealtime vcc")
        a("s_waitcnt lgkmcnt(0)")
        a(f"v_accvgpr_read_b32 v15, a{self.areg}")
        a(f"v_writelane_b32 v15, s0, {2*self.n}")
        a(f"v_writelane_b32 v15, vcc_lo, {2*self.n+1}")
        a(f"v_accvgpr_write_b32 a{self.areg}, v15")
        self.names.append(name); self.n += 1
    def early(self, a):
        if self.enabled: a("s_memtime s[96:97]"); a("s_memrealtime vcc")
    def early_save(self, a):
        if not self.enabled: return
        a("v_mov_b32 v15, 0"); a(f"v_writelane_b32 v15, s96, 0"); a(f"v_writelane_b32 v15, vcc_lo, 1"); a(f"v_accvgpr_write_b32 a{self.areg}, v15")
        self.names.append("entry"); self.n += 1
    def put(self, G, gap, name):
        if not self.enabled: return
        t = Asm(); self.stamp(t, name)
        if t.lines: G.put(gap, Op("\n".join(x.strip() for x in t.lines), "valu"))
    def dump(self, a, kidx=0):
        if not self.enabled: return
        a(f"v_accvgpr_read_b32 v15, a{self.areg}")
        a("v_mbcnt_lo_u32_b32 v14, -1, 0")
        a("v_mbcnt_hi_u32_b32 v14, -1, v14")
        a("v_lshlrev_b32 v14, 2, v14")
        a(f"s_lshl_b32 s98, s2, 2")
        a(f"s_add_u32 s98, s98, s{S_WAVE}")
        a("s_lshl_b32 s98, s98, 8")
        a(f"s_add_u32 s98, s98, {WS_STAMP + kidx*(1<<18)}")
        a(f"buffer_store_dword v15, v14, {SR(SRD_WS)}, s98 offen")
        a("s_waitcnt vmcnt(0)")

class Spins:
    def __init__(self, dbg=False): self.blocks = []; self.n = 0; self.dbg = dbg
    def check(self, load, test, cnt=94, sleep=1):
        k = self.n; self.n += 1
        rec = ["v_accvgpr_read_b32 v15, a255", "s_nop 0", f"v_writelane_b32 v15, s{cnt}, {60+k}", "v_accvgpr_write_b32 a255, v15"] if self.dbg else []
        self.blocks.append([f"spin{k}:", f"s_mov_b32 s{cnt}, 1", f"spin{k}_l:", f"s_sleep {sleep}", load, "s_waitcnt vmcnt(0)"] + test +
                           [f"s_cbranch_scc1 spin{k}_x", f"s_add_u32 s{cnt}, s{cnt}, 1", f"s_cmp_lt_u32 s{cnt}, 0x20000",
                            f"s_cbranch_scc1 spin{k}_l", f"spin{k}_x:"] + rec + [f"s_branch spin{k}_ok"])
        return test + [f"s_cbranch_scc0 spin{k}", f"spin{k}_ok:"]
    def emit(self, a):
        for b in self.blocks: a(b)

def place_scalars(G, ops, lo, hi):
    g = lo
    for o in ops:
        while g <= hi and G.has_scalar(g): g += 1
        if g > hi: G.put(hi, o)
        else: G.put(g, o); g += 1
    return g

def place_vm(G, lo, ld, m0=None, so=None, prev=-1):
    g = max(lo, prev + (2 if m0 else 1))
    while G.g[g] or (m0 and G.has_scalar(g - 1)): g += 1
    if m0: G.put(g - 1, m0)
    if so: G.put(g, so)
    G.put(g, ld)
    return g
```

```python
from gen_att import *

NST = 23
F_ST = 7
WIN = 19
V_RA = (1, 253, 254)
V_G = 248
V_GA = 250; V_FA = 251; V_FPOLL = 14
V_WM = 242
def facc(part, nt, j): return 88 + part*80 + (nt*2 + j)*4
OWN = 15
AF_DEPTH = 12
def AF(s, j, ks): return 256 + (100 + (s % 6)*16 if s % 12 < 6 else (s % 6)*16) + (j*2 + ks)*4
def WF(gi, ks): return 256 + 196 + (gi % 5)*8 + ks*4
def slot(s): return (7, 2, 5, 6, 0, 1, 3, 4)[s % 8]
SRD_WT = 24
S_KQ = 28; S_FQB = 29; S_WM = 30; S_WDD = 31; S_PART = 33; S_AH = 34; S_AC = 44; S_AH6 = 46; S_FG = 56; S_FRT = 58; S_FCP = 98; S_FWM = 99
S_WD = 70
S_FT = 76

def fin_setup():
    a = Asm(); t = S_FT
    a(f"s_add_u32 s{SRD_WT}, s{SRD_WS}, {WS_WT - 4096}")
    a(f"s_addc_u32 s{SRD_WT+1}, s{SRD_WS+1}, 0")
    a(srd_tail(SRD_WT, SZ_WT + 4096))
    a(f"s_lshr_b32 s{S_KQ}, s{S_X}, 1")
    a(f"s_sub_u32 s{t}, 15, s{S_I}")
    a(f"s_bitcmp{LATE_PAR[0]}_b32 s{S_X}, 0")
    a(f"s_cselect_b32 s{S_FQB}, s{t}, s{S_I}")
    a(f"s_cselect_b32 s{S_FRT}, s{S_RT+2}, s{S_RT}")
    a(f"s_cselect_b32 s{S_FRT+1}, s{S_RT+3}, s{S_RT+1}")
    a(f"s_mul_i32 s{S_WM}, s{S_WAVE}, 5120")
    a(f"s_mul_i32 s{t}, s{S_KQ}, 14")
    a(f"s_lshr_b32 s{t+1}, s{S_WAVE}, 1")
    a(f"s_add_u32 s{t}, s{t}, s{t+1}")
    a(f"s_lshl_b32 s{t}, s{t}, 2")
    a(f"s_add_u32 s{t}, s{t}, s{S_HH}")
    a(f"s_mul_i32 s{t}, s{t}, 10240")
    a(f"s_add_u32 s{t}, s{t}, {128*40960 + 4096}")
    a(f"s_mul_i32 s{S_WDD}, s{S_KQ}, {18*40960}")
    a(f"s_sub_u32 s{S_WDD}, s{S_WDD}, {128*40960}")
    a(f"s_and_b32 s{t+1}, s{S_WAVE}, 1")
    a(f"s_mul_i32 s{t+1}, s{t+1}, 5")
    for fl in range(5):
        d = S_WD + fl
        a(f"s_add_u32 s{t+2}, s{t+1}, {fl}")
        a(f"s_lshl1_add_u32 s{d}, s{S_KQ}, s{t+2}")
        a(f"s_and_b32 s{d}, s{d}, 7")
        if fl < 2:
            a(f"s_cmp_lt_u32 s{t+2}, 2")
            a(f"s_cmov_b32 s{d}, {8 + fl}")
        a(f"s_lshl_b32 s{d}, s{d}, 10")
        a(f"s_add_u32 s{d}, s{d}, s{t}")
    a(f"s_mul_i32 s{t}, s{S_KQ}, {14*1024}")
    a(f"s_add_u32 s{t}, s{t}, {WS_H}")
    a(f"s_lshl_b32 s{t+1}, s{S_KQ}, 15")
    a(f"s_add_u32 s{t+1}, s{t+1}, {WS_CTX}")
    for j in range(2):
        a(f"s_mul_i32 s{S_AH+j}, s{S_FRT+j}, {54*1024}")
        a(f"s_add_u32 s{S_AH+j}, s{S_AH+j}, s{t}")
        a(f"s_lshl_b32 s{S_AC+j}, s{S_FRT+j}, 17")
        a(f"s_add_u32 s{S_AC+j}, s{S_AC+j}, s{t+1}")
        a(f"s_lshl_b32 s{S_FG+j}, s{S_FRT+j}, 6")
        a(f"s_add_u32 s{S_FG+j}, s{S_FG+j}, {WS_G}")
    a(f"s_cmp_eq_u32 s{S_KQ}, 3")
    a(f"s_cselect_b32 s{S_AH6}, {OOB}, s{S_AH}")
    a(f"s_cselect_b32 s{S_AH6+1}, {OOB}, s{S_AH+1}")
    a(f"s_lshl2_add_u32 s{t+1}, s{S_FQB}, s{S_WAVE}")
    a(f"s_lshl2_add_u32 s{t+1}, s{t+1}, s{S_KQ}")
    a(f"s_lshl_b32 s{t+1}, s{t+1}, 5")
    a(f"s_add_u32 s{S_FCP}, s{t+1}, {WS_FC}")
    a(f"s_lshl2_add_u32 s{t}, s{S_FQB}, s{S_HH}")
    a(f"s_lshl2_add_u32 s{t}, s{t}, s{S_WAVE}")
    a(f"s_mul_i32 s{t}, s{t}, 40960")
    a(f"s_add_u32 s{S_PART}, s{t}, {WS_PART}")
    v = [f"v_and_b32 v{V_GA}, 15, v0", f"v_lshlrev_b32 v{V_GA}, 2, v{V_GA}", f"v_and_b32 v{V_FA}, 28, v{V_GA}",
         f"v_add_u32 v{V_RA[1]}, 61440, v{V_L16}", f"v_add_u32 v{V_RA[2]}, 122880, v{V_L16}"]
    return [x.strip() for x in a.lines], v

S_PS = 12
S_PL = 16
S_P4 = 19
S_OO = 20
S_B2 = 60
S_FPL = 62
V_O = 3; V_O4 = 4; V_P4 = 5; V_PF = 6; V_16G = 7; V_1G = 8
V_B2 = 16

PPOLL = f"buffer_load_dword v{V_FPOLL}, v{V_PF}, {SR(SRD_WS)}, s{S_FPL} offen{SC}"

class Fin:
    def __init__(self):
        self.G = Gaps()
    def w_dma(self, s):
        k = s if s < F_ST else s - F_ST
        out = []
        for f in range(5):
            m0 = f"s_add_u32 m0, s{S_WM}, {slot(s)*20480 + f*1024}" if f in (0, 4) else None
            so = f"s_add_u32 s{S_FT}, s{S_WD+f}, {(k*81920 - (f & 3)*1024) & 0xffffffff}"
            if s == F_ST: so = Op(f"s_add_u32 s{S_WD+f}, s{S_WD+f}, s{S_WDD}\n" + so, "salu")
            out.append((m0, so, Op(f"buffer_load_dwordx4 v{V_L16}, {SR(SRD_WT)}, s{S_FT} offen offset:{(f & 3)*1024}{SC} lds", tag=f"fW{s}")))
        return out
    def a_loads(self, s):
        base, k = ((S_AH6 if s == F_ST - 1 else S_AH), s) if s < F_ST else (S_AC, s - F_ST)
        out = []
        for j in range(2):
            for ks in range(2):
                so = f"s_add_u32 s{S_FT+1}, s{base+j}, {k*2048}" if ks == 0 else None
                out.append((None, so, Op(f"buffer_load_dwordx4 {R(AF(s,j,ks),4)}, v{V_L16}, {SR(SRD_WS)}, s{S_FT+1} offen offset:{ks*1024}{SC}", tag=f"fA{s}")))
        return out
    def g_loads(self):
        return [(None, None, Op(f"buffer_load_dword v{V_G+j}, v{V_GA}, {SR(SRD_WS)}, s{S_FG+j} offen{SC}", tag="g")) for j in range(2)]
    seq = [(s, nt) for s in range(WIN) for nt in range(10 if s < OWN else 8)] + [(s, nt) for nt in range(8) for s in range(WIN, NST)] \
        + [(s, nt) for nt in (8, 9) for s in range(OWN, NST)]
    def w_reads(self, gi):
        s, nt = self.seq[gi]
        sl = slot(s)
        return [Op(f"ds_read_b128 {R(WF(gi,ks),4)}, v{V_RA[sl//3]} offset:{(sl % 3)*20480 + ks*10240 + nt*1024}", tag=f"t{gi}") for ks in range(2)]
    def pre_ops(self):
        return [W(v=["fW0"]), Op("s_barrier")] + [o for gi in range(4) for o in self.w_reads(gi)]
    def build(self, spins, flag_gap=42, poll_stage=5, spacing=4, ahead=7):
        G = self.G; seq = self.seq; ng = len(seq)
        for gi, (s, nt) in enumerate(seq):
            part = 0 if s < F_ST else 1
            for j in range(2):
                for ks in range(2):
                    G.mfma(mfma(facc(part, nt, j), WF(gi, ks), AF(s, j, ks), "0" if (s in (0, F_ST) and ks == 0) else None))
        G.put(-1, W(v=["fA0"], l=["t0"]))
        a_need = {}; w_need = {}
        for gi in range(ng):
            if gi + 4 < ng:
                for o in self.w_reads(gi + 4): G.put(gi*4, o)
            if gi + 1 < ng:
                v = []
                sn, ntn = seq[gi + 1]
                if ntn == 0: v.append(f"fA{sn}"); a_need[sn] = gi*4 + 3
                nb = gi + 5
                if nb < ng and seq[nb][1] == 0 and seq[nb][0] % 2 == 1 and seq[nb][0] <= WIN:
                    opens = range(seq[nb][0], NST if seq[nb][0] == WIN else seq[nb][0] + 2)
                    for s in opens: w_need[s] = gi*4 + 3
                    G.put(gi*4 + 3, W(v=v + [f"fW{s}" for s in opens], l=[f"t{gi+1}"])); G.put(gi*4 + 3, "s_barrier")
                else:
                    G.put(gi*4 + 3, W(v=v or None, l=[f"t{gi+1}"]))
        G.put(flag_gap, W(v=["ctxst"]))
        G.put(flag_gap, Op(flag_set(V_EP, S_FC + 1), tag="fl"))
        pl = f"buffer_load_dword v{V_FPOLL}, v{V_FA}, {SR(SRD_WS)}, s{S_FCP} offen{SC}"
        pg = poll_stage*40 + 2
        G.put(pg - 40, Op(pl, tag="cpoll"))
        G.put(pg, W(v=["cpoll"])); G.put(pg, block(spins.check(pl, flag_test(V_FPOLL)), "valu"))
        grp = []
        for s in range(6, NST):
            prevs = s - 8
            early = 0 if prevs < 0 else w_need[(prevs + 2) // 2 * 2 + 1] + 1
            grp.append([w_need[s] + s*0.01, early, self.w_dma(s), "W"])
            early = max(0, (s - ahead)*40, pg + 1 if s >= F_ST else 0)
            grp.append([a_need[s], early, self.a_loads(s), "A"])
        prev = -spacing + 1
        while grp:
            t = prev + spacing
            ready = [x for x in grp if x[1] <= t]
            x = min(ready, key=lambda z: z[0]) if ready else min(grp, key=lambda z: (z[1], z[0]))
            grp.remove(x)
            for m0, so, ld in x[2]:
                prev = place_vm(G, max(prev + spacing, x[1], 1), ld, m0, so, prev)
            if x[0] - prev < 40: print("   late load", ld.tag, "issued", prev, "needed", x[0])
        self.seam_prep()
        return self
    def seam_prep(self):
        G = self.G; t = S_FT + 2
        sc = [f"s_mul_i32 s{t}, s{S_KQ}, 10240", f"s_add_u32 s{t}, s{t}, s{S_PART}", f"s_add_u32 s{S_PS}, s{t}, 8192",
              f"s_lshl_b32 s{S_P4}, s{S_KQ}, 11", f"s_add_u32 s{S_P4}, s{S_P4}, s{S_PART}"]
        for k in (1, 2, 3):
            sc += [f"s_add_u32 s{t+1}, s{S_KQ}, {k}", f"s_and_b32 s{t+1}, s{t+1}, 3", f"s_mul_i32 s{S_PL+k-1}, s{t+1}, 10240",
                   f"s_add_u32 s{S_PL+k-1}, s{S_PL+k-1}, s{S_P4}", f"s_lshl_b32 s{t+1}, s{t+1}, 11", f"s_add_u32 s{S_PS+k}, s{t+1}, s{t}"]
        sc += [f"s_lshr_b32 s{t}, s{S_KQ}, 1", f"s_lshl_b32 s{t}, s{t}, 10", f"s_and_b32 s{t+1}, s{S_KQ}, 1", f"s_lshl_b32 s{S_P4}, s{t+1}, 7",
               f"s_add_u32 s{S_P4}, s{S_P4}, s{t}", f"s_add_u32 s{S_P4}, s{S_P4}, s{S_PART}", f"s_add_u32 s{S_P4}, s{S_P4}, 8192",
               f"s_mul_i32 s{S_B2+1}, s{S_HH}, 320", f"s_lshl_b32 s{S_B2}, s{S_KQ}, 6", f"s_add_u32 s{S_B2}, s{S_B2}, s{S_B2+1}",
               f"s_add_u32 s{S_B2+1}, s{S_B2+1}, 256",
               f"s_cmp_ge_u32 s{S_KQ}, 2", f"s_cselect_b32 s{t}, s{S_FRT+1}, s{S_FRT}", f"s_lshl1_add_u32 s{t}, s{t}, s{t+1}",
               f"s_mul_i32 s{t}, s{t}, {8*1280}", f"s_add_u32 s{S_OO+2}, s{t}, s{S_B2+1}"]
        for j in range(2): sc += [f"s_mul_i32 s{S_OO+j}, s{S_FRT+j}, {16*1280}", f"s_add_u32 s{S_OO+j}, s{S_OO+j}, s{S_B2}"]
        sc += [f"s_cmp_lg_u32 s{S_KQ}, 0", f"s_cmov_b32 s{S_B2+1}, {OOB}", f"s_and_b32 s{S_FPL}, s{S_FP}, 0xffffff80"]
        g = place_scalars(G, glue(sc), 60, 300)
        T = Tail(G)
        for x in ["v_lshrrev_b32 v10, 4, v0", f"v_lshlrev_b32 v{V_16G}, 4, v10", f"v_mul_u32_u24 v{V_O}, 320, v{V_GA}", f"v_add_u32 v{V_O}, v{V_O}, v{V_16G}",
                  f"v_and_b32 v10, 3, v0", "v_max_u32 v10, 1, v10", f"v_add_lshl_u32 v10, v10, s{S_KQ}, 2", f"v_and_b32 v{V_PF}, 12, v10",
                  "v_and_b32 v10, 7, v0", "v_bfe_u32 v11, v0, 3, 2", f"v_lshlrev_b32 v{V_P4}, 4, v10", f"v_lshl_add_u32 v{V_P4}, v11, 8, v{V_P4}",
                  f"v_mul_u32_u24 v{V_O4}, 1280, v10", f"v_lshl_add_u32 v{V_O4}, v11, 4, v{V_O4}", "v_lshrrev_b32 v10, 5, v0",
                  f"v_lshl_add_u32 v{V_O4}, v10, 29, v{V_O4}"]: T.add(x, 60)
        g = max(g, T.cur) + 2
        for k in range(2):
            g = place_vm(G, g + 1, Op(f"buffer_load_dwordx4 v[{V_B2+4*k}:{V_B2+4*k+3}], v{V_16G}, {SR(SRD_B2)}, s{S_B2+k} offen", tag="b2"))
        g0 = max(g + 100, (F_ST + 1)*40)
        while G.has_scalar(g0): g0 += 1
        G.put(g0, W(v=["b2", "g"]))
        ops = [f"v_sub_f32 v{V_1G+j}, 1.0, v{V_G+j}" for j in range(2)]
        for q in range(8): ops += [f"v_lshlrev_b32 v{24+2*q}, 16, v{V_B2+q}", f"v_and_b32 v{25+2*q}, 0xffff0000, v{V_B2+q}"]
        for k, tp in ((0, 4), (1, 0)):
            for j in range(2):
                for q in range(8):
                    r = facc(0, 2*tp + (q >> 2), j) + (q & 3)
                    ops.append(f"v_add_f32 v{r}, v{r}, v{24+8*k+q}")
        ops += [f"v_mul_f32 v{facc(0,nt,j)+r}, v{facc(0,nt,j)+r}, v{V_1G+j}" for nt in range(10) for j in range(2) for r in range(4)]
        for x in ops: T.add(x, g0)
        w0 = self.seq.index((WIN, 0))*4
        assert T.cur < w0, T.cur
        for tp in range(4):
            end = w0 + (tp + 1)*32 - 1
            fma = lambda nt, j: [f"v_fma_f32 v{facc(1,nt,j)+r}, v{facc(1,nt,j)+r}, v{V_G+j}, v{facc(0,nt,j)+r}" for r in range(4)]
            cv = [cvt4(facc(1, 2*tp, j), facc(1, 2*tp, j), facc(1, 2*tp + 1, j)) for j in range(2)]
            for j in range(2):
                for x in fma(2*tp, j) + cv[j][:2]: T.add(x, end - 11)
            for j in range(2):
                for x in fma(2*tp + 1, j) + cv[j][2:]: T.add(x, end + 3 + j)
                ra = facc(1, 2*tp, j)
                g = place_vm(G, T.cur + 1, Op(f"buffer_store_dwordx4 v[{ra}:{ra+3}], v{V_L16}, {SR(SRD_WS)}, s{S_PS+tp} offen offset:{j*1024}{SC}", tag="pst"))
        assert not T.post
        print("   last partial store at gap", g, "of", len(G.m))
        for j in range(2):
            for x in [f"v_fma_f32 v{facc(1,8,j)+r}, v{facc(1,8,j)+r}, v{V_G+j}, v{facc(0,8,j)+r}" for r in range(4)]: T.add(x, len(G.m) - 24)
        t = S_FT
        place_scalars(G, glue([f"s_add_u32 s{t}, s2, s{S_WAVE}", f"s_mov_b32 s{t+1}, {WS_EP}", f"s_cmp_eq_u32 s{t}, 0", f"s_cselect_b32 s{t}, s{t+1}, {OOB}"]
                              + [f"s_add_u32 s{t+1+k}, s{S_P4}, {(k+1)*10240}" for k in range(3)]), w0, len(G.m) - 1)
        gf = len(G.m) - 3
        G.put(gf, W(v=["pst"])); G.put(gf, Op(flag_set(V_EP, S_FP), tag="fl"))
        G.put(gf + 1, Op(PPOLL, tag="ppoll"))

def fin_tail(a, spins):
    t = S_FT
    a("s_nop 7")
    for j in range(2):
        for hf in (0, 2):
            ra, rb = facc(1, 9, j) + hf, facc(0, 9, j) + hf
            a(f"v_pk_fma_f32 v[{ra}:{ra+1}], v[{ra}:{ra+1}], v[{V_G}:{V_G+1}], v[{rb}:{rb+1}] op_sel:[0,{j},0] op_sel_hi:[1,{j},1]")
    a("s_waitcnt vmcnt(0)")
    a(spins.check(PPOLL, flag_test(V_FPOLL)))
    for j in range(2):
        for k in range(3):
            r = 88 + (j*3 + k)*4
            a(f"buffer_load_dwordx4 v[{r}:{r+3}], v{V_L16}, {SR(SRD_WS)}, s{S_PL+k} offen offset:{j*1024}{SC}")
    for k in range(4):
        r = 112 + k*4
        a(f"buffer_load_dwordx4 v[{r}:{r+3}], v{V_P4}, {SR(SRD_WS)}, s{S_P4 if k == 0 else t+k} offen{SC}")
    a(flag_set(V_EP, t))
    def unpack(r, d):
        for q in range(4):
            a(f"v_lshlrev_b32 v{d+2*q}, 16, v{r+q}"); a(f"v_and_b32 v{d+2*q+1}, 0xffff0000, v{r+q}")
    for j in range(2):
        acc = [facc(1, 8, j), facc(1, 8, j) + 2, facc(1, 9, j), facc(1, 9, j) + 2]
        for k in range(3):
            a(f"s_waitcnt vmcnt({10 - j*3 - k + j})")
            unpack(88 + (j*3 + k)*4, 16)
            for q in range(4): a(f"v_pk_add_f32 v[{acc[q]}:{acc[q]+1}], v[{acc[q]}:{acc[q]+1}], v[{16+2*q}:{17+2*q}]")
        a(cvt4(acc[0], acc[0], acc[2]))
        a(f"buffer_store_dwordx4 v[{acc[0]}:{acc[0]+3}], v{V_O}, {SR(SRD_OUT)}, s{S_OO+j} offen")
    a("s_waitcnt vmcnt(3)")
    unpack(112, 24)
    for k in range(1, 4):
        unpack(112 + 4*k, 16)
        for q in range(4): a(f"v_pk_add_f32 v[{24+2*q}:{25+2*q}], v[{24+2*q}:{25+2*q}], v[{16+2*q}:{17+2*q}]")
    a(cvt4(24, 24, 28))
    a(f"buffer_store_dwordx4 v[24:27], v{V_O4}, {SR(SRD_OUT)}, s{S_OO+2} offen")
```

```python
from gen_common import *

W_BASE = 65536
V_AC = 2
V_AX = 4
V_W = 6; V_W1 = 7
V_AR = 8
V_T = 10
V_JD = 14
V_JW = 255
V_JT = 253
V_TMP = 16
A_ACT = 256 + 32
A_WF = 256 + 96
A_PARK = 256 + 128
S_ACTB = 60; S_WB = 61; S_ROWC = 62; S_ROWX = 66; S_COL = 70; S_W1OFF = 71; S_INC4 = 72; S_INC60 = 73; S_KV = 74; S_ST = 75
S_CK = 98
S_T0 = 76
S_RT = 80; S_FB = 84; S_AUX = 85; S_JS = 86; S_JD = 88; S_JL = 90; S_FC = 91; S_FP = 93
S_FQ = 95
S_EP = 97
S_FK = 96
SRD_W1P = 56
MIX = [1]
LATE_PAR = [1]
QSCALE = math.log2(math.e) / math.sqrt(128.0)
GK0 = 2.0 * math.sqrt(2.0 / math.pi) * math.log2(math.e)
GK1 = GK0 * 0.044715

def acc_qf(G, u):
    if G < 4: return 96 + (G*4 + u)*4
    dt = G - 4
    return (176 if dt % 2 == 0 else 32) + (u*4 + dt//2)*4
def acc_kv(G, u):
    if G < 12: return acc_qf(G, u)
    if G == 12: return 160 + u*4
    if G == 13: return 240 + u*4
    return 256 + (G - 14)*16 + u*4

def srd_tail(d, nbytes): return [f"s_mov_b32 s{d+2}, {nbytes}", f"s_mov_b32 s{d+3}, 0x20000"]

def entry(a, name, code_warm=True, stamps=None):
    kernel_begin(a, name)
    stamps.early(a)
    a("s_cmp_lt_u32 s2, 256")
    a(f"s_cbranch_scc1 L_go")
    a("s_endpgm")
    a.label("L_go")
    for d, off in ((SRD_C, 8), (SRD_WK, 24), (SRD_WV, 32), (SRD_WS, 112), (SRD_X, 0), (SRD_WQ, 16), (SRD_W1, 56), (SRD_WO, 40),
                   (SRD_W2, 72), (SRD_B1, 64), (SRD_B2, 80), (SRD_OUT, 96), (S_JS, 88)):
        a(f"s_load_dwordx2 s[{d}:{d+1}], s[0:1], {off}")
    if code_warm:
        a("s_getpc_b64 s[60:61]")
        a.label("L_pc")
        a("s_mov_b32 s62, L_code_end - L_pc")
        a("s_mov_b32 s63, 0x20000")
        a("s_lshr_b32 s64, s2, 3")
        a("s_lshl_b32 s64, s64, 12")
        a("v_lshlrev_b32 v1, 4, v0")
        a("buffer_load_dwordx4 a[248:251], v1, s[60:63], s64 offen")
    a("v_lshrrev_b32 v1, 6, v0")
    a("v_and_b32 v0, 63, v0")
    a(f"v_readfirstlane_b32 s{S_WAVE}, v1")
    a(f"s_and_b32 s{S_X}, s2, 7")
    a(f"s_bfe_u32 s{S_HH}, s2, 0x20003")
    a(f"s_lshr_b32 s{S_I}, s2, 5")
    a(f"s_lshl_b32 s{S_H}, s{S_X}, 2")
    a(f"s_add_u32 s{S_H}, s{S_H}, s{S_HH}")

def setup_first(a, ws_shift=0, coop=0):
    a("v_lshrrev_b32 v16, 3, v0")
    a("v_and_b32 v17, 7, v0")
    a("v_lshrrev_b32 v18, 4, v0")
    a("v_xor_b32 v19, v17, v18")
    a("v_xor_b32 v20, 4, v19")
    a("v_lshlrev_b32 v19, 4, v19")
    a("v_lshlrev_b32 v20, 4, v20")
    a(f"v_lshl_add_u32 v{V_AC}, v16, 10, v19")
    a(f"v_lshl_add_u32 v{V_AC+1}, v16, 10, v20")
    a(f"v_add_u32 v{V_AC+1}, {8*1024}, v{V_AC+1}")
    a("v_and_b32 v21, 3, v16")
    a("v_lshrrev_b32 v22, 2, v16")
    a("v_lshl_add_u32 v21, v22, 3, v21")
    a(f"s_lshl_b32 s{S_T0}, s{S_WAVE}, 4")
    a(f"v_add_u32 v21, s{S_T0}, v21")
    a("v_lshlrev_b32 v22, 1, v18")
    a("v_xor_b32 v24, v17, v22")
    a("v_lshlrev_b32 v22, 4, v24")
    a(f"v_lshl_add_u32 v{V_W}, v21, 13, v22")
    a(f"s_lshl_b32 s{S_ACTB}, s{S_WAVE}, 13")
    a(f"s_lshr_b32 s{S_T0}, s{S_WAVE}, 1")
    a(f"s_lshl_b32 s{S_T0}, s{S_T0}, 12")
    a(f"s_and_b32 s{S_T0+1}, s{S_WAVE}, 1")
    a(f"s_lshl_b32 s{S_T0+1}, s{S_T0+1}, 10")
    a(f"s_add_u32 s{S_WB}, s{S_T0}, s{S_T0+1}")
    a(f"s_add_u32 s{S_WB}, s{S_WB}, {W_BASE}")
    a(f"s_lshl_b32 s{S_COL}, s{S_H}, 8")
    for cg in range(4):
        a(f"s_add_u32 s{S_T0}, s{S_COL}, {256*cg*MIX[0]}")
        a(f"s_and_b32 s{S_T0}, s{S_T0}, 0x300")
        a(f"s_andn2_b32 s{S_CK+cg}, s{S_COL}, 0x300")
        a(f"s_or_b32 s{S_CK+cg}, s{S_CK+cg}, s{S_T0}")
    a(f"s_lshl_b32 s{S_T0}, s{S_I}, 2")
    a(f"s_add_u32 s{S_T0}, s{S_T0}, s{S_WAVE}")
    a(f"s_lshl_b32 s{S_ROWC}, s{S_T0}, 16")
    for u in range(1, 4): a(f"s_add_u32 s{S_ROWC+u}, s{S_ROWC}, {u*16*1024}")
    a(f"s_lshl_b32 s{S_T0+1}, s{S_H}, 5")
    a(f"s_add_u32 s{S_T0}, s{S_T0}, s{S_T0+1}")
    a(f"s_lshl_b32 s{S_KV}, s{S_T0}, 15")
    a(srd_tail(SRD_C, SZ_C) + srd_tail(SRD_WK, SZ_WU) + srd_tail(SRD_WV, SZ_WU) + srd_tail(SRD_WS, WS_BYTES - ws_shift))
    if coop:
        a("v_and_b32 v26, 7, v0")
        a("s_lshr_b32 s94, s2, 3")
        a(f"s_lshl2_add_u32 s94, s94, s{S_WAVE}")
        a("s_lshl_b32 s94, s94, 3")
        a(f"s_add_u32 s94, s94, s{S_X}")
        a("s_lshl_b32 s94, s94, 10")
        a("v_lshlrev_b32 v26, 7, v26")
        a("v_bfe_u32 v27, v0, 1, 4") if coop < 2 else a("v_lshrrev_b32 v27, 2, v0")
        a(f"v_and_b32 v28, {1 if coop < 2 else 3}, v0")
        a("v_lshlrev_b32 v28, 7, v28")
        a("v_lshl_add_u32 v27, v27, 10, v28")
        a(f"s_lshl_b32 s95, s{S_HH}, 14")
        a(f"s_add_u32 s95, s95, s{S_ROWC}")
    a("s_waitcnt lgkmcnt(0)")
    if coop:
        a(f"buffer_load_dword a252, v26, {SR(SRD_WK)}, s94 offen nt")
        a(f"buffer_load_dword a252, v27, {SR(SRD_C)}, s95 offen")
        a(f"buffer_load_dword a252, v26, {SR(SRD_WV)}, s94 offen nt")
    if ws_shift:
        a(f"s_add_u32 s{SRD_WS}, s{SRD_WS}, {ws_shift}")
        a(f"s_addc_u32 s{SRD_WS+1}, s{SRD_WS+1}, 0")

def setup_rest(a):
    t = S_T0
    a(f"s_add_u32 s0, s{SRD_WS}, {WS_EP}")
    a(f"s_addc_u32 s1, s{SRD_WS+1}, 0")
    a(f"s_load_dword s{S_EP}, s[0:1], 0")
    a(f"v_lshlrev_b32 v{V_L16}, 4, v0")
    a("v_mul_u32_u24 v23, 1280, v16")
    a(f"v_add_u32 v{V_AX}, v23, v19")
    a(f"v_add_u32 v{V_AX+1}, v23, v20")
    a(f"v_add_u32 v{V_AX+1}, {8*1280}, v{V_AX+1}")
    a("v_and_b32 v25, 1, v18")
    a("v_lshlrev_b32 v25, 2, v25")
    a("v_xor_b32 v25, v25, v17")
    a(f"v_lshl_add_u32 v{V_JD}, v25, 4, v23")
    a(f"s_lshl_b32 s{t}, s{S_I}, 3")
    a(f"s_add_u32 s{S_RT}, s{t}, s{S_WAVE}")
    a(f"s_sub_u32 s{S_RT+1}, s{t}, s{S_WAVE}")
    a(f"s_add_u32 s{S_RT+1}, s{S_RT+1}, 7")
    a(f"s_sub_u32 s{t}, 120, s{t}")
    a(f"s_add_u32 s{S_RT+2}, s{t}, s{S_WAVE}")
    a(f"s_sub_u32 s{S_RT+3}, s{t}, s{S_WAVE}")
    a(f"s_add_u32 s{S_RT+3}, s{S_RT+3}, 7")
    for u in range(4): a(f"s_mul_i32 s{S_ROWX+u}, s{S_RT+u}, {16*1280}")
    a(f"s_mul_i32 s{t}, s{S_I}, 5")
    a(f"s_sub_u32 s{t+1}, s{S_X}, s{t}")
    a(f"s_and_b32 s{t+1}, s{t+1}, 7")
    a(f"s_lshl_b32 s{S_FB}, s{S_HH}, 3")
    a(f"s_add_u32 s{S_FB}, s{S_FB}, s{S_X}")
    a(f"s_add_u32 s{t+2}, s{t+1}, 19")
    a(f"s_cmp_lt_u32 s{t+1}, 5")
    a(f"s_cselect_b32 s{S_AUX}, 1, 0")
    a(f"s_cmp_eq_u32 s{S_HH}, 3")
    a(f"s_cselect_b32 s{S_FB}, s{t+2}, s{S_FB}")
    a(f"s_cselect_b32 s{S_AUX}, s{S_AUX}, 0")
    a(f"s_lshl_b32 s{S_W1OFF}, s{S_FB}, 7")
    a("v_mul_u32_u24 v23, 3456, v21")
    a(f"v_add_u32 v{V_W1}, v23, v22")
    a("v_and_b32 v23, 1, v21")
    a("v_cmp_eq_u32 vcc, v23, v24")
    a("v_and_b32 v23, 0xfe, v21")
    a("v_lshlrev_b32 v23, 1, v23")
    a(f"v_mov_b32 v25, {OOB}")
    a("v_cndmask_b32 v23, v25, v23, vcc")
    a(f"s_mov_b64 s[{SRD_W1P}:{SRD_W1P+1}], s[{SRD_W1}:{SRD_W1+1}]")
    a(srd_tail(SRD_W1P, SZ_W1))
    a(f"s_mov_b32 s{SRD_W1+2}, {SZ_W1}")
    a(f"s_mov_b32 s{S_INC4}, {4*3456}")
    a(f"s_mov_b32 s{S_INC60}, {60*3456}")
    a(f"s_cmp_lg_u32 s{S_AUX}, 0")
    a("s_cselect_b64 vcc, -1, 0")
    a(f"s_cselect_b64 s[{SRD_W1}:{SRD_W1+1}], s[{S_JS}:{S_JS+1}], s[{SRD_W1}:{SRD_W1+1}]")
    a(f"s_cmov_b32 s{SRD_W1+2}, 1280")
    a(f"s_cmov_b32 s{S_INC4}, 8")
    a(f"s_cmov_b32 s{S_INC60}, 120")
    a(f"s_cmov_b32 s{S_W1OFF}, 0")
    a(f"s_mov_b32 s{SRD_W1+3}, 0x20000")
    a(f"v_cndmask_b32 v{V_W1}, v{V_W1}, v23, vcc")
    a(f"s_sub_u32 s{S_W1OFF}, s{S_W1OFF}, s{S_INC60}")
    a("v_and_b32 v21, 15, v0")
    a("v_lshrrev_b32 v22, 1, v21")
    a("v_xor_b32 v22, v22, v18")
    a("v_lshlrev_b32 v22, 4, v22")
    a("v_lshl_add_u32 v21, v21, 7, v22")
    a(f"v_add_u32 v{V_AR}, s{S_ACTB}, v21")
    a(f"v_xor_b32 v{V_AR+1}, 64, v{V_AR}")
    a("v_bfe_u32 v21, v0, 2, 3")
    a("v_lshrrev_b32 v22, 5, v0")
    a("v_lshlrev_b32 v22, 10, v22")
    a("v_lshl_add_u32 v22, v21, 7, v22")
    a("v_and_b32 v23, 1, v0")
    a("v_lshl_add_u32 v22, v23, 3, v22")
    a(f"v_add_u32 v22, {W_BASE}, v22")
    a("v_and_b32 v21, 6, v21")
    a("v_bfe_u32 v23, v0, 1, 1")
    a("v_or_b32 v21, v21, v23")
    for n in range(4):
        a(f"v_xor_b32 v23, {2*n}, v21")
        a(f"v_lshl_add_u32 v{V_T+n}, v23, 4, v22")
    a(srd_tail(SRD_X, SZ_X) + srd_tail(SRD_WQ, SZ_WQ) + srd_tail(SRD_WO, SZ_WO) + srd_tail(SRD_W2, SZ_W2) + srd_tail(SRD_B1, 3456)
      + srd_tail(SRD_B2, 1280) + srd_tail(SRD_OUT, SZ_OUT))
    a(f"s_lshl_b32 s{t}, s2, 2")
    a(f"s_add_u32 s{t}, s{t}, s{S_WAVE}")
    for jb in range(2):
        if jb: a(f"s_add_u32 s{t}, s{t}, 1024")
        a(f"s_mul_i32 s{t+1}, s{t}, 52429")
        a(f"s_lshr_b32 s{t+1}, s{t+1}, 19")
        a(f"s_mul_i32 s{t+2}, s{t+1}, {40960 - 1280}")
        a(f"s_lshl_b32 s{t+3}, s{t}, 7")
        a(f"s_add_u32 s{S_JS+jb}, s{t+2}, s{t+3}")
        a(f"s_lshl_b32 s{S_JD+jb}, s{t}, 12")
        a(f"s_add_u32 s{S_JD+jb}, s{S_JD+jb}, {WS_WT}")
    a(f"s_sub_u32 s{t+1}, s{S_JS+1}, {SZ_WO}")
    a(f"s_cmp_lt_u32 s{t}, 1280")
    a(f"s_cselect_b64 s[{SRD_W2}:{SRD_W2+1}], s[{SRD_WO}:{SRD_WO+1}], s[{SRD_W2}:{SRD_W2+1}]")
    a(f"s_cmov_b32 s{SRD_W2+2}, {SZ_WO}")
    a(f"s_cselect_b32 s{S_JS+1}, s{S_JS+1}, s{t+1}")
    a(f"s_cmp_ge_u32 s{t}, 1820")
    a(f"s_cmov_b32 s{S_JD+1}, {OOB}")
    a(f"s_lshl_b32 s{S_JL}, s{S_WAVE}, 13")
    a(f"s_add_u32 s{S_JL}, s{S_JL}, 131072")
    a(f"s_lshl_b32 s{t}, s{S_WAVE}, 5")
    a(f"s_add_u32 s{t}, s{t}, s{S_H}")
    a(f"s_lshl_b32 s{t}, s{t}, 2")
    a(f"s_add_u32 s{t}, s{t}, {WS_FC}")
    a(f"s_lshl_b32 s{t+1}, s{S_I}, 9")
    a(f"s_add_u32 s{S_FC}, s{t}, s{t+1}")
    a(f"s_sub_u32 s{S_FC+1}, s{t}, s{t+1}")
    a(f"s_add_u32 s{S_FC+1}, s{S_FC+1}, {15*512}")
    a(f"s_sub_u32 s{t}, 15, s{S_I}")
    a(f"s_bitcmp{LATE_PAR[0]}_b32 s{S_X}, 0")
    a(f"s_cselect_b32 s{t}, s{t}, s{S_I}")
    a(f"s_lshl_b32 s{t}, s{t}, 2")
    a(f"s_add_u32 s{t}, s{t}, s{S_HH}")
    a(f"s_lshl_b32 s{t}, s{t}, 2")
    a(f"s_add_u32 s{t}, s{t}, s{S_WAVE}")
    a(f"s_lshl_b32 s{t}, s{t}, 7")
    a(f"s_lshr_b32 s{t+1}, s{S_X}, 1")
    a(f"s_lshl_b32 s{t+1}, s{t+1}, 2")
    a(f"s_add_u32 s{t}, s{t}, s{t+1}")
    a(f"s_add_u32 s{S_FP}, s{t}, {WS_FP}")
    a(f"s_lshr_b32 s{S_FK}, s{S_KV}, 13")
    a(f"s_add_u32 s{S_FK}, s{S_FK}, {WS_FK}")
    a(f"s_lshl_b32 s{S_FQ}, s2, 2")
    a(f"s_add_u32 s{S_FQ}, s{S_FQ}, {WS_FQ}")
    a(f"s_cmp_eq_u32 s{S_WAVE}, 0")
    a(f"s_cselect_b32 s{S_FQ}, s{S_FQ}, {OOB}")
    a(f"s_lshl_b32 s{t}, s2, 2")
    a(f"s_add_u32 s{t}, s{t}, s{S_WAVE}")
    a("v_lshlrev_b32 v23, 7, v0")
    a(f"v_mov_b32 v25, {OOB}")
    a(f"s_mul_i32 s{t+1}, s{t}, {20*128}")
    a(f"s_mul_i32 s{t+2}, s{t}, {18*128}")
    a(f"s_lshl_b32 s{t+3}, s{t}, 11")
    a(f"v_add_u32 v29, s{t+3}, v23")
    a(f"v_add_u32 v26, s{t+1}, v23")
    a(f"v_add_u32 v27, s{t+2}, v23")
    a(f"s_lshr_b32 s{t}, s2, 3")
    a(f"s_lshl_b32 s{t}, s{t}, 2")
    a(f"s_add_u32 s{t}, s{t}, s{S_WAVE}")
    a(f"s_lshl_b32 s{t+2}, s{t}, 13")
    a(f"s_mul_i32 s{t}, s{t}, {5*8192}")
    a(f"s_lshl_b32 s{t+1}, s{S_X}, 10")
    a(f"s_add_u32 s{t+2}, s{t+2}, s{t+1}")
    a(f"v_add_u32 v30, s{t+2}, v23")
    a(f"s_add_u32 s{t}, s{t}, s{t+1}")
    a(f"v_add_u32 v28, s{t}, v23")
    for v, n in ((26, 10), (27, 9), (28, 8), (29, 16), (30, 8)):
        a(f"v_cmp_gt_u32 vcc, {n}, v0")
        a("s_nop 1")
        a(f"v_cndmask_b32 v{v}, v25, v{v}, vcc")
    a("s_waitcnt lgkmcnt(0)")
    a(f"s_mul_i32 s{S_EP}, s{S_EP}, 0x9e3779b5")
    a(f"s_add_u32 s{S_EP}, s{S_EP}, 0x7f4a7c15")
def warm_ops(nt=""):
    t = S_ST
    l = [(26, SRD_X, 0), (28, SRD_WQ, 0), (28, SRD_WQ, 8192), (27, SRD_W1P, 0), (28, SRD_WQ, 16384), (26, SRD_X, 1280), (28, SRD_WQ, 24576), (27, SRD_W1P, 1152), (28, SRD_WQ, 32768)]
    return [(f"s_mov_b32 s{t}, {so}", Op(f"buffer_load_dword a252, v{v}, {SR(d)}, s{t} offen{nt if v == 28 else ''}", tag="warm")) for v, d, so in l]
def warm_c(): return Op(f"buffer_load_dword a252, v29, {SR(SRD_C)}, 0 offen", tag="warm")
def warm_w(nt=""):
    return [(f"s_mov_b32 s{S_ST}, {q*128*8192}", Op(f"buffer_load_dword a252, v30, {SR(d)}, s{S_ST} offen{nt}", tag="warm")) for q in (1, 2, 3) for d in (SRD_WK, SRD_WV)]
_cw = [0]
def code_warm(G, g, label, vt, lines=2):
    k = _cw[0]; _cw[0] += 1
    g = place_scalars(G, ["s_lshr_b32 s0, s2, 3", f"s_lshl2_add_u32 s0, s0, s{S_WAVE}", f"s_mul_i32 s0, s0, {lines*128}"], g, len(G.m) - 1)
    G.put(g, f"v_min_u32 v{vt}, {lines-1}, v0"); G.put(g + 1, f"v_lshl_add_u32 v{vt}, v{vt}, 7, s0")
    G.put(g + 2, block(["s_getpc_b64 s[0:1]", f"L_cw{k}:", f"s_add_u32 s0, s0, {label} - L_cw{k}", "s_addc_u32 s1, s1, 0"]))
    G.put(g + 3, Op(f"global_load_dword a252, v{vt}, s[0:1]", tag="cw"))
def flag_set(v, s): return f"buffer_store_dword v{v}, off, {SR(SRD_WS)}, s{s}{SC}"
def flag_test(v, n=1):
    o = []
    for i in range(1, n): o += [f"v_xor_b32 v{v+i}, s{S_EP}, v{v+i}"]
    o += [f"v_xor_b32 v{v}, s{S_EP}, v{v}"]
    if n == 2: o += [f"v_or_b32 v{v}, v{v}, v{v+1}"]
    if n == 4: o += [f"v_or3_b32 v{v}, v{v}, v{v+1}, v{v+2}", f"v_or_b32 v{v}, v{v}, v{v+3}"]
    return o + [f"v_cmp_eq_u32 vcc, 0, v{v}", "s_cmp_eq_u64 vcc, -1"]

NKV = 8; NQF = 10; NS = NKV + NQF
class Proj:
    def __init__(self, nt_kv=" nt", nt_q="", nt_c="", emajor=1, fast=0, dense=4, jit=None):
        self.G = Gaps(); self.tmp = 0; self.gap0 = []; self.nt_kv = nt_kv; self.nt_q = nt_q; self.nt_c = nt_c; self.emajor = emajor; self.fast = fast; self.dense = dense; self.jit = jit
    def NT(self, s): return 16 if s < NKV else 12
    def stmp(self):
        self.tmp = (self.tmp + 1) % 4
        return S_T0 + self.tmp
    def w_dma(self, s):
        out = []
        kv = s < NKV; k = s if kv else s - NKV
        for cg in range(4 if kv else 3):
            for e in range(2):
                m0 = f"s_add_u32 m0, s{S_WB}, {(s%3)*32768 + cg*8192 + e*2048}"
                if not kv and cg == 0:
                    t, vreg, srd_ = S_W1OFF, V_W1, SRD_W1
                    so = f"s_add_u32 s{t}, s{t}, s{S_INC4 if e else S_INC60}"
                else:
                    t = self.stmp(); vreg = V_W
                    srd_, half = ((SRD_WK, SRD_WV)[cg >> 1], cg & 1) if kv else (SRD_WQ, cg - 1)
                    so = f"s_add_u32 s{t}, s{S_CK + cg if kv else S_COL}, {half*128 + (64*k + 4*e)*8192}"
                out.append((m0, so, Op(f"buffer_load_dwordx4 v{vreg}, {SR(srd_)}, s{t} offen{self.nt_kv if kv else (self.nt_q if cg else '')} lds", tag=f"W{s}")))
        if self.emajor: out = out[0::2] + out[1::2]
        return out
    def a_dma(self, s):
        out = []
        srd_, vreg, srow, k = (SRD_C, V_AC, S_ROWC, s) if s < NKV else (SRD_X, V_AX, S_ROWX, s - NKV)
        for t8 in range(8):
            t = self.stmp()
            out.append((f"s_add_u32 m0, s{S_ACTB}, {(s%2)*32768 + t8*1024}",
                        f"s_add_u32 s{t}, s{srow + (t8>>1)}, {128*k}",
                        Op(f"buffer_load_dwordx4 v{vreg + (t8&1)}, {SR(srd_)}, s{t} offen{self.nt_c if s < NKV else ''} lds", tag=f"A{s}")))
        return out
    def act_reg(self, s, u, ks): return A_ACT + (s % 2)*32 + (u*2 + ks)*4
    def a_read(self, s, u, ks):
        return Op(f"ds_read_b128 {R(self.act_reg(s,u,ks),4)}, v{V_AR+ks} offset:{(s%2)*32768 + 2048*u}", tag=f"ar{s}_{u}")
    def wf_reg(self, gi, ks): return A_WF + (gi % 4)*8 + ks*4
    def t_reads(self, Gi, gi):
        return [Op(f"ds_read_b64_tr_b16 {R(self.wf_reg(gi,ks)+2*e,2)}, v{V_T+(Gi&3)} offset:{(Gi>>2)*8192 + ks*4096 + e*2048}", tag=f"t{gi}")
                for ks in range(2) for e in range(2)]
    def gap(self, s, Gi=0, j=0): return self.gap0[self.gstart[(s, Gi)]] + j
    def bar_gap(self, s): return self.gap(s, self.NT(s) - 2) - 1
    def build(self, mid_ops):
        G = self.G; n = NS
        groups = []
        for s in range(n):
            kv = s < NKV
            for Gi in range(self.NT(s)):
                gi = len(groups); groups.append((s, Gi)); self.gap0.append(len(G.m))
                for u in range(4):
                    for ks in range(2):
                        d = (acc_kv if kv else acc_qf)(Gi, u); w = self.wf_reg(gi, ks); x = self.act_reg(s, u, ks)
                        c = "0" if (s in (0, NKV) and ks == 0) else None
                        G.mfma(mfma(d, x, w, c) if (kv and Gi >= 8) else mfma(d, w, x, c))
        self.gstart = {g: i for i, g in enumerate(groups)}
        ng = len(groups); g0 = lambda gi: self.gap0[gi]
        def emit_pre(trip):
            for m0, so, ld in trip:
                G.put(-1, m0); G.put(-1, so); G.put(-1, ld)
        fast = self.fast
        if fast:
            emit_pre(self.w_dma(0))
            for o in mid_ops:
                if o.kind != "vm": G.put(-1, o)
            emit_pre(self.a_dma(0)); emit_pre(self.w_dma(1)[:fast - 1])
            late_vm = [o for o in mid_ops if o.kind == "vm"]
        else:
            emit_pre(self.w_dma(0)); emit_pre(self.a_dma(0)); emit_pre(self.w_dma(1)); emit_pre(self.a_dma(1))
            for o in mid_ops: G.put(-1, o)
        G.put(-1, W(v=["W0", "A0"])); G.put(-1, "s_barrier")
        for u in range(4):
            for ks in range(2): G.put(-1, self.a_read(0, u, ks))
        for o in self.t_reads(0, 0) + self.t_reads(1, 1): G.put(-1, o)
        G.put(-1, W(l=["t0"]))
        self.bar_wait = {}
        for gi, (s, Gi) in enumerate(groups):
            if gi + 2 < ng:
                for j, o in enumerate(self.t_reads(groups[gi + 2][1], gi + 2)): G.put(g0(gi) + (j & 2), o)
            last_gap = g0(gi) + 7
            if gi + 3 < ng and groups[gi + 3][1] == 0:
                sn = groups[gi + 3][0]
                delta = 32768 if sn % 3 else -65536
                for n_ in range(4):
                    G.put(g0(gi) + (4, 4, 6, 6)[n_], f"v_add_u32 v{V_T+n_}, {delta & 0xffffffff}, v{V_T+n_}")
                self.bar_wait[s] = W(v=[f"W{sn}"], l="*")
                G.put(last_gap, self.bar_wait[s]); G.put(last_gap, "s_barrier")
            elif gi + 1 < ng:
                G.put(last_gap, W(l=[f"t{gi+1}"]))
        if self.jit is not None: return self.build_jit(late_vm)
        jobs = []
        for s in range(n):
            NT = self.NT(s); base = self.gstart[(s, 0)]
            ga = 2 if (NT >= 16 and self.emajor < 2) else 0
            if fast and s < 3: ga = (10, 8, 5)[s]
            if s + 1 < n:
                G.put(g0(base + ga) + 4, W(v=[f"A{s+1}"]))
                for u in range(4):
                    for ks in range(2): G.put(g0(base + ga + u) + 4, self.a_read(s + 1, u, ks))
            lo = base - 2 if s > 0 else base
            ngap = NT*8 - (0 if s > 0 else 16)
            jl = []
            if s == 0 and fast: jl += [(0, x) for x in self.w_dma(1)[fast - 1:] + self.a_dma(1) + [(None, None, o) for o in late_vm] + self.w_dma(2) + self.a_dma(2)]
            elif s == 0: jl += [(0, x) for x in self.a_dma(2)]
            if s + 2 < n and not (fast and s == 0): jl += [(g0(lo), x) for x in self.w_dma(s + 2)]
            if s + 3 < n: jl += [(g0(base + ga + (t >> 1) + 3), x) for t, x in enumerate(self.a_dma(s + 3))]
            if self.emajor > 1 and 0 < s < n - 3:
                nw = len(jl) - 8; h = nw // 2
                jl = jl[:h] + jl[nw:nw+4] + jl[h:nw] + jl[nw+4:]
            for k_, (e, x) in enumerate(jl): jobs.append((e, 0 if (fast and s < 3) else g0(lo) + (k_ * ngap) // max(14, len(jl)), x))
        prev = -self.dense; self.log = []
        for e, sp, (m0, so, ld) in jobs:
            prev = place_vm(G, max(e + 1, sp, prev + self.dense if fast else 0), ld, m0, so, max(prev, -1))
            self.log.append((prev, ld.tag))
        return self
    def build_jit(self, late_vm):
        G = self.G; jobs = []
        for s in range(NS - 1):
            NT = self.NT(s); delta = self.jit[0 if s < NKV else 1]
            ad = self.a_dma(s + 1)
            for t, x in enumerate(ad): x[2].tag = f"A{s+1}_{t>>1}"
            for u in range(4):
                g = self.gap(s, NT - 7 + u, 4)
                G.put(g, W(v=[f"A{s+1}_{u}"]))
                for ks in range(2): G.put(g, self.a_read(s + 1, u, ks))
            jl = ad + ([(None, None, o) for o in late_vm] if s == 0 else []) + (self.w_dma(s + 2) if s + 2 < NS else [])
            for k_, x in enumerate(jl):
                e = self.bar_gap(s - 1) + 1 if (s > 0 and k_ >= 8) else 0
                jobs.append((max(e, self.gap(s) + (k_*NT*8) // max(14, len(jl)) - delta), x))
        prev = -self.dense; self.log = []
        for sp, (m0, so, ld) in jobs:
            prev = place_vm(G, max(1, sp, prev + self.dense), ld, m0, so, max(prev, -1))
            self.log.append((prev, ld.tag))
        return self
    def last_mfma(self, s, Gi, u): return self.gap(s, Gi, u*2 + 1)

class Tail:
    def __init__(self, gaps):
        self.G = gaps; self.cur = 0; self.post = []
    def add(self, x, earliest=0):
        x = mk(x)
        if self.post: self.post.append(x); return None
        lo = max(self.cur, earliest)
        g = self.G.fit(lo, x) if lo < len(self.G.m) else None
        if g is None: self.post.append(x); return None
        self.cur = g
        return g

def cvt4(d, ra, rb):
    return [f"v_cvt_pk_bf16_f32 v{d}, v{ra}, v{ra+1}", f"v_cvt_pk_bf16_f32 v{d+1}, v{ra+2}, v{ra+3}",
            f"v_cvt_pk_bf16_f32 v{d+2}, v{rb}, v{rb+1}", f"v_cvt_pk_bf16_f32 v{d+3}, v{rb+2}, v{rb+3}"]

def kv_epilogue(P, first=26, step=24, ndirect=4, sc=SC):
    G = P.G; s = NKV - 1
    frags = []
    for kp in range(4):
        for u in range(4): frags.append((acc_kv(2*kp, u), acc_kv(2*kp + 1, u), P.last_mfma(s, 2*kp + 1, u), ((2*kp, u), (2*kp + 1, u)), (u*4 + kp)*1024))
    for dt in range(8):
        for kb in range(2): frags.append((acc_kv(8 + dt, 2*kb), acc_kv(8 + dt, 2*kb + 1), P.last_mfma(s, 8 + dt, 2*kb + 1), ((8 + dt, 2*kb), (8 + dt, 2*kb + 1)), 16384 + (kb*8 + dt)*1024))
    home = []; npark = 0
    for n, (ra, rb, rdy, grp, off) in enumerate(frags):
        Gi = grp[0][0]
        if n < ndirect or Gi in (12, 13): home.append(ra)
        elif Gi >= 14: home.append(acc_kv(Gi - 2, grp[1][1]))
        else: home.append(A_PARK + 4*npark); npark += 1
    place_scalars(G, [f"s_and_b32 s{S_KV}, s{S_KV}, 0xfffff"] + [x for cg in range(4) for x in (f"s_lshl_b32 s{S_CK+cg}, s{S_CK+cg}, 12", f"s_add_u32 s{S_CK+cg}, s{S_CK+cg}, s{S_KV}")], max(P.gap(s - 1, 4), max(g for g, t in P.log if t == f'W{s}') + 1), P.gap(s) + 20)
    sg = []; prev = -1
    for n, f in enumerate(frags):
        ld = Op(f"buffer_store_dwordx4 {R(home[n],4)}, v{V_L16}, {SR(SRD_WS)}, s{S_ST} offen{sc}", tag="KVst")
        prev = place_vm(G, P.gap(s) + first + step*n, ld, None, f"s_add_u32 s{S_ST}, s{S_CK + (f[3][0][0] >> 2)}, {WS_KV + f[4]}", prev)
        sg.append(prev)
    T = Tail(G)
    for n, (ra, rb, rdy, grp, off) in enumerate(frags):
        e = rdy + 8
        if ra >= 256:
            tmp = V_TMP + 8*(n % 2)
            for j in range(4): T.add(f"v_accvgpr_read_b32 v{tmp+j}, {R(ra+j)}", e)
            for j in range(4): T.add(f"v_accvgpr_read_b32 v{tmp+4+j}, {R(rb+j)}")
            for o in cvt4(home[n], tmp, tmp + 4): g = T.add(o)
        elif home[n] >= 256:
            for o in cvt4(ra, ra, rb): T.add(o, e)
            for j in range(4): g = T.add(f"v_accvgpr_write_b32 {R(home[n]+j)}, v{ra+j}")
        else:
            for o in cvt4(ra, ra, rb): g = T.add(o, e)
        assert g < sg[n], ("store before pack", n, g, sg[n])
        for (Gi, u) in grp:
            if Gi < 12:
                need = P.gap(NKV, Gi, 2*u) - 1
                assert g <= need - 1, ("acc reuse", n, g, need)
                if home[n] == acc_kv(Gi, u): assert sg[n] <= need - 1, ("acc reuse by store", n, sg[n], need)
    assert not T.post and A_PARK + 4*npark <= 256 + A_RAW
    P.kv_pack_end = T.cur
    return sg[-1]

def wt_addr(P, e):
    T = Tail(P.G)
    for o in ["v_bfe_u32 v16, v0, 2, 3", "v_lshrrev_b32 v17, 5, v0", "v_lshlrev_b32 v17, 10, v17", "v_lshl_add_u32 v17, v16, 7, v17",
              f"v_add_u32 v17, s{S_JL}, v17", "v_bfe_u32 v16, v0, 3, 1", "v_lshlrev_b32 v16, 2, v16", "v_and_b32 v18, 3, v0",
              "v_or_b32 v16, v16, v18", f"v_lshl_add_u32 v{V_JT}, v16, 4, v17", f"v_xor_b32 v{V_JT+1}, 64, v{V_JT}", f"v_add_u32 v{V_JW}, s{S_JL}, v{V_L16}"]: T.add(o, e)
A_RAW = 208
def wt_loads(t=S_ST):
    return [(f"s_add_u32 s{t}, s{S_JS+jb}, {q*8*1280}",
             Op(f"buffer_load_dwordx4 a[{A_RAW+16*jb+4*q}:{A_RAW+16*jb+4*q+3}], v{V_JD}, {SR((SRD_WO, SRD_W2)[jb])}, s{t} offen nt", tag="wt"))
            for jb in range(2) for q in range(4)]
def wt_writes():
    return [Op(f"ds_write_b128 v{V_JW}, a[{A_RAW+4*n}:{A_RAW+4*n+3}] offset:{n*1024}", tag="wtw") for n in range(8)]
A_WT = 100
def wt_reads():
    return [f"ds_read_b64_tr_b16 a[{A_WT+16*jb+4*n+2*e}:{A_WT+16*jb+4*n+2*e+1}], v{V_JT+(n>>1)} offset:{jb*4096 + e*2048 + 8*(n&1)}"
            for jb in range(2) for n in range(4) for e in range(2)]
def wt_stores():
    return [f"buffer_store_dwordx4 a[{A_WT+16*jb+4*n}:{A_WT+16*jb+4*n+3}], v{V_L16}, {SR(SRD_WS)}, s{S_JD+jb} offen offset:{n*1024}{SC}"
            for jb in range(2) for n in range(4)]

V_BIAS = 160
def bias_ops(P, s):
    G = P.G; T = Tail(G)
    T.add(f"v_lshrrev_b32 v23, 4, v0", P.gap(s)); g = T.add(f"v_lshlrev_b32 v23, 3, v23")
    prev = g
    for ft in range(4):
        prev = place_vm(G, prev + 2, Op(f"buffer_load_dwordx2 v[{240+2*ft}:{241+2*ft}], v23, {SR(SRD_B1)}, s{S_ST} offen offset:{32*ft}", tag="bias"),
                        None, f"s_lshl_b32 s{S_ST}, s{S_FB}, 7", prev)
    return prev

def q_epilogue(a, st=()):
    a(f"v_mov_b32 v16, {f2h(QSCALE)}"); a("v_mov_b32 v17, v16")
    for u in range(4):
        for kp in range(4):
            ra, rb = acc_qf(4 + 2*kp, u), acc_qf(5 + 2*kp, u)
            for r in (ra, ra + 2, rb, rb + 2): a(f"v_pk_mul_f32 v[{r}:{r+1}], v[{r}:{r+1}], v[16:17]")
            a(cvt4(ra, ra, rb))
            if kp & 1 and st: a(st.pop(0))

def h_epilogue(a, hold=0):
    sc = [f"s_lshl_b32 s{S_ST}, s{S_FB}, 11", f"s_add_u32 s{S_ST}, s{S_ST}, {WS_H}"]
    for u in range(4): sc += [f"s_mul_i32 s{S_T0+u}, s{S_RT+u}, {54*1024}", f"s_add_u32 s{S_T0+u}, s{S_T0+u}, s{S_ST}"]
    for ft in range(4):
        for hf in range(2):
            a(f"v_lshlrev_b32 v{V_BIAS+4*ft+2*hf}, 16, v{240+2*ft+hf}")
            a(f"v_and_b32 v{V_BIAS+4*ft+2*hf+1}, 0xffff0000, v{240+2*ft+hf}")
            a(sc.pop(0))
    a(f"v_mov_b32 v16, {f2h(-GK1)}"); a("v_mov_b32 v17, v16"); a(sc.pop(0))
    a(f"v_mov_b32 v18, {f2h(-GK0)}"); a("v_mov_b32 v19, v18"); a(sc.pop(0))
    a("v_mov_b32 v20, 1.0"); a("v_mov_b32 v21, 1.0")
    st = []
    for u in range(4):
        for kb in range(2):
            regs = [acc_qf(2*kb + t, u) + 2*hf for t in range(2) for hf in range(2)]
            bias = [V_BIAS + 4*(2*kb + t) + 2*hf for t in range(2) for hf in range(2)]
            T = [24 + 2*i for i in range(4)]
            p = lambda r: f"v[{r}:{r+1}]"
            for r, b_ in zip(regs, bias): a(f"v_pk_add_f32 {p(r)}, {p(r)}, {p(b_)}")
            for r, t in zip(regs, T): a(f"v_pk_mul_f32 {p(t)}, {p(r)}, {p(r)}")
            for r, t in zip(regs, T): a(f"v_pk_fma_f32 {p(t)}, {p(t)}, v[16:17], v[18:19]")
            for r, t in zip(regs, T): a(f"v_pk_mul_f32 {p(t)}, {p(t)}, {p(r)}")
            for t in T: a(f"v_exp_f32 v{t}, v{t}"); a(f"v_exp_f32 v{t+1}, v{t+1}")
            for t in T: a(f"v_pk_add_f32 {p(t)}, {p(t)}, v[20:21]")
            for t in T: a(f"v_rcp_f32 v{t}, v{t}"); a(f"v_rcp_f32 v{t+1}, v{t+1}")
            for r, t in zip(regs, T): a(f"v_pk_mul_f32 {p(t)}, {p(t)}, {p(r)}")
            d = regs[0]
            for i, t in enumerate(T): a(f"v_cvt_pk_bf16_f32 v{d+i}, v{t}, v{t+1}")
            st.append(f"buffer_store_dwordx4 v[{d}:{d+3}], v{V_L16}, {SR(SRD_WS)}, s{S_T0+u} offen offset:{kb*1024}{SC}")
            if not hold: a(st.pop(0))
    return st


def gate_epilogue(a):
    a("v_lshlrev_b32 v16, 2, v0")
    a(f"v_mov_b32 v17, {OOB}")
    a("v_cmp_gt_u32 vcc, 16, v0")
    for u in range(4):
        a(f"s_lshl_b32 s{S_T0+u}, s{S_RT+u}, 6")
        a(f"s_add_u32 s{S_T0+u}, s{S_T0+u}, {WS_G}")
    a("v_cndmask_b32 v16, v17, v16, vcc")
    r = [acc_qf(0, u) for u in range(4)]
    for x in r: a(f"v_permlane32_swap_b32 v{x+1}, v{x+2}")
    a("s_nop 1")
    for x in r: a(f"v_add_f32 v{x}, v{x}, v{x+2}")
    for x in r: a(f"v_mul_f32 v{x}, {f2h(-math.log2(math.e))}, v{x}")
    for x in r: a(f"v_exp_f32 v{x}, v{x}")
    for x in r: a(f"v_add_f32 v{x}, 1.0, v{x}")
    for x in r: a(f"v_rcp_f32 v{x}, v{x}")
    a("s_nop 0")
    for u, x in enumerate(r): a(f"buffer_store_dword v{x}, v16, {SR(SRD_WS)}, s{S_T0+u} offen{SC}")
```

```python
import sys, json
from gen_fin import *

def flat(ops): return resolve(ops)[0]
def sops(stamps, name, on=True):
    t = Asm()
    if on: stamps.stamp(t, name)
    return [Op(x.strip()) for x in t.lines]

def gen(name, stamps, opt):
    a = Asm(); spins = Spins(stamps.enabled)
    entry(a, name, not opt.get('nocode'), stamps)
    LATE_PAR[0] = opt.get('late', 1); MIX[0] = opt.get('mix', 1)
    setup_first(a, opt.get('wsshift', 0)*MB, opt.get('coop', 0))
    stamps.early_save(a)
    stamps.stamp(a, "start")
    m = Asm(); setup_rest(m)
    P = Proj(**opt.get('proj', {})).build([Op(x.strip()) for x in m.lines] + ([warm_c()] if opt.get('warmc', 1) else []) + ([mk(y) for x in warm_w(opt.get('wwnt', ''))[:opt.get('warmw', 0)] for y in x]))
    G = P.G
    if not opt.get('nowarm'):
        for k, (so, o) in enumerate(warm_ops(opt.get('warmnt', ''))): place_vm(G, opt.get('warm0', 60) + opt.get('warmstep', 80)*k, o, None, so)
    for k, (so, o) in enumerate(warm_w(opt.get('wwnt', ''))[opt.get('warmw', 0):opt.get('warmw2', 0)]): place_vm(G, 20 + 60*k, o, None, so)
    wtlate = opt.get('wtlate', 0)
    for k, (so, o) in enumerate([] if wtlate else wt_loads()): place_vm(G, opt.get('wt0', 100) + opt.get('wtstep', 96)*k, o, None, so)
    last_st = kv_epilogue(P, **opt.get('kv', {}))
    wt_addr(P, last_st + 4)
    bias_ops(P, 17)
    T = Tail(G)
    T.add(f"v_mov_b32 v20, s{S_EP}", P.gap(12)); T.add("v_lshlrev_b32 v21, 3, v0")
    def free_gap(g):
        while G.g[g]: g += 1
        return g
    pg = P.gap(16) + opt.get('kvpoll', 96)
    if opt.get('wgflag', 1):
        sb = min(s_ for s_ in range(NKV, NS - 1) if P.bar_gap(s_) >= last_st + opt.get('kvflag', 60))
        P.bar_wait[sb].vtags.append("KVst")
        place_scalars(G, glue([f"s_lshr_b32 s{S_FK}, s2, 3", f"s_lshl_b32 s94, s{S_X}, 5", f"s_add_u32 s{S_FK}, s{S_FK}, s94", f"s_lshl_b32 s{S_FK}, s{S_FK}, 2",
                               f"s_add_u32 s{S_FK}, s{S_FK}, {WS_FK}", f"s_cmp_eq_u32 s{S_WAVE}, 0", f"s_cselect_b32 s{S_FK}, s{S_FK}, {OOB}",
                               "s_cselect_b64 s[58:59], 0, -1"]), P.gap(12), P.gap(13))
        T.add("v_and_b32 v21, 31, v0"); T.add("v_lshlrev_b32 v21, 2, v21")
        g = place_vm(G, P.bar_gap(sb) + 1, Op(flag_set(20, S_FK), tag="fl"))
        msk = 0xffffff80
        pl = f"buffer_load_dword v24, v21, {SR(SRD_WS)}, s{S_FK} offen{SC}"
        test = flag_test(24); test.insert(-1, "s_or_b64 vcc, vcc, s[58:59]")
        post = ["s_barrier"]
    else:
        g = free_gap(last_st + opt.get('kvflag', 80)); G.put(g, W(v=["KVst"])); G.put(g, Op(flag_set(20, S_FK), tag="fl"))
        msk = 0xfffffe00
        pl = f"buffer_load_dwordx2 v[24:25], v21, {SR(SRD_WS)}, s{S_FK} offen{SC}"
        test = flag_test(24, 2); post = []
    print("kv flag at", g, "poll", pg)
    place_scalars(G, [f"s_and_b32 s{S_FK}, s{S_FK}, {msk}"] + att_setup_s(), max(g + 1, P.gap(15), P.log[-1][0] + 1), pg - 1)
    place_vm(G, pg, Op(pl, tag="p1"))
    g = free_gap(max(P.bar_gap(16) + 1, pg + 44)); G.put(g, W(v=["p1"])); G.put(g, block(spins.check(pl, test, sleep=opt.get('sleep', 1)) + post, "valu"))
    rest = att_prefetch0(G, g + 1)
    if wtlate: rest += [[so, o.text] for so, o in wt_loads(S_W1OFF)]
    nrest = sum(1 for x in rest if x[0].startswith("buffer"))
    print("kv store ends", last_st, "check", g, "att prefetch left for the epilogue:", nrest, "overflow", G.overflow())
    cw = opt.get('cw', 0)
    G.put(P.gap(9) - 1, Op("L_st9:", "valu"))
    if cw & 1: code_warm(G, P.gap(5) + 20, "L_st9", 31, 1)
    if cw & 2: code_warm(G, P.gap(14) + 20, "L_qfend", 31, 2)
    stamps.put(G, -1, "mfma0")
    fine = opt.get('fine')
    for s_ in ((8,) if fine else (4, 7, 8, 10, 12, 14, 16)): stamps.put(G, P.gap(s_) - 1, f"stage{s_}")
    lines, vm, _ = resolve(G.ops() + [W(v=["bias"])])
    a(lines)
    a.label("L_qfend")
    stamps.stamp(a, "qf_mm")
    pre = list(a.lines)
    n0 = len(a.lines)
    a(f"s_cmp_lg_u32 s{S_AUX}, 0")
    a("s_cbranch_scc1 L_gate")
    t = Asm(); hst = h_epilogue(t, wtlate)
    r_ = list(rest)
    for k, x in enumerate(t.lines):
        a.lines.append(x)
        if r_ and k % 3 == 2 and k > 30 and x.strip().startswith("v_"): a(r_.pop(0))
    assert not r_
    q_epilogue(a, hst)
    hpath = a.lines[n0:]
    a.label("L_qepi")
    n0 = len(a.lines)
    att_setup_v(a)
    stamps.stamp(a, "att0")
    a(f"s_waitcnt vmcnt({28 if wtlate else 16})"); a("s_barrier")
    st0, q0n, q0d = [flat(x) for x in att_start(28 if wtlate else 16)]
    a(st0)
    first = a.lines[n0:]
    def period(blk):
        st = [step(blk, p) for p in range(4)]
        if blk:
            place_scalars(st[1], [f"s_cmp_eq_u32 s{S_PER}, 1", f"s_cselect_b32 s{S_TA+2}, s{S_TA+3}, {OOB}"], 16 + 12, 16 + 16)
            st[1].put(33, Op(fq_poll(S_TA + 2), tag="poll"))
            place_scalars(st[3], [f"s_cmp_eq_u32 s{S_PER}, s{S_FQP}", f"s_cselect_b32 s{S_TA+2}, s{S_FQ}, {OOB}"], 10, 14)
            st[3].put(33, Op(flag_set(V_EP, S_TA + 2), tag="fq"))
        place_scalars(st[3], [f"s_sub_u32 s{S_PER}, s{S_PER}, 1", f"s_cmp_lg_u32 s{S_PER}, 0"], 16 + 12, 16 + 16)
        for p in range(4): assert st[p].overflow() == 0, (p, st[p].overflow())
        ops = [g.ops() for g in st]
        tr = flat(ops[1] + ops[2] + ops[3] + ops[0])
        n1, n2, n3 = len(ops[1]), len(ops[2]), len(ops[3])
        return tr[n1+n2+n3:], tr[:n1+n2+n3], resolve(ops[3])[2]
    s0, s123, ds3 = period(0)
    t0, t123, dt3 = period(1)
    d0l = resolve(step(0, 0, C_D0).ops(), ds0=ds3)[0]
    fs, fv = fin_setup()
    d1 = step(0, 1, C_D1, k2=True, tag="w1")
    gl = glue(ctx_addr_ops() + fs)
    g = place_scalars(d1, gl[:24], 0, 32)
    eb1 = end_block1(gl[24:50])
    z = [step(1, 1, zero=True), step(1, 2, barw=W(v=["w1"], l="*")), step(1, 3)]
    for o, g in zip(wt_writes(), (0, 3, 7, 10, 17, 19, 21, 24)): z[0].put(g, o)
    for o, g in zip(wt_reads(), (26, 26, 28, 28, 29, 30, 30, 32, 33, 33)): z[0].put(g, o)
    for o, g in zip(wt_reads()[10:], (0, 0, 1, 1, 4, 4)): z[1].put(g, o)
    ws_ = [Op(x, tag="wtst") for x in wt_stores()]
    for o, g in zip(ws_[:4], (17, 21, 24, 29)): z[1].put(g, o)
    for o, g in zip(ws_[4:], (2, 10, 20, 33)): z[2].put(g, o)
    for o, g in zip(fv, (29, 32, 29, 32, 32)): z[1 if o in fv[:2] else 2].put(g, o)
    place_scalars(z[0], [f"s_mov_b32 s{S_BLK}, 1", f"s_sub_u32 s{S_QB}, 15, s{S_I}", f"s_sub_u32 s{S_PER}, 13, s{S_I}"], 8, 14)
    place_scalars(z[1], gl[50:66], 0, 32); place_scalars(z[2], gl[66:], 0, 32)
    if cw & 4: code_warm(z[0], 16, "L_last", 243, 1)
    print("block1 end overflow", d1.overflow(), eb1.overflow(), [x.overflow() for x in z])
    S = lambda n: sops(stamps, n, fine)
    b1l = resolve(S("B") + d1.ops() + S("d1") + eb1.ops() + S("eb1") + epilogue("1") + [Op(x) for x in cm_update()] + [W(v=["w0"], l="*"), Op("s_barrier")]
                  + sops(stamps, "blk1") + z[0].ops() + z[1].ops() + z[2].ops() + S("peel"), vm0=["prev"] + ["w0"]*8)[0]
    a(f"s_cmp_eq_u32 s{S_QB}, 0")
    a("s_cbranch_scc1 L_q0d")
    a(q0n)
    a("s_branch L_A")
    a.label("L_q0d")
    a(q0d)
    a("s_branch L_B")
    n0 = len(a.lines); slow_path(a); slow = a.lines[n0:]
    a.label("L_gate")
    n0 = len(a.lines); [a(x + ['s_nop 0']) for x in rest]; gate_epilogue(a); q_epilogue(a); gpath = a.lines[n0:]
    a("s_branch L_qepi")
    a(".p2align 6")
    a.label("L_loop")
    a(s0)
    a.label("L_A")
    a(s123)
    a("s_cbranch_scc1 L_loop")
    a(d0l)
    a.label("L_B")
    a(b1l)
    a.label("L_loop2")
    a(t0); a(t123)
    a("s_cbranch_scc1 L_loop2")
    F = Fin()
    fl1 = (None, None, Op(flag_set(V_EP, S_FC), tag="fl"))
    S9 = (2, 6, 10, 15, 19, 23, 27, 31, 33); S4 = (2, 10, 19, 23)
    y = [step(1, 0, tag="V32", barw=W(v=["V30"], l="*")), step(1, 1, stream=False), step(1, 2, tag="V33", barw=W(v=["V31"], l="*")), step(1, 3, stream=False)]
    if cw & 8: code_warm(y[1], 8, "L_fin0", 243, 1)
    y[0].put(1, W(v=["poll"])); y[0].put(1, block(spins.check(fq_poll(S_TA + 3), flag_test(V_POLL, 4)), "valu"))
    put_loads(y[0], F.a_loads(0), (3, 18, 21, 24))
    put_loads(y[1], F.w_dma(0) + F.a_loads(1), S9)
    put_loads(y[2], F.a_loads(2), (2, 18, 21, 24))
    put_loads(y[3], F.w_dma(1) + F.a_loads(3), S9)
    d0L = step(1, 0, C_D0, stream=False, barw=W(v=["V32"], l="*"))
    put_loads(d0L, F.a_loads(4) + F.a_loads(5) + [fl1], (2, 6, 10, 15, 19, 23, 27, 31, 32))
    place_scalars(d0L, ctx_addr_ops(), 5, 32)
    d1L = step(1, 1, C_D1, stream=False, k2=True)
    w3 = F.w_dma(3)
    put_loads(d1L, F.w_dma(2) + w3[:4], (2, 6, 10, 15, 19, 22, 25, 27, 31))
    eb2 = end_block2(w3[4:] + F.g_loads(), F.w_dma(4), F.w_dma(5), W(v=["V33"], l="*"))
    F.build(spins, **opt.get("fin", {}))
    print("last: overflow", [x.overflow() for x in y], d0L.overflow(), d1L.overflow(), eb2.overflow(), F.G.overflow())
    z = [S(n) for n in ("last", "y", "d0L", "d1L", "eb2")]
    sb = sops(stamps, "blk2")
    stamps.put(F.G, F_ST*40 - 1, "ffn2")
    lastl = resolve(z[0] + sum([x.ops() for x in y], []) + z[1] + d0L.ops() + z[2] + d1L.ops() + z[3] + eb2.ops() + z[4] + F.pre_ops() + epilogue("2") + sb + [Op("L_fin0:")] + F.G.ops(),
                    vm0=["V30"]*4 + ["K32"]*4 + ["poll"] + ["V31"]*4 + ["K33"]*4 + ["fq"], ds0=dt3)[0]
    a.label("L_last")
    n0 = len(a.lines)
    a(lastl)
    stamps.stamp(a, "fmm")
    fin_tail(a, spins)
    last = a.lines[n0:]
    stamps.stamp(a, "issued")
    if stamps.enabled: a("s_waitcnt vmcnt(0)")
    stamps.stamp(a, "end")
    stamps.dump(a, 0)
    a("s_endpgm")
    spins.emit(a)
    a('.fill 256, 4, 0xbf810000')
    a.label('L_code_end')
    br = ["s_cbranch_scc1 x"]
    lint(pre + hpath + first + q0n + s123 + br + s0 + s123 + br + d0l + b1l + t0 + t123 + br + t0 + t123 + br + last, "main")
    lint(pre[-200:] + hpath[:2] + gpath + first + q0d + b1l, "gate")
    ix = lambda l, x: [i for i, y in enumerate(l) if y.strip().startswith(x)][0]
    lint(b1l[:ix(b1l, "done1")] + slow[ix(slow, "redo1"):-3] + slow[ix(slow, "slow_loop"):] + b1l[ix(b1l, "norm1"):], "slow1")
    lint(last[:ix(last, "done2")] + slow + last[ix(last, "norm2"):], "slow2")
    return a

if __name__ == "__main__":
    out = sys.argv[1]
    st = Stamps("stamp" in sys.argv or "lite" in sys.argv)
    if "lite" in sys.argv: st.only = ("entry", "mfma0", "stage8", "att0", "blk2", "fmm", "end")
    opt = eval(sys.argv[2])
    name = KNAME + "_kernel"
    a = gen(name, st, opt)
    txt = file_text([(name, 256, 256, 163840)], a.text(), [kernel_desc(name, 256, 256)], single=True)
    open(out, "w").write(txt)
    json.dump({"stamps": [st.names]}, open(out + ".json", "w"))
```
